```python
import torch

def _softmax(x, axis=-1):
    return torch.softmax(x, dim=axis)

def _gelu(x):
    return torch.nn.functional.gelu(x, approximate='tanh')

def _silu(x):
    return torch.nn.functional.silu(x)

def _sigmoid(x):
    return torch.sigmoid(x)

def _layernorm(x, axis=-1, eps=1e-05):
    m = x.mean(dim=axis, keepdim=True)
    v = x.var(dim=axis, keepdim=True, unbiased=False)
    return (x - m) / torch.sqrt(v + eps)

def _scatter_add(tgt, idx, src, axis=0):
    return tgt.clone().index_add_(axis, idx, src)

def _segment_sum(src, seg, n):
    out = torch.zeros((n,) + src.shape[1:], dtype=src.dtype)
    return out.index_add_(0, seg, src)

def _pad(x, pw):
    flat = tuple((v for pair in reversed(pw) for v in pair))
    return torch.nn.functional.pad(x, flat)
kernel_name = 'adaLN_cond__sliding_block_cached__glu_gated_glu__decode'

def setup_inputs():

    _w = lambda a: (lambda t: t.to(torch.bfloat16) if t.is_floating_point() else t)(torch.as_tensor(a))

    def _A_setup():
        B, Sq, D = (4, 1, 512)
        Hq, Hkv, Sk, Dh = (32, 8, 8192, 128)
        assert Hq % Hkv == 0, (Hq, Hkv)
        return {'x': _w((lambda *s: torch.randn(*s, dtype=torch.bfloat16) * 0.05)(B, Sq, D)), 'k_cache': _w((lambda *s: torch.randn(*s, dtype=torch.bfloat16) * 3.2)(B, Hkv, Sk, Dh)), 'v_cache': _w((lambda *s: torch.randn(*s, dtype=torch.bfloat16) * 0.4)(B, Hkv, Sk, Dh)), 'wq': _w((lambda *s: torch.randn(*s, dtype=torch.bfloat16) * 3.2)(D, Hq * Dh) * D ** (-0.5)), 'wo': _w((lambda *s: torch.randn(*s, dtype=torch.bfloat16) * 0.4)(Hq * Dh, D) * (Hq * Dh) ** (-0.5))}
    _A_in = _A_setup()

    def _B_setup():
        B, S, D, F = (4, 1, 512, 1792)
        return {'x': _w((lambda *s: torch.randn(*s, dtype=torch.bfloat16) * 0.05)(B, S, D)), 'w_gate': _w((lambda *s: torch.randn(*s, dtype=torch.bfloat16) * 0.05)(D, F)), 'w_up': _w((lambda *s: torch.randn(*s, dtype=torch.bfloat16) * 0.05)(D, F)), 'w_down': _w((lambda *s: torch.randn(*s, dtype=torch.bfloat16) * 0.05)(F, D))}
    _B_in = _B_setup()
    return {'A_x': _A_in['x'], 'A_k_cache': _A_in['k_cache'], 'A_v_cache': _A_in['v_cache'], 'A_wq': _A_in['wq'], 'A_wo': _A_in['wo'], 'B_x': _B_in['x'], 'B_w_gate': _B_in['w_gate'], 'B_w_up': _B_in['w_up'], 'B_w_down': _B_in['w_down'], 'c': _w((lambda *s: torch.randn(*s, dtype=torch.bfloat16) * 0.1)(4, 512) * 8.0), 'w_mod': _w((lambda *s: torch.randn(*s, dtype=torch.bfloat16) * 0.1)(512, 6 * 512) * 512 ** (-0.5) * 8.0)}

def reference(A_x, A_k_cache, A_v_cache, A_wq, A_wo, B_x, B_w_gate, B_w_up, B_w_down, c, w_mod):

    def _A_ref(x, k_cache, v_cache, wq, wo):
        B, Sq, D = x.shape
        Hq, Dh = (32, 128)
        Hkv, Sk = (k_cache.shape[1], k_cache.shape[2])
        W = min(4096, max(256, Sk // 4))
        rep = Hq // Hkv
        q = (lambda x, *d: x.permute(*d))((x @ wq).reshape(B, Sq, Hq, Dh), 0, 2, 1, 3)
        k = (lambda x, n, axis: torch.repeat_interleave(x, n, dim=axis))(k_cache[:, :, Sk - W:, :], rep, axis=1)
        v = (lambda x, n, axis: torch.repeat_interleave(x, n, dim=axis))(v_cache[:, :, Sk - W:, :], rep, axis=1)
        scores = torch.einsum('bhqd,bhkd->bhqk', q, k) * Dh ** (-0.5)
        p = _softmax(scores, axis=-1)
        o = torch.einsum('bhqk,bhkd->bhqd', p, v)
        return (lambda x, *d: x.permute(*d))(o, 0, 2, 1, 3).reshape(B, Sq, Hq * Dh) @ wo

    def _B_ref(x, w_gate, w_up, w_down):
        g = torch.einsum('bsd,df->bsf', x, w_gate)
        u = torch.einsum('bsd,df->bsf', x, w_up)
        h = _sigmoid(g) * u
        return torch.einsum('bsf,fd->bsd', h, w_down)
    x = A_x
    mod = (_silu(c) @ w_mod).reshape(c.shape[0], 6, 1, -1)
    sa, ca, ga, sb, cb, gb = (mod[:, 0].clone(), mod[:, 1].clone(), mod[:, 2].clone(), mod[:, 3].clone(), mod[:, 4].clone(), mod[:, 5].clone())
    h = _layernorm(x, axis=-1) * (1 + ca) + sa
    x = x + ga * _A_ref(h, A_k_cache, A_v_cache, A_wq, A_wo)
    h = _layernorm(x, axis=-1) * (1 + cb) + sb
    x = x + gb * _B_ref(h, B_w_gate, B_w_up, B_w_down)
    return x
```

```python
import re

REG_RE = re.compile(r'(?<![\w.])([vsa])\[(\d+):(\d+)\]|(?<![\w.])([vsa])(\d+)(?![\w])|(?<![\w.])(vcc|exec|m0)(?![\w])')

def regs_of(tok):
    out = set()
    for m in REG_RE.finditer(tok):
        if m.group(1):
            out |= {(m.group(1), i) for i in range(int(m.group(2)), int(m.group(3)) + 1)}
        elif m.group(4):
            out.add((m.group(4), int(m.group(5))))
        else:
            out.add((m.group(6), 0))
    return out

TRANS = ('v_exp_f32', 'v_log_f32', 'v_rcp_f32', 'v_rsq_f32', 'v_sqrt_f32', 'v_sin_f32', 'v_cos_f32')

class Ins:
    def __init__(self, text):
        self.text = text
        t = text.split(';')[0].strip()
        self.label = t.endswith(':')
        self.directive = t.startswith('.') or t == ''
        self.mn = t.split()[0] if t else ''
        rest = t[len(self.mn):].strip()
        ops = []; depth = 0; cur = ''
        for ch in rest:
            if ch == '[': depth += 1
            if ch == ']': depth -= 1
            if ch == ',' and depth == 0:
                ops.append(cur.strip()); cur = ''
            else: cur += ch
        if cur.strip(): ops.append(cur.strip())
        self.ops = ops
        mn = self.mn
        self.mfma = mn.startswith('v_mfma') or mn.startswith('v_smfmac')
        self.valu = mn.startswith('v_') and not self.mfma
        self.vmem = mn.startswith('buffer_') or mn.startswith('global_')
        self.ds = mn.startswith('ds_')
        self.salu = mn.startswith('s_')
        self.dpp = '_dpp' in mn
        self.trans = mn.replace('_e32', '').replace('_e64', '') in TRANS
        self.perml = mn.startswith('v_permlane')
        self.rdlane = mn.startswith('v_readlane') or mn.startswith('v_readfirstlane')
        self.ldsdma = self.vmem and re.search(r'\blds\b', rest) is not None
        self.w = set(); self.r = set(); self.srcC = set(); self.stdata = set()
        if self.label or self.directive: return
        R = [regs_of(o) for o in ops]
        allr = set().union(*R) if R else set()
        if self.mfma:
            self.w = R[0]
            if mn.startswith('v_smfmac'):
                self.srcC = R[0]; self.ab = R[1] | R[2] | R[3]
            else:
                self.srcC = R[3]; self.ab = R[1] | R[2]
            self.r = self.srcC | self.ab
        elif self.valu:
            self.w = set(R[0])
            self.r = set().union(*R[1:]) if len(R) > 1 else set()
            if self.perml: self.w |= R[1]; self.r |= R[0]
            if self.dpp or 'fmac' in mn or 'dot2c' in mn: self.r |= R[0]
            if mn.startswith('v_cndmask') and len(ops) == 3: self.r.add(('vcc', 0))
            if '_co_' in mn: self.w |= R[1]
        elif self.vmem:
            if 'load' in mn and not self.ldsdma:
                self.w = R[0]; self.r = set().union(*R[1:])
            else:
                self.r = allr
                if 'store' in mn and ('x4' in mn or 'x3' in mn):
                    self.stdata = R[0] if mn.startswith('buffer_') else R[1]
            if self.ldsdma: self.r.add(('m0', 0))
        elif self.ds:
            if 'read' in mn or 'rtn' in mn or 'permute' in mn or 'swizzle' in mn:
                self.w = R[0]; self.r = set().union(*R[1:])
            else: self.r = allr
        elif self.salu:
            if mn.startswith('s_cmp') or mn.startswith('s_cbranch') or mn in ('s_waitcnt', 's_nop', 's_barrier', 's_branch', 's_endpgm', 's_sleep', 's_setprio'):
                self.r = allr
            elif R:
                self.w = R[0]; self.r = set().union(*R[1:]) if len(R) > 1 else set()
    def states(self):
        if self.label or self.directive: return 0
        if self.mn == 's_nop': return int(self.ops[0], 0) + 1
        return 1

def V(s): return {x for x in s if x[0] in 'va' and x[0] != 'vcc'}
def S(s): return {x for x in s if x[0] == 's' or x[0] == 'vcc'}

def need(p, c):
    n = 0
    if p.valu:
        vw = V(p.w); sw = S(p.w)
        if c.mfma and vw & c.r: n = max(n, 2)
        if c.valu and (c.dpp or c.perml) and vw & c.r: n = max(n, 2)
        if c.rdlane and vw & c.r: n = max(n, 1)
        if p.trans and c.valu and vw & c.r: n = max(n, 1)
        if c.valu and sw & c.r: n = max(n, 4 if c.mn.startswith('v_readlane') or c.mn.startswith('v_writelane') else 2)
        if c.vmem and sw & c.r: n = max(n, 5)
    if p.mfma:
        big = '32x32' in p.mn
        a, b, d = (12, 10, 7) if big else (8, 6, 3)
        if c.mfma:
            if p.w & c.ab: n = max(n, a)
            if p.w & c.srcC and not (p.w == c.srcC and p.mn == c.mn): n = max(n, b)
            elif p.w & c.w and p.w != c.srcC: n = max(n, a)
        elif (c.valu or c.vmem or c.ds) and p.w & (c.r | c.w): n = max(n, a)
        if c.valu and V(p.srcC) & c.w: n = max(n, d)
    if p.salu and ('m0', 0) in p.w and c.ldsdma: n = max(n, 1)
    if p.stdata and (c.valu or c.mfma) and p.stdata & c.w: n = max(n, 2)
    return n

def hazard_pass(lines):
    out = []
    added = 0
    for text in lines:
        c = Ins(text)
        if not (c.label or c.directive):
            dist = 0; req = 0
            for p in reversed(out):
                if p.mn in ('s_branch', 's_endpgm'): break
                if p.label or p.directive: continue
                k = need(p, c) - dist
                if k > req: req = k
                dist += p.states()
                if dist >= 12: break
            if req > 0:
                out.append(Ins(f's_nop {req-1}')); added += 1
        out.append(c)
    return [i.text for i in out], added

class Asm:
    def __init__(self): self.L = []
    def __call__(self, s):
        for line in s.split('\n'):
            line = line.strip()
            if line: self.L.append(line)
    def lab(self, name): self.L.append(name + ':')

def vr(a, n=1): return f'v{a}' if n == 1 else f'v[{a}:{a+n-1}]'
def sr(a, n=1): return f's{a}' if n == 1 else f's[{a}:{a+n-1}]'
```

```python
import sys, struct, math
from asmlib import Asm, hazard_pass, vr, sr
NAME = 'adaLN_cond__sliding_block_cached__glu_gated_glu__decode'

HEADER = '''; Kernarg layout for this problem (112 bytes, ptrs only, base s[0:1]):
'''

def f32(x): return '0x%08x' % struct.unpack('<I', struct.pack('<f', x))[0]

WS_MOD = 0x10000
WS_QP  = 0x80000
WS_OP  = 0x100000
OPS    = 2176
WS_YP  = 0x200000
WS_FP  = 0x220000
WS_B   = 0x400000
WS_TS  = 0x8000000
SIG = 288; PASS = 8 * SIG; IMG = 2 * PASS
L_IMG = 65536
L_Q   = L_IMG + 4 * IMG
L_ORED = L_Q + 1536
L_LS  = L_ORED + 8192
L_WT  = L_LS + 64
L_RED = L_WT + 1024
L_ST  = L_RED + 2048
L_X1  = L_ST + 64
L_FL  = L_X1 + 2048
F_T, F_Q, F_P, F_M, F_O = 0, 4, 8, 12, 32
F_MX = 16
L_END = L_FL + 64
TAGMASK = 0xFFF
SPIN_LIM = 1 << 20
POLL_LIM = 1 << 18

sG, sR, sB, sS = 4, 5, 6, 7
pX, pK, pV, pWQ, pWO, pWG, pWU, pWD, pC, pWM, pOUT, pWS = 8, 10, 12, 14, 16, 20, 22, 24, 26, 28, 30, 32
rWS, rA, rB, rC = 32, 36, 40, 44
sE, sMASK, sOFF, sB1, sB2, sCNT, sTW, sROLE, sX, sLO, sHI, sT0, sT1, sT2, sT3 = 48, 49, 50, 51, 52, 53, 54, 55, 56, 58, 59, 60, 61, 62, 63
TS0 = 64

def gen(NT=8, NTT=8, kvfl='nt', wfl='nt', hfl='nt', ts=False, tflag=32, fb=96, fsleep=8, prio=0):
    a = Asm()
    uid = [0]
    def U(p): uid[0] += 1; return f'{p}_{uid[0]}'
    def stamp(k):
        if ts: a(f's_memrealtime {sr(TS0 + 2*k, 2)}')
    def srd(r, p, size):
        a(f's_mov_b32 s{r}, s{p}\ns_mov_b32 s{r+1}, s{p+1}\ns_mov_b32 s{r+2}, {size}\ns_mov_b32 s{r+3}, 0x20000')
    def spin(vt, vaddr, off, n, sleep=0, extra=None):
        l, d = U('L_spin'), U('L_spun')
        a(f's_mov_b32 s{sCNT}, 0')
        a.lab(l)
        a(f'ds_read_b32 v{vt}, v{vaddr} offset:{off}')
        if extra: a(extra)
        a('s_waitcnt lgkmcnt(0)')
        a(f'v_readfirstlane_b32 s{sT0}, v{vt}')
        a(f's_cmp_ge_u32 s{sT0}, {n}\ns_cbranch_scc1 {d}')
        if sleep: a(f's_sleep {sleep}')
        a(f's_add_u32 s{sCNT}, s{sCNT}, 1\ns_cmp_lt_u32 s{sCNT}, {SPIN_LIM}\ns_cbranch_scc1 {l}\ns_endpgm')
        a.lab(d)
    def poll(loads, firsts, vacc, fallback=None, pre_check=None, mid=None):
        l, d = U('L_poll'), U('L_got')
        a(f's_mov_b32 s{sCNT}, 0')
        a.lab(l)
        loads()
        a('s_waitcnt vmcnt(0)')
        if pre_check: pre_check()
        else:
            for f in firsts: a(f'v_xor_b32 v{f}, v{f}, v1')
        fs = list(firsts)
        if len(fs) == 1: a(f'v_and_b32 v{vacc}, s{sMASK}, v{fs[0]}')
        else:
            if len(fs) % 2: a(f'v_or3_b32 v{vacc}, v{fs[0]}, v{fs[1]}, v{fs[2]}'); fs = fs[3:]
            else: a(f'v_or_b32 v{vacc}, v{fs[0]}, v{fs[1]}'); fs = fs[2:]
            while fs: a(f'v_or3_b32 v{vacc}, v{vacc}, v{fs[0]}, v{fs[1]}'); fs = fs[2:]
            a(f'v_and_b32 v{vacc}, s{sMASK}, v{vacc}')
        a(f'v_cmp_ne_u32 vcc, 0, v{vacc}\ns_cbranch_vccz {d}')
        a(f's_add_u32 s{sCNT}, s{sCNT}, 1')
        if fallback is not None:
            a(f's_cmp_eq_u32 s{sCNT}, {fb}\ns_cselect_b32 s{sT0}, {WS_B}, 0\ns_add_u32 s{fallback}, s{fallback}, s{sT0}')
        a(f's_cmp_lt_u32 s{sCNT}, {POLL_LIM}\ns_cbranch_scc1 {l}\ns_endpgm')
        a.lab(d)
    def tagit(v): a(f'v_bfi_b32 v{v}, s{sMASK}, v1, v{v}')
    def mktag():
        a(f'v_and_b32 v1, 3, v0\nv_mul_u32_u24 v1, 0x2d5, v1\ns_add_u32 s{sE}, s{sE}, 1\nv_add_u32 v1, s{sE}, v1\nv_and_b32 v1, s{sMASK}, v1')
    def red8(R, dst):
        a(f'v_pk_add_f32 {vr(R,2)}, {vr(R,2)}, {vr(R+4,2)}\nv_pk_add_f32 {vr(R+2,2)}, {vr(R+2,2)}, {vr(R+6,2)}')
        red4(R, dst)
    def red4(R, dst):
        a(f'v_permlane32_swap_b32 v{R}, v{R+2}\nv_permlane32_swap_b32 v{R+1}, v{R+3}')
        a(f'v_pk_add_f32 {vr(R,2)}, {vr(R,2)}, {vr(R+2,2)}')
        a(f'v_permlane16_swap_b32 v{R}, v{R+1}\nv_add_f32 v{dst}, v{R}, v{R+1}')
    def dump_ts(nstamps):
        if not ts: return
        a('s_waitcnt lgkmcnt(0)')
        a(f's_lshl_b32 s{sOFF}, s2, 3\ns_add_u32 s{sOFF}, s{sOFF}, s3\ns_lshl_b32 s{sOFF}, s{sOFF}, 6\ns_add_u32 s{sOFF}, s{sOFF}, {WS_TS}')
        a('s_mov_b64 exec, 1\nv_mov_b32 v2, 0')
        for k in range(nstamps):
            a(f'v_mov_b32 v3, s{TS0+2*k}\nbuffer_store_dword v3, v2, {sr(rWS,4)}, s{sOFF} offen offset:{4*k}')

    a.lab(f'{NAME}_kernel')
    if ts:
        a(f's_memrealtime {sr(TS0,2)}')
    a('s_cmp_ge_u32 s2, 256\ns_cbranch_scc1 L_end')
    a('s_load_dwordx16 s[8:23], s[0:1], 0\ns_load_dwordx8 s[24:31], s[0:1], 64\ns_load_dwordx2 s[32:33], s[0:1], 104')
    a(f'v_lshrrev_b32 v1, 6, v0\nv_and_b32 v0, 63, v0\ns_and_b32 s{sG}, s2, 7\nv_readfirstlane_b32 s3, v1')
    a(f's_lshr_b32 s{sR}, s2, 3\ns_and_b32 s{sB}, s{sR}, 3\ns_lshr_b32 s{sS}, s{sR}, 2')
    a(f's_mov_b32 s34, 0x10000000\ns_mov_b32 s35, 0x20000\ns_movk_i32 s{sMASK}, {TAGMASK}')
    if ts:
        for k in range(1, 16): a(f's_mov_b32 s{TS0+2*k}, 0')
    a(f'v_lshlrev_b32 v6, 4, v0')
    a(f'v_mov_b32 v13, {L_FL}')
    a('s_cmp_ge_u32 s3, 4\ns_cbranch_scc1 L_T')

    VR, KF, PV_, QF, DD, ACC, ACL, ONE = 32, 96, 160, 192, 208, 224, 232, 236
    a(f's_lshl_b32 s{sB1}, s{sB}, 24\ns_lshl_b32 s{sT0}, s{sG}, 21\ns_or_b32 s{sB1}, s{sB1}, s{sT0}')
    a(f's_lshl_b32 s{sT0}, s{sS}, 16\ns_or_b32 s{sB1}, s{sB1}, s{sT0}\ns_lshl_b32 s{sT1}, s3, 14\ns_or_b32 s{sB1}, s{sB1}, s{sT1}')
    a(f's_and_b32 s{sT0}, s{sR}, 7\ns_lshl_b32 s{sT0}, s{sT0}, 10\ns_or_b32 s{sB1}, s{sB1}, s{sT0}\ns_or_b32 s{sB1}, s{sB1}, 0x180000')
    a(f's_mov_b32 m0, s{sT1}')
    a('v_lshrrev_b32 v7, 4, v0\nv_lshlrev_b32 v8, 6, v7\nv_xor_b32 v2, v6, v8')
    a('v_xor_b32 v3, 16, v2\nv_xor_b32 v4, 32, v2\nv_xor_b32 v5, 48, v2')
    a('s_waitcnt lgkmcnt(0)')
    stamp(1)
    a(f's_load_dword s{sE}, s[32:33], 0')
    srd(rA, pK, 0x4000000); srd(rB, pV, 0x4000000)
    def setup_A():
        a(f'v_and_b32 v16, 15, v0\nv_and_b32 v17, 3, v0\nv_lshrrev_b32 v18, 2, v16\nv_lshl_add_u32 v18, v17, 2, v18')
        a(f'v_xor_b32 v16, v7, v16\nv_lshlrev_b32 v16, 4, v16\nv_lshl_add_u32 v16, v18, 8, v16\nv_add_u32 v8, s{sT1}, v16')
        a('v_xor_b32 v9, 64, v8\nv_xor_b32 v10, 0x80, v8\nv_xor_b32 v11, 0xc0, v8')
        a(f'v_mul_u32_u24 v12, 320, v17\nv_lshl_add_u32 v12, v7, 4, v12\nv_add_u32 v12, {L_Q}, v12')
        a(f'v_lshl_add_u32 v14, v17, 2, v13')
        for i in range(32): a(f'v_mov_b32 v{PV_+i}, 0')
        for i in range(4): a(f'v_mov_b32 v{ONE+i}, 0x3f803f80')
        a(f's_mov_b32 s{sLO}, 0x05040100\ns_mov_b32 s{sHI}, 0x07060302')
        a('v_mov_b32 v15, 1')
        a('s_waitcnt lgkmcnt(0)')
        mktag()
        a('s_barrier')
    for n in range(32):
        i = n & 15
        if n >= NT: a(f's_waitcnt vmcnt({NT-1})')
        if n == tflag: a(f's_mov_b64 exec, 1\nds_add_u32 v13, v15 offset:{F_T}\ns_mov_b64 exec, -1')
        if i: a(f's_xor_b32 s{sOFF}, s{sB1}, {i << 10}')
        so = sOFF if i else sB1
        if n < 16:
            a(f'buffer_load_dwordx4 v{2 + (i & 3)}, {sr(rA,4)}, s{so} offen {kvfl} lds')
            if n < 15: a('s_add_u32 m0, m0, 0x400')
        else:
            a(f'buffer_load_dwordx4 {vr(VR + 4*i, 4)}, v6, {sr(rB,4)}, s{so} offen {kvfl}')
        if n == min(NT, 32) - 1: setup_A()
    if tflag >= 32: a(f's_mov_b64 exec, 1\nds_add_u32 v13, v15 offset:{F_T}\ns_mov_b64 exec, -1')
    stamp(2)
    a('s_waitcnt vmcnt(16)')
    for t in range(4):
        for j in range(4):
            a(f'ds_read_b128 {vr(KF + 16*t + 4*j, 4)}, v{8+j} offset:{4096*t}')
    spin(16, 13, F_Q, 2)
    stamp(3)
    for j in range(4): a(f'ds_read_b128 {vr(QF + 4*j, 4)}, v12 offset:{64*j}')
    for j in range(4):
        a(f's_waitcnt lgkmcnt({3-j})')
        for t in range(4):
            c = '0' if j == 0 else vr(DD + 4*t, 4)
            a(f'v_mfma_f32_16x16x32_bf16 {vr(DD + 4*t, 4)}, {vr(KF + 16*t + 4*j, 4)}, {vr(QF + 4*j, 4)}, {c}')
    for t in range(1, 4):
        for r in range(4):
            a(f'v_mov_b32_dpp v{DD+r}, v{DD+4*t+r} quad_perm:[0,1,2,3] row_mask:0xf bank_mask:{1<<t:#x}')
    a(f'v_max3_f32 v16, v{DD}, v{DD+1}, v{DD+2}\nv_max_f32 v16, v16, v{DD+3}')
    a('v_max_f32_dpp v16, v16, v16 row_ror:4 row_mask:0xf bank_mask:0xf')
    a('v_max_f32_dpp v16, v16, v16 row_ror:8 row_mask:0xf bank_mask:0xf')
    a(f's_mov_b32 exec_lo, 0x000f000f\ns_mov_b32 exec_hi, 0x000f000f\nds_max_f32 v14, v16 offset:{F_MX}')
    a(f's_mov_b64 exec, 1\nds_add_u32 v13, v15 offset:{F_M}\ns_mov_b64 exec, -1')
    SC = math.log2(math.e) / math.sqrt(128.0)
    a(f's_mov_b32 s{sT2}, {f32(SC)}')
    spin(16, 13, F_M, 4, extra=f'ds_read_b32 v17, v14 offset:{F_MX}')
    a(f'v_mul_f32 v17, s{sT2}, v17')
    for r in range(4): a(f'v_fma_f32 v{DD+r}, v{DD+r}, s{sT2}, -v17')
    for r in range(4): a(f'v_exp_f32 v{DD+r}, v{DD+r}')
    a(f'v_cvt_pk_bf16_f32 v18, v{DD}, v{DD+1}\nv_cvt_pk_bf16_f32 v19, v{DD+2}, v{DD+3}')
    for blk in range(2):
        for u in range(4):
            for d in range(4):
                t = 2*blk + (d >> 1)
                rot = (4 * (u - t)) & 15
                ctl = f'row_ror:{rot}' if rot else 'quad_perm:[0,1,2,3]'
                a(f'v_mov_b32_dpp v{PV_ + 16*blk + 4*u + d}, v{18 + (d & 1)} {ctl} row_mask:0xf bank_mask:{1<<u:#x}')
    a(f'v_mfma_f32_16x16x32_bf16 {vr(ACL,4)}, {vr(ONE,4)}, {vr(PV_,4)}, 0')
    a(f'v_mfma_f32_16x16x32_bf16 {vr(ACL,4)}, {vr(ONE,4)}, {vr(PV_+16,4)}, {vr(ACL,4)}')
    stamp(4)
    for blk in range(2):
        for p in range(4):
            if blk == 0 and p == 0: a('s_waitcnt vmcnt(8)')
            if blk == 1: a(f's_waitcnt vmcnt({6 - 2*p})')
            if blk == 1 and p == 3: stamp(5)
            r0 = VR + 32*blk + 8*p
            for c in range(4):
                a(f'v_perm_b32 v{KF + 32*blk + 8*c + p}, v{r0+4+c}, v{r0+c}, s{sLO}')
                a(f'v_perm_b32 v{KF + 32*blk + 8*c + 4 + p}, v{r0+4+c}, v{r0+c}, s{sHI}')
        for j in range(8):
            x, u = j >> 2, j & 3
            c = '0' if (blk == 0 and u == 0) else vr(ACC + 4*x, 4)
            a(f'v_mfma_f32_16x16x32_bf16 {vr(ACC + 4*x, 4)}, {vr(KF + 32*blk + 4*j, 4)}, {vr(PV_ + 16*blk + 4*u, 4)}, {c}')
        if blk == 0:
            a(f's_lshl_b32 s{sT0}, s3, 11\ns_add_u32 s{sT0}, s{sT0}, {L_ORED}\nv_add_u32 v20, s{sT0}, v6')
            a(f's_lshl_b32 s{sT0}, s3, 2\ns_add_u32 s{sT0}, s{sT0}, {L_LS}\nv_add_u32 v21, s{sT0}, v6')
            a(f's_lshl_b32 s{sT0}, s3, 10\ns_add_u32 s{sT0}, s{sT0}, {L_ORED}\nv_add_u32 v22, s{sT0}, v6')
            a(f's_mov_b64 exec, 15\nds_write_b32 v21, v{ACL}\ns_mov_b64 exec, -1')
            a(f's_lshl_b32 s{sT0}, s{sG}, 2\ns_add_u32 s{sT0}, s{sT0}, s{sB}\ns_lshl_b32 s{sT0}, s{sT0}, 3\ns_add_u32 s{sT0}, s{sT0}, s{sS}')
            a(f's_mul_i32 s{sB1}, s{sT0}, {OPS}\ns_lshl_b32 s{sT0}, s3, 10\ns_add_u32 s{sB1}, s{sB1}, s{sT0}\ns_add_u32 s{sB1}, s{sB1}, {WS_OP}\ns_add_u32 s{sB2}, s{sB1}, {WS_B}')
    a(f'ds_write_b128 v20, {vr(ACC,4)}\nds_write_b128 v20, {vr(ACC+4,4)} offset:1024')
    a(f's_mov_b64 exec, 1\nds_add_u32 v13, v15 offset:{F_O}\ns_mov_b64 exec, -1')
    a('s_cmp_eq_u32 s3, 3\ns_cbranch_scc1 L_A_done')
    spin(16, 13, F_O, 4)
    a('s_cmp_eq_u32 s3, 2\ns_cbranch_scc1 L_A_stats')
    for w in range(4): a(f'ds_read_b128 {vr(32 + 4*w, 4)}, v22 offset:{2048*w}')
    a('s_waitcnt lgkmcnt(2)\nv_pk_add_f32 v[32:33], v[32:33], v[36:37]\nv_pk_add_f32 v[34:35], v[34:35], v[38:39]')
    a('s_waitcnt lgkmcnt(0)\nv_pk_add_f32 v[40:41], v[40:41], v[44:45]\nv_pk_add_f32 v[42:43], v[42:43], v[46:47]')
    a('v_pk_add_f32 v[32:33], v[32:33], v[40:41]\nv_pk_add_f32 v[34:35], v[34:35], v[42:43]')
    tagit(32)
    a(f'buffer_store_dwordx4 v[32:35], v6, {sr(rWS,4)}, s{sB1} offen\nbuffer_store_dwordx4 v[32:35], v6, {sr(rWS,4)}, s{sB2} offen sc1')
    a('s_branch L_A_done')
    a.lab('L_A_stats')
    a(f'v_add_u32 v21, {L_LS}, v6\ns_mov_b64 exec, 15\nds_read_b128 v[36:39], v21\nv_mov_b32 v32, v1\nv_mov_b32 v33, v17\nv_mov_b32 v35, 0')
    a('s_waitcnt lgkmcnt(0)\nv_add_f32 v36, v36, v37\nv_add_f32 v38, v38, v39\nv_add_f32 v34, v36, v38')
    a(f'buffer_store_dwordx4 v[32:35], v6, {sr(rWS,4)}, s{sB1} offen\nbuffer_store_dwordx4 v[32:35], v6, {sr(rWS,4)}, s{sB2} offen sc1')
    a('s_mov_b64 exec, -1')
    a.lab('L_A_done')
    stamp(6)
    a(f's_cmp_lt_u32 s{sR}, 16\ns_cbranch_scc0 L_A_notO\ns_barrier\ns_branch L_fin')
    a.lab('L_A_notO')
    a(f's_cmp_eq_u32 s{sG}, 7\ns_cbranch_scc1 L_fin')
    a(f's_cmp_lt_u32 s{sG}, 4\ns_cselect_b32 s{sT0}, s3, 0\ns_cmp_eq_u32 s{sT0}, 3\ns_cbranch_scc1 L_final')
    a('s_barrier\ns_barrier\ns_branch L_fin')
    a.lab('L_final')
    a(f's_lshl_b32 s{sT1}, s{sG}, 2\ns_add_u32 s{sT1}, s{sT1}, s{sS}\ns_sub_u32 s{sT1}, s{sT1}, 4')
    a(f's_lshr_b32 s{sT2}, s{sT1}, 1\ns_and_b32 s{sT3}, s{sT1}, 1')
    a(f's_lshl_b32 s{sB1}, s{sT2}, 14\ns_lshl_b32 s{sT0}, s{sB}, 11\ns_add_u32 s{sB1}, s{sB1}, s{sT0}\ns_lshl_b32 s{sT0}, s{sT3}, 7\ns_add_u32 s{sB1}, s{sB1}, s{sT0}')
    a(f's_add_u32 s{sB1}, s{sB1}, {WS_MOD + 8*16384 + 8192}')
    a('v_lshrrev_b32 v16, 3, v0\nv_and_b32 v17, 7, v0\nv_lshlrev_b32 v18, 4, v17\nv_lshl_add_u32 v18, v16, 8, v18')
    poll(lambda: a(f'buffer_load_dwordx4 v[32:35], v18, {sr(rWS,4)}, s{sB1} offen sc1'), [32], 19)
    red4(32, 20)
    a('v_add_f32_dpp v20, v20, v20 row_ror:8 row_mask:0xf bank_mask:0xf')
    a(f's_lshl_b32 s{sT0}, s{sT2}, 6\ns_lshl_b32 s{sT3}, s{sT3}, 2\ns_add_u32 s{sT0}, s{sT0}, s{sT3}')
    a(f'v_lshl_add_u32 v21, v17, 3, v7\nv_add_u32 v21, s{sT0}, v21')
    a(f'v_lshlrev_b32 v22, 2, v21\nv_lshlrev_b32 v21, 1, v21')
    a(f's_lshl_b32 s{sB1}, s{sB}, 4\ns_add_u32 s{sB1}, s{sB1}, s{sT1}\ns_lshl_b32 s{sB1}, s{sB1}, 12\ns_add_u32 s{sB1}, s{sB1}, {WS_FP}')
    srd(rA, pOUT, 4096)
    a(f's_lshl_b32 s{sB2}, s{sB}, 10')
    for i in range(4): a(f'v_mov_b32 v{44+i}, 0')
    a('s_barrier')
    a(f'ds_read_b32 v23, v22 offset:{L_X1 - 65536}' if False else f'v_add_u32 v22, {L_X1}, v22\nds_read_b32 v23, v22')
    a('s_barrier')
    stamp(7)
    if fsleep: a(f's_sleep {fsleep}')
    def fl():
        for j in range(3): a(f'buffer_load_dwordx4 {vr(32+4*j,4)}, v6, {sr(rWS,4)}, s{sB1} offen offset:{1024*j} sc1')
        a(f's_mov_b32 exec_hi, 0\nbuffer_load_dwordx4 v[44:47], v6, {sr(rWS,4)}, s{sB1} offen offset:3072 sc1')
    def fchk():
        a('v_xor_b32 v44, v44, v1\ns_mov_b32 exec_hi, -1')
        for j in range(3): a(f'v_xor_b32 v{32+4*j}, v{32+4*j}, v1')
    poll(fl, [32, 36, 40, 44], 19, pre_check=fchk)
    stamp(8)
    a('v_pk_add_f32 v[32:33], v[32:33], v[40:41]\nv_pk_add_f32 v[34:35], v[34:35], v[42:43]')
    a('v_pk_add_f32 v[36:37], v[36:37], v[44:45]\nv_pk_add_f32 v[38:39], v[38:39], v[46:47]')
    red8(32, 24)
    a('v_add_f32_dpp v24, v24, v24 row_ror:8 row_mask:0xf bank_mask:0xf')
    a('s_waitcnt lgkmcnt(0)\nv_fma_f32 v24, v24, v20, v23\nv_cvt_pk_bf16_f32 v24, v24, v24')
    a('s_mov_b32 exec_lo, 0x00ff00ff\ns_mov_b32 exec_hi, 0x00ff00ff')
    a(f'buffer_store_short v24, v21, {sr(rA,4)}, s{sB2} offen')
    a(f's_cmp_eq_u32 s2, 128\ns_cbranch_scc0 L_fin')
    a(f's_mov_b64 exec, 1\nv_mov_b32 v24, s{sE}\nbuffer_store_dword v24, v6, {sr(rWS,4)}, 0 offen')
    a('s_branch L_fin')

    W0, AR, AC = 64, 32, 24
    a.lab('L_T')
    if prio: a(f's_setprio {prio}')
    a(f's_sub_u32 s{sTW}, s3, 4')
    a(f's_cmp_eq_u32 s{sTW}, 3\ns_cselect_b32 s{sT0}, s{sR}, 99\ns_cmp_lt_u32 s{sT0}, 2\ns_cbranch_scc0 L_nopf')
    a(f's_getpc_b64 {sr(sX,2)}')
    a.lab('L_pc')
    a(f's_sub_u32 s{sX}, s{sX}, L_pc-{NAME}_kernel\ns_subb_u32 s{sX+1}, s{sX+1}, 0')
    a(f's_lshl_b32 s{sT0}, s{sR}, 13\nv_lshl_add_u32 v2, v0, 7, s{sT0}\nv_min_u32 v2, L_codeend-{NAME}_kernel-4, v2')
    a(f'global_load_dword v255, v2, {sr(sX,2)}')
    a.lab('L_nopf')
    a('v_lshrrev_b32 v7, 4, v0\nv_and_b32 v8, 15, v0\nv_and_b32 v9, 7, v0\nv_bfe_u32 v10, v0, 3, 1')
    a(f's_mul_i32 s{sT3}, s{sTW}, {IMG}\ns_add_u32 s{sT3}, s{sT3}, {L_IMG}')
    a(f's_cmp_eq_u32 s{sTW}, 1\ns_cbranch_scc1 L_T1_issue\ns_cmp_gt_u32 s{sTW}, 1\ns_cbranch_scc1 L_T23_issue')
    a(f's_lshr_b32 s{sT0}, s{sR}, 3\ns_and_b32 s{sT1}, s{sR}, 7')
    a(f's_movk_i32 s{sT2}, 1024\ns_cmp_eq_u32 s{sT0}, 1\ns_cselect_b32 s{sT2}, 3072, s{sT2}')
    a(f'v_mul_u32_u24 v2, 6144, v7\nv_lshl_add_u32 v2, v9, 4, v2\nv_mad_u32_u24 v2, v10, s{sT2}, v2')
    a(f's_cselect_b32 s{sB1}, 2048, 0\ns_cmp_eq_u32 s{sT0}, 2\ns_cselect_b32 s{sB1}, 3072, s{sB1}')
    a(f's_lshl_b32 s{sT1}, s{sT1}, 7\ns_add_u32 s{sB1}, s{sB1}, s{sT1}\ns_mul_i32 s{sT1}, s{sG}, {64*6144}\ns_add_u32 s{sB1}, s{sB1}, s{sT1}')
    a(f'v_lshlrev_b32 v3, 10, v7\nv_lshl_add_u32 v3, v9, 4, v3\nv_lshl_add_u32 v3, v10, 3, v3\ns_lshl_b32 s{sB2}, s{sG}, 7')
    a('s_waitcnt lgkmcnt(0)')
    stamp(1)
    a(f's_load_dword s{sE}, s[32:33], 0')
    a(f's_cmp_ge_u32 s{sR}, 24\ns_cbranch_scc1 L_T_setup')
    srd(rA, pWM, 512*6144); srd(rB, pC, 4096)
    a(f'buffer_load_dwordx2 v[4:5], v3, {sr(rB,4)}, s{sB2} offen')
    for i in range(16):
        a(f'buffer_load_dwordx4 {vr(W0+4*i,4)}, v2, {sr(rA,4)}, s{sB1} offen {hfl}')
        if i < 15: a(f's_add_u32 s{sB1}, s{sB1}, {4*6144}')
    a('s_branch L_T_setup')
    a.lab('L_T1_issue')
    a(f's_and_b32 s{sT0}, s{sR}, 7\ns_lshr_b32 s{sT1}, s{sR}, 3')
    a(f's_lshl_b32 s{sB1}, s{sT0}, 19\ns_lshl_b32 s{sT2}, s{sG}, 10\ns_add_u32 s{sB1}, s{sB1}, s{sT2}\ns_lshl_b32 s{sT2}, s{sT1}, 8\ns_add_u32 s{sB1}, s{sB1}, s{sT2}')
    a('v_lshlrev_b32 v2, 13, v7\nv_lshl_add_u32 v2, v8, 4, v2')
    a(f'v_lshlrev_b32 v3, 10, v7\nv_lshl_add_u32 v11, v8, 4, v3\nv_lshl_add_u32 v3, v9, 4, v3\nv_lshl_add_u32 v3, v10, 3, v3\ns_lshl_b32 s{sB2}, s{sT0}, 7')
    a('s_waitcnt lgkmcnt(0)')
    stamp(1)
    a(f's_load_dword s{sE}, s[32:33], 0')
    srd(rA, pWQ, 512*8192); srd(rB, pX, 4096)
    a(f'buffer_load_dwordx2 v[4:5], v3, {sr(rB,4)}, s{sB2} offen')
    for j in range(4): a(f'buffer_load_dwordx4 {vr(AR+4*j,4)}, v11, {sr(rB,4)}, 0 offen offset:{256*j}')
    for i in range(16):
        a(f'buffer_load_dwordx4 {vr(W0+4*i,4)}, v2, {sr(rA,4)}, s{sB1} offen {hfl}')
        if i < 15: a(f's_add_u32 s{sB1}, s{sB1}, {4*8192}')
    a('s_branch L_T_setup')
    a.lab('L_T23_issue')
    a(f'v_mov_b32 v16, 0\nv_mov_b32 v17, 0\nv_mov_b32 v18, 0\nv_mov_b32 v19, 0\nv_mov_b32 v20, 0xff800000\nv_mov_b32 v21, 0xff800000\nv_mov_b32 v22, 0xff800000\nv_mov_b32 v23, 0xff800000')
    a(f'ds_write_b128 v13, v[16:19]\nds_write_b128 v13, v[20:23] offset:16\nds_write_b128 v13, v[16:19] offset:32')
    a(f's_lshl_b32 s{sT0}, s{sG}, 2\ns_add_u32 s{sT0}, s{sT0}, s{sB}\ns_lshl_b32 s{sT0}, s{sT0}, 3\ns_add_u32 s{sT0}, s{sT0}, s{sS}')
    a(f's_mul_i32 s{sB1}, s{sT0}, {OPS}\ns_add_u32 s{sB1}, s{sB1}, {WS_OP}')
    a('v_min_u32 v2, 16, v0\nv_lshlrev_b32 v2, 7, v2')
    a(f's_cmp_eq_u32 s{sTW}, 2\ns_cbranch_scc1 L_T23_go')
    a(f's_lshl_b32 s{sB1}, s{sG}, 16\ns_lshr_b32 s{sT0}, s{sR}, 3\ns_lshl_b32 s{sT0}, s{sT0}, 12\ns_add_u32 s{sB1}, s{sB1}, s{sT0}')
    a(f's_and_b32 s{sT0}, s{sR}, 7\ns_lshl_b32 s{sT0}, s{sT0}, 9\ns_add_u32 s{sB1}, s{sB1}, s{sT0}\ns_add_u32 s{sB1}, s{sB1}, {WS_QP}')
    a('v_and_b32 v2, 3, v0\nv_lshlrev_b32 v2, 7, v2\nv_lshl_add_u32 v2, v7, 14, v2')
    a.lab('L_T23_go')
    a('s_waitcnt lgkmcnt(0)')
    stamp(1)
    a(f's_load_dword s{sE}, s[32:33], 0')
    a(f'buffer_load_dword v254, v2, {sr(rWS,4)}, s{sB1} offen')
    a.lab('L_T_setup')
    a(f'v_mov_b32 v16, 0\nv_mov_b32 v17, 0\nv_mov_b32 v18, 0\nv_mov_b32 v19, 0\nv_add_u32 v20, s{sT3}, v6')
    for k in range(4): a(f'ds_write_b128 v20, v[16:19] offset:{1024*k}')
    a(f's_mov_b32 exec_hi, 0\nds_write_b128 v20, v[16:19] offset:4096\ns_mov_b32 exec_hi, -1')
    a(f'v_bfe_u32 v16, v0, 2, 1\nv_lshlrev_b32 v16, 7, v16\nv_lshl_add_u32 v16, v7, 5, v16\nv_lshl_add_u32 v16, v10, 4, v16\nv_add_u32 v12, s{sT3}, v16')
    a('v_and_b32 v14, 3, v0\nv_mul_u32_u24 v14, 0x5555, v14\nv_mov_b32 v15, 1')
    a('s_waitcnt lgkmcnt(0)')
    mktag()
    a('s_barrier')
    a(f's_cmp_gt_u32 s{sTW}, 1\ns_cbranch_scc1 L_T_rest')
    a(f'v_lshrrev_b32 v16, 5, v0\nv_mul_u32_u24 v16, {PASS}, v16\nv_mul_u32_u24 v17, {SIG}, v9\nv_add3_u32 v16, v16, v17, s{sT3}')
    a('v_and_b32 v17, 1, v7\nv_lshlrev_b32 v17, 4, v17\nv_lshl_add_u32 v17, v10, 6, v17\nv_add_u32 v11, v16, v17')
    def imgw4(vaddr, V):
        a(f'ds_write2_b32 v{vaddr}, v{V}, v{V+1} offset0:0 offset1:2\nds_write2_b32 v{vaddr}, v{V+2}, v{V+3} offset0:8 offset1:10')
        a(f'ds_write2_b32 v{vaddr}, v{V}, v{V+1} offset0:33 offset1:35\nds_write2_b32 v{vaddr}, v{V+2}, v{V+3} offset0:41 offset1:43')
    def two_pass(vrd, vidx, A2, waitw=None):
        for p in range(2):
            for s in range(8): a(f'ds_read_b128 {vr(A2 + 32*p + 4*s, 4)}, v{vrd} offset:{p*PASS + s*SIG}')
        if waitw: a(waitw)
        for p in range(2):
            for s in range(8):
                k = 15 - (8*p + s)
                a(f's_waitcnt lgkmcnt({k})')
                a(f'v_smfmac_f32_16x16x64_bf16 {vr(AC+4*p,4)}, {vr(A2 + 32*p + 4*s, 4)}, {vr(W0 + 8*s, 8)}, v{vidx}')
    for i in range(8): a(f'v_mov_b32 v{AC+i}, 0')
    a(f's_cmp_eq_u32 s{sTW}, 1\ns_cbranch_scc1 L_T1_job')
    a(f's_cmp_ge_u32 s{sR}, 24\ns_cbranch_scc1 L_T_rest')
    a('v_lshrrev_b32 v16, 1, v7\nv_lshlrev_b32 v16, 11, v16\nv_lshl_add_u32 v16, v10, 13, v16\nv_and_b32 v17, 1, v7\nv_lshl_add_u32 v16, v17, 7, v16\nv_lshl_add_u32 v2, v9, 4, v16')
    a(f's_lshl_b32 s{sB1}, s{sR}, 14\ns_lshl_b32 s{sT0}, s{sG}, 8\ns_add_u32 s{sB1}, s{sB1}, s{sT0}\ns_add_u32 s{sB1}, s{sB1}, {WS_MOD}\ns_add_u32 s{sB2}, s{sB1}, 4096')
    a(f's_mov_b32 s{sT0}, {f32(-math.log2(math.e))}')
    a('s_waitcnt vmcnt(16)')
    a('v_lshlrev_b32 v16, 16, v4\nv_and_b32 v17, 0xffff0000, v4\nv_lshlrev_b32 v18, 16, v5\nv_and_b32 v19, 0xffff0000, v5')
    for r in range(4): a(f'v_mul_f32 v{20+r}, s{sT0}, v{16+r}')
    for r in range(4): a(f'v_exp_f32 v{20+r}, v{20+r}')
    for r in range(4): a(f'v_add_f32 v{20+r}, 1.0, v{20+r}')
    for r in range(4): a(f'v_rcp_f32 v{20+r}, v{20+r}')
    for r in range(4): a(f'v_mul_f32 v{16+r}, v{16+r}, v{20+r}')
    for r in range(4): a(f'v_cvt_pk_bf16_f32 v{16+r}, v{16+r}, 0')
    imgw4(11, 16)
    two_pass(12, 14, 128, waitw='s_waitcnt vmcnt(0)')
    stamp(2)
    tagit(AC); tagit(AC+4)
    a(f'buffer_store_dwordx4 {vr(AC,4)}, v2, {sr(rWS,4)}, s{sB1} offen sc1\nbuffer_store_dwordx4 {vr(AC+4,4)}, v2, {sr(rWS,4)}, s{sB2} offen sc1')
    a('s_branch L_T_rest')
    a.lab('L_T1_job')
    a('s_waitcnt vmcnt(16)')
    X = 128
    for i in range(16):
        a(f'v_lshlrev_b32 v{X+2*i}, 16, v{AR+i}\nv_and_b32 v{X+2*i+1}, 0xffff0000, v{AR+i}')
    a(f'v_pk_add_f32 v[16:17], {vr(X,2)}, {vr(X+2,2)}')
    for i in range(2, 16): a(f'v_pk_add_f32 v[16:17], v[16:17], {vr(X+2*i,2)}')
    a('v_add_f32 v16, v16, v17')
    def rowsum(v):
        for k in (1, 2, 4, 8): a(f'v_add_f32_dpp v{v}, v{v}, v{v} row_ror:{k} row_mask:0xf bank_mask:0xf')
    rowsum(16)
    a(f'v_mul_f32 v16, {f32(-1.0/512)}, v16\nv_mov_b32 v17, v16\nv_mov_b32 v18, 0\nv_mov_b32 v19, 0')
    for i in range(16):
        a(f'v_pk_add_f32 {vr(X+2*i,2)}, {vr(X+2*i,2)}, v[16:17]\nv_pk_fma_f32 v[18:19], {vr(X+2*i,2)}, {vr(X+2*i,2)}, v[18:19]')
    a('v_add_f32 v18, v18, v19')
    rowsum(18)
    a(f'v_mov_b32 v19, {f32(1e-5)}\nv_fmac_f32 v19, {f32(1.0/512)}, v18\nv_rsq_f32 v19, v19')
    a('v_lshlrev_b32 v20, 16, v4\nv_and_b32 v21, 0xffff0000, v4\nv_lshlrev_b32 v22, 16, v5\nv_and_b32 v23, 0xffff0000, v5')
    for r in range(4): a(f'v_add_f32 v{20+r}, v{20+r}, v16')
    for r in range(4): a(f'v_mul_f32 v{20+r}, v{20+r}, v19')
    a(f'v_lshlrev_b32 v3, 11, v7\nv_lshl_add_u32 v3, v8, 4, v3\ns_and_b32 s{sT0}, s{sR}, 7\ns_lshl_b32 s{sB1}, s{sT0}, 14\ns_add_u32 s{sB1}, s{sB1}, {WS_MOD}\ns_add_u32 s{sB2}, s{sB1}, 8192')
    a('v_lshrrev_b32 v16, 1, v7\nv_lshlrev_b32 v16, 14, v16\nv_lshl_add_u32 v16, v10, 8, v16\nv_and_b32 v17, 1, v7\nv_lshl_add_u32 v16, v17, 7, v16\nv_lshl_add_u32 v2, v9, 4, v16')
    stamp(2)
    def l1():
        for sg in range(2):
            for kp in range(8): a(f'buffer_load_dwordx4 {vr(X + 32*sg + 4*kp, 4)}, v3, {sr(rWS,4)}, s{sB2 if sg else sB1} offen offset:{256*kp} sc1')
    poll(l1, [X + 4*k for k in range(16)], 16)
    stamp(3)
    def tree(R, n):
        st = 4
        while n > 1:
            for k in range(0, n, 2):
                for h in (0, 2): a(f'v_pk_add_f32 {vr(R + st*k + h, 2)}, {vr(R + st*k + h, 2)}, {vr(R + st*(k+1) + h, 2)}')
            st *= 2; n //= 2
    tree(X, 8); tree(X + 32, 8)
    for r in range(4): a(f'v_add_f32 v{X+r}, v{X+r}, v{20+r}')
    for r in range(4): a(f'v_fmac_f32 v{X+r}, v{X+32+r}, v{20+r}')
    for r in range(4): a(f'v_cvt_pk_bf16_f32 v{16+r}, v{X+r}, 0')
    imgw4(11, 16)
    a(f's_lshl_b32 s{sB1}, s{sG}, 16\ns_lshr_b32 s{sT0}, s{sR}, 3\ns_lshl_b32 s{sT0}, s{sT0}, 12\ns_add_u32 s{sB1}, s{sB1}, s{sT0}')
    a(f's_and_b32 s{sT0}, s{sR}, 7\ns_lshl_b32 s{sT0}, s{sT0}, 9\ns_add_u32 s{sB1}, s{sB1}, s{sT0}\ns_add_u32 s{sB1}, s{sB1}, {WS_QP}')
    a(f's_add_u32 s{sB2}, s{sB1}, 32768\ns_add_u32 s{sT1}, s{sB1}, {WS_B}\ns_add_u32 s{sT2}, s{sB2}, {WS_B}')
    two_pass(12, 14, 128)
    tagit(AC); tagit(AC+4)
    a(f'buffer_store_dwordx4 {vr(AC,4)}, v2, {sr(rWS,4)}, s{sB1} offen\nbuffer_store_dwordx4 {vr(AC+4,4)}, v2, {sr(rWS,4)}, s{sB2} offen')
    a(f's_mov_b64 exec, 1\nds_add_u32 v13, v15 offset:{F_P}\ns_mov_b64 exec, -1')
    a(f'buffer_store_dwordx4 {vr(AC,4)}, v2, {sr(rWS,4)}, s{sT1} offen sc1\nbuffer_store_dwordx4 {vr(AC+4,4)}, v2, {sr(rWS,4)}, s{sT2} offen sc1')
    stamp(4)
    a.lab('L_T_rest')
    a(f's_cmp_lt_u32 s{sR}, 16\ns_cselect_b32 s{sROLE}, 0, 1\ns_cmp_eq_u32 s{sG}, 7\ns_cselect_b32 s{sT0}, 1, 0\ns_lshl_b32 s{sROLE}, s{sROLE}, s{sT0}')
    a(f's_cmp_eq_u32 s{sROLE}, 1\ns_cbranch_scc0 L_T_g')
    GA, SB, CB, XX = 16, 18, 20, 22
    srd(rB, pX, 4096)
    a(f'v_lshl_add_u32 v4, v9, 3, v7\nv_lshl_add_u32 v4, v10, 2, v4\nv_lshlrev_b32 v5, 1, v4')
    a(f's_lshl_b32 s{sT0}, s{sB}, 10\ns_lshl_b32 s{sT1}, s{sTW}, 8\ns_add_u32 s{sT0}, s{sT0}, s{sT1}')
    a(f'buffer_load_ushort v{XX}, v5, {sr(rB,4)}, s{sT0} offen\nbuffer_load_ushort v{XX+1}, v5, {sr(rB,4)}, s{sT0} offen offset:128')
    a(f's_lshl_b32 s{sB1}, s{sTW}, 15\ns_lshl_b32 s{sT0}, s{sB}, 11\ns_add_u32 s{sB1}, s{sB1}, s{sT0}\ns_add_u32 s{sB1}, s{sB1}, {WS_MOD}')
    srcs = [(8*16384, GA), (16*16384, SB), (16*16384 + 8192, CB)]
    def l2():
        for k, (o, _) in enumerate(srcs):
            for blk in range(2):
                a(f's_add_u32 s{sOFF}, s{sB1}, {o + blk*16384}')
                for j in range(2): a(f'buffer_load_dwordx4 {vr(W0 + 16*k + 8*blk + 4*j, 4)}, v6, {sr(rWS,4)}, s{sOFF} offen offset:{1024*j} sc1')
    poll(l2, [W0 + 4*k for k in range(12)], 3)
    for k, (_, d) in enumerate(srcs):
        for blk in range(2): red8(W0 + 16*k + 8*blk, d + blk)
    a(f'v_add_f32 v{CB}, 1.0, v{CB}\nv_add_f32 v{CB+1}, 1.0, v{CB+1}\nv_lshlrev_b32 v{XX}, 16, v{XX}\nv_lshlrev_b32 v{XX+1}, 16, v{XX+1}')
    stamp(5)
    a.lab('L_T_g')
    a(f's_cmp_lt_u32 s{sTW}, 2\ns_cbranch_scc1 L_T_tail')
    a(f's_lshl_b32 s{sB1}, s{sG}, 16\ns_lshl_b32 s{sT0}, s{sB}, 14\ns_add_u32 s{sB1}, s{sB1}, s{sT0}\ns_and_b32 s{sT1}, s{sTW}, 1\ns_lshl_b32 s{sT0}, s{sT1}, 13\ns_add_u32 s{sB1}, s{sB1}, s{sT0}\ns_add_u32 s{sB1}, s{sB1}, {WS_QP}')
    a('v_lshrrev_b32 v3, 5, v0\nv_and_b32 v2, 31, v0\nv_lshlrev_b32 v2, 4, v2\nv_lshl_add_u32 v2, v3, 12, v2')
    a(f's_mul_i32 s{sT1}, s{sT1}, 640\ns_add_u32 s{sT1}, s{sT1}, {L_Q}\nv_mul_u32_u24 v3, 320, v3\nv_and_b32 v11, 1, v7\nv_lshl_add_u32 v3, v11, 7, v3\nv_lshl_add_u32 v3, v9, 4, v3\nv_lshl_add_u32 v3, v10, 3, v3\nv_add_u32 v11, s{sT1}, v3')
    spin(3, 13, F_P, 1, sleep=1)
    stamp(2)
    def l3():
        for e in range(8): a(f'buffer_load_dwordx4 {vr(W0 + 4*e, 4)}, v2, {sr(rWS,4)}, s{sB1} offen offset:{512*e} sc1')
    poll(l3, [W0 + 4*k for k in range(8)], 3, fallback=sB1)
    stamp(3)
    tree(W0, 8)
    a(f'v_cvt_pk_bf16_f32 v{W0}, v{W0}, v{W0+1}\nv_cvt_pk_bf16_f32 v{W0+1}, v{W0+2}, v{W0+3}\nds_write_b64 v11, {vr(W0,2)}')
    a(f's_mov_b64 exec, 1\nds_add_u32 v13, v15 offset:{F_Q}\ns_mov_b64 exec, -1')
    stamp(4)
    a.lab('L_T_tail')
    a(f's_cmp_eq_u32 s{sROLE}, 2\ns_cbranch_scc1 L_fin')
    a(f's_mul_i32 s{sT3}, s{sTW}, {IMG}\ns_add_u32 s{sT3}, s{sT3}, {L_IMG}')
    a(f'v_and_b32 v2, 1, v0\nv_lshlrev_b32 v2, 4, v2\nv_lshl_add_u32 v2, v7, 5, v2\nv_lshl_add_u32 v2, v10, 7, v2\nv_add_u32 v11, s{sT3}, v2')
    a('v_bfe_u32 v5, v0, 1, 2\nv_mul_u32_u24 v5, 0x5555, v5')
    for i in range(8): a(f'v_mov_b32 v{AC+i}, 0')
    a(f's_cmp_eq_u32 s{sROLE}, 1\ns_cbranch_scc1 L_F')
    def tloads(seq):
        for n, (dst, va, rs, so, inc) in enumerate(seq):
            if n >= NTT: a(f's_waitcnt vmcnt({NTT-1})')
            a(f'buffer_load_dwordx4 {vr(dst,4)}, v{va}, {sr(rs,4)}, s{so} offen {wfl}')
            if inc: a(f's_add_u32 s{so}, s{so}, {inc & 0xffffffff:#x}')
    srd(rA, pWO, 4096*1024)
    a('v_lshlrev_b32 v2, 13, v7\nv_lshl_add_u32 v2, v10, 15, v2\nv_lshl_add_u32 v2, v9, 4, v2')
    a(f's_lshl_b32 s{sB1}, s{sG}, 19\ns_lshr_b32 s{sT0}, s{sR}, 1\ns_lshl_b32 s{sT0}, s{sT0}, 7\ns_add_u32 s{sB1}, s{sB1}, s{sT0}')
    a(f's_and_b32 s{sT0}, s{sTW}, 1\ns_lshl_b32 s{sT0}, s{sT0}, 16\ns_add_u32 s{sB1}, s{sB1}, s{sT0}\ns_lshr_b32 s{sT0}, s{sTW}, 1\ns_lshl_b32 s{sT0}, s{sT0}, 12\ns_add_u32 s{sB1}, s{sB1}, s{sT0}')
    a(f'v_lshrrev_b32 v16, 5, v0\nv_and_b32 v17, 31, v0\nv_mul_u32_u24 v3, {OPS}, v16\nv_lshl_add_u32 v3, v17, 4, v3\ns_lshl_b32 s{sT0}, s{sTW}, 9\nv_add_u32 v3, s{sT0}, v3')
    a(f'v_lshrrev_b32 v18, 2, v0\nv_mul_u32_u24 v4, {OPS}, v18\nv_and_b32 v19, 3, v0\nv_lshl_add_u32 v4, v19, 4, v4')
    a(f's_and_b32 s{sT0}, s{sR}, 1\ns_lshl_b32 s{sT1}, s{sG}, 1\ns_add_u32 s{sT0}, s{sT0}, s{sT1}\ns_mul_i32 s{sB2}, s{sT0}, {16*OPS}\ns_add_u32 s{sB2}, s{sB2}, {WS_OP}')
    a(f's_lshl_b32 s{sT0}, s{sTW}, 8\ns_add_u32 s{sT0}, s{sT0}, {L_WT}')
    a(f'v_and_b32 v20, 1, v18\nv_lshlrev_b32 v20, 5, v20\nv_lshl_add_u32 v20, v19, 6, v20\nv_lshl_add_u32 v20, v16, 4, v20\nv_bfe_u32 v21, v0, 3, 2\nv_lshl_add_u32 v20, v21, 2, v20\nv_add_u32 v20, s{sT0}, v20')
    a(f'v_lshlrev_b32 v21, 6, v19\nv_lshl_add_u32 v21, v16, 5, v21\nv_add_u32 v21, s{sT0}, v21')
    a(f'v_mul_u32_u24 v22, {PASS}, v16\nv_lshrrev_b32 v23, 1, v8\nv_mul_u32_u24 v23, {SIG}, v23\nv_add3_u32 v22, v22, v23, s{sT3}')
    a('v_and_b32 v23, 1, v0\nv_lshl_add_u32 v22, v23, 6, v22\nv_and_b32 v23, 1, v7\nv_lshl_add_u32 v22, v23, 4, v22')
    a(f'v_lshlrev_b32 v23, 3, v23\nv_lshl_add_u32 v23, v16, 7, v23\nv_lshl_add_u32 v23, v9, 4, v23\nv_lshl_add_u32 v23, v10, 2, v23\ns_lshl_b32 s{sT0}, s{sTW}, 9\ns_add_u32 s{sT0}, s{sT0}, {L_RED}\nv_add_u32 v23, s{sT0}, v23')
    spin(17, 13, F_T, 4, sleep=1)
    stamp(6)
    seq = []
    for i in range(16):
        cur = ((i & 3) * 128 + (i >> 2)) * 1024
        nxt = (((i+1) & 3) * 128 + ((i+1) >> 2)) * 1024
        seq.append((W0 + 4*i, 2, rA, sB1, nxt - cur if i < 15 else 0))
    tloads(seq)
    G = 128; ST = 160
    def l4():
        a(f'buffer_load_dwordx4 {vr(ST,4)}, v4, {sr(rWS,4)}, s{sB2} offen offset:2048 sc1')
        for bb in range(2):
            for jj in range(4):
                o = (bb*8 + 2*jj) * OPS
                if o: a(f's_add_u32 s{sOFF}, s{sB2}, {o}')
                a(f'buffer_load_dwordx4 {vr(G + 16*bb + 4*jj, 4)}, v3, {sr(rWS,4)}, s{sOFF if o else sB2} offen sc1')
    stamp(7)
    poll(l4, [ST] + [G + 4*k for k in range(8)], 17, fallback=sB2)
    stamp(8)
    a(f'v_max_f32_dpp v17, v{ST+1}, v{ST+1} row_ror:4 row_mask:0xf bank_mask:0xf')
    a('v_max_f32_dpp v17, v17, v17 row_ror:8 row_mask:0xf bank_mask:0xf')
    a('v_mov_b32 v18, v17\nv_permlane16_swap_b32 v17, v18\nv_max_f32 v17, v17, v18')
    a(f'v_sub_f32 v17, v{ST+1}, v17\nv_exp_f32 v17, v17\nv_mul_f32 v18, v17, v{ST+2}')
    a('v_add_f32_dpp v18, v18, v18 row_ror:4 row_mask:0xf bank_mask:0xf')
    a('v_add_f32_dpp v18, v18, v18 row_ror:8 row_mask:0xf bank_mask:0xf')
    a('v_mov_b32 v19, v18\nv_permlane16_swap_b32 v18, v19\nv_add_f32 v18, v18, v19\nv_rcp_f32 v18, v18\nv_mul_f32 v17, v17, v18')
    a(f'ds_write_b32 v20, v17\nds_read_b128 {vr(ST,4)}, v21\nds_read_b128 {vr(ST+4,4)}, v21 offset:16')
    for bb in range(2):
        a(f's_waitcnt lgkmcnt({1-bb})')
        for r in range(4): a(f'v_mul_f32 v{G+16*bb+r}, v{G+16*bb+r}, v{ST+4*bb}')
        for jj in range(1, 4):
            for r in range(4): a(f'v_fmac_f32 v{G+16*bb+r}, v{G+16*bb+4*jj+r}, v{ST+4*bb+jj}')
    for r in range(4): a(f'v_permlane32_swap_b32 v{G+r}, v{G+16+r}')
    for r in range(4): a(f'v_add_f32 v{G+r}, v{G+r}, v{G+16+r}')
    for r in range(4): a(f'v_cvt_pk_bf16_f32 v{G+r}, v{G+r}, 0')
    imgw4(22, G)
    two_pass(11, 5, 192)
    def parity(dst, D):
        a(f'v_add_f32_dpp v{dst}, v{D+1}, v{D} row_ror:8 row_mask:0xf bank_mask:0x3')
        a(f'v_add_f32_dpp v{dst}, v{D+2}, v{D+3} row_ror:8 row_mask:0xf bank_mask:0xc')
    parity(16, AC); parity(17, AC+4)
    a('ds_write2_b32 v23, v16, v17 offset0:0 offset1:64')
    a(f's_and_b32 s{sT0}, s{sR}, 1\ns_lshl_b32 s{sB1}, s{sT0}, 15\ns_lshr_b32 s{sT0}, s{sR}, 1\ns_lshl_b32 s{sT0}, s{sT0}, 11\ns_add_u32 s{sB1}, s{sB1}, s{sT0}\ns_lshl_b32 s{sT0}, s{sG}, 8\ns_add_u32 s{sB1}, s{sB1}, s{sT0}\ns_add_u32 s{sB1}, s{sB1}, {WS_YP}')
    a(f'v_lshlrev_b32 v2, 14, v7\nv_lshl_add_u32 v2, v8, 4, v2\nv_add_u32 v3, {L_RED}, v6')
    a('s_waitcnt lgkmcnt(0)\ns_barrier')
    stamp(9)
    a(f's_cmp_eq_u32 s{sTW}, 0\ns_cbranch_scc0 L_fin')
    a('s_mov_b32 exec_hi, 0')
    for w in range(4): a(f'ds_read_b128 {vr(32 + 4*w, 4)}, v3 offset:{512*w}')
    a('s_waitcnt lgkmcnt(2)\nv_pk_add_f32 v[32:33], v[32:33], v[36:37]\nv_pk_add_f32 v[34:35], v[34:35], v[38:39]')
    a('s_waitcnt lgkmcnt(0)\nv_pk_add_f32 v[40:41], v[40:41], v[44:45]\nv_pk_add_f32 v[42:43], v[42:43], v[46:47]')
    a('v_pk_add_f32 v[32:33], v[32:33], v[40:41]\nv_pk_add_f32 v[34:35], v[34:35], v[42:43]')
    tagit(32)
    a(f'buffer_store_dwordx4 v[32:35], v2, {sr(rWS,4)}, s{sB1} offen sc1')
    stamp(10)
    a('s_branch L_fin')
    a.lab('L_F')
    WGT, WUP, WDN = 64, 128, 192
    srd(rA, pWG, 512*3584); srd(rB, pWU, 512*3584); srd(rC, pWD, 1792*1024)
    a(f's_lshl_b32 s{sT1}, s{sG}, 2\ns_add_u32 s{sT1}, s{sT1}, s{sS}\ns_sub_u32 s{sT1}, s{sT1}, 4')
    a(f's_mul_i32 s{sB1}, s{sTW}, {128*3584}\ns_lshl_b32 s{sT0}, s{sT1}, 7\ns_add_u32 s{sB1}, s{sB1}, s{sT0}')
    a(f's_lshl_b32 s{sB2}, s{sT1}, 16\ns_lshl_b32 s{sT0}, s{sTW}, 8\ns_add_u32 s{sB2}, s{sB2}, s{sT0}')
    a('v_lshrrev_b32 v2, 3, v0\nv_mul_u32_u24 v2, 3584, v2\nv_lshl_add_u32 v2, v9, 4, v2')
    a('v_lshlrev_b32 v3, 10, v7\nv_lshl_add_u32 v3, v8, 4, v3')
    spin(32, 13, F_T, 4, sleep=1)
    stamp(6)
    seq = []
    for i in range(16):
        seq.append((WGT + 4*i, 2, rA, sB1, 0))
        seq.append((WUP + 4*i, 2, rB, sB1, 8*3584 if i < 15 else 0))
    for i in range(16): seq.append((WDN + 4*i, 3, rC, sB2, 4096 if i < 15 else 0))
    tloads(seq)
    a(f'v_lshrrev_b32 v2, 1, v9\nv_mul_u32_u24 v2, {SIG}, v2\nv_and_b32 v3, 1, v0\nv_lshl_add_u32 v2, v3, 6, v2\nv_lshl_add_u32 v2, v10, 5, v2')
    a(f'v_and_b32 v3, 1, v7\nv_lshl_add_u32 v2, v3, 4, v2\nv_lshrrev_b32 v3, 1, v7\nv_lshl_add_u32 v2, v3, 3, v2\nv_add_u32 v2, s{sT3}, v2\nv_add_u32 v3, {4*SIG}, v2')
    a(f's_lshl_b32 s{sT0}, s{sTW}, 9\ns_add_u32 s{sT2}, s{sT0}, {L_X1}\nv_lshl_add_u32 v4, v4, 2, s{sT2}')
    a(f's_lshl_b32 s{sB1}, s{sB}, 14\ns_lshl_b32 s{sT2}, s{sTW}, 12\ns_add_u32 s{sB1}, s{sB1}, s{sT2}\ns_add_u32 s{sB1}, s{sB1}, {WS_YP}')
    a(f's_lshl_b32 s{sB2}, s{sB}, 16\ns_lshl_b32 s{sT2}, s{sTW}, 14\ns_add_u32 s{sB2}, s{sB2}, s{sT2}\ns_lshl_b32 s{sT2}, s{sT1}, 7\ns_add_u32 s{sB2}, s{sB2}, s{sT2}\ns_add_u32 s{sB2}, s{sB2}, {WS_FP}')
    stamp(7)
    def l5():
        for k in range(4): a(f'buffer_load_dwordx4 {vr(AR + 4*k, 4)}, v6, {sr(rWS,4)}, s{sB1} offen offset:{1024*k} sc1')
    poll(l5, [AR + 4*k for k in range(4)], 48)
    stamp(8)
    red8(AR, 48); red8(AR + 8, 49)
    a(f'v_fmac_f32 v{XX}, v48, v{GA}\nv_fmac_f32 v{XX+1}, v49, v{GA+1}')
    a(f'ds_write2_b32 v4, v{XX}, v{XX+1} offset0:0 offset1:64')
    a(f'v_add_f32 v48, v{XX}, v{XX+1}\nv_mul_f32 v49, v{XX}, v{XX}\nv_fmac_f32 v49, v{XX+1}, v{XX+1}')
    for k in (1, 2, 4, 8):
        a(f'v_add_f32_dpp v48, v48, v48 row_ror:{k} row_mask:0xf bank_mask:0xf\nv_add_f32_dpp v49, v49, v49 row_ror:{k} row_mask:0xf bank_mask:0xf')
    a('v_add_f32_dpp v48, v48, v48 row_bcast:15 row_mask:0xa bank_mask:0xf\nv_add_f32_dpp v49, v49, v49 row_bcast:15 row_mask:0xa bank_mask:0xf')
    a('v_add_f32_dpp v48, v48, v48 row_bcast:31 row_mask:0xc bank_mask:0xf\nv_add_f32_dpp v49, v49, v49 row_bcast:31 row_mask:0xc bank_mask:0xf')
    a(f's_lshl_b32 s{sT0}, s{sTW}, 3\ns_add_u32 s{sT0}, s{sT0}, {L_ST}\nv_mov_b32 v50, s{sT0}\nv_mov_b32 v51, {L_ST}')
    a('s_mov_b32 exec_lo, 0\ns_mov_b32 exec_hi, 0x80000000\nds_write_b64 v50, v[48:49]\ns_mov_b64 exec, -1')
    a('s_waitcnt lgkmcnt(0)\ns_barrier')
    a('ds_read_b128 v[32:35], v51\nds_read_b128 v[36:39], v51 offset:16')
    a('s_waitcnt lgkmcnt(0)\nv_pk_add_f32 v[32:33], v[32:33], v[34:35]\nv_pk_add_f32 v[36:37], v[36:37], v[38:39]\nv_pk_add_f32 v[32:33], v[32:33], v[36:37]')
    a(f'v_mul_f32 v32, {f32(1.0/512)}, v32\nv_mul_f32 v33, {f32(1.0/512)}, v33\nv_fma_f32 v33, -v32, v32, v33\nv_max_f32 v33, 0, v33\nv_add_f32 v33, {f32(1e-5)}, v33\nv_rsq_f32 v33, v33')
    a(f'v_sub_f32 v34, v{XX}, v32\nv_sub_f32 v35, v{XX+1}, v32\nv_mul_f32 v34, v34, v33\nv_mul_f32 v35, v35, v33')
    a(f'v_fma_f32 v34, v34, v{CB}, v{SB}\nv_fma_f32 v35, v35, v{CB+1}, v{SB+1}\nv_cvt_pk_bf16_f32 v34, v34, 0\nv_cvt_pk_bf16_f32 v35, v35, 0')
    a('ds_write2_b32 v2, v34, v34 offset0:0 offset1:33\nds_write2_b32 v3, v35, v35 offset0:0 offset1:33')
    for s in range(8): a(f'ds_read_b128 {vr(AR + 4*s, 4)}, v11 offset:{s*SIG}')
    a(f's_lshl_b32 s{sT0}, s{sTW}, 9\ns_add_u32 s{sT0}, s{sT0}, {L_RED}\nv_lshl_add_u32 v16, v0, 3, s{sT0}\nv_lshlrev_b32 v17, 3, v0\nv_add_u32 v17, {L_RED}, v17')
    a(f'v_mul_u32_u24 v18, {SIG}, v9\nv_lshl_add_u32 v18, v7, 5, v18\nv_lshl_add_u32 v18, v10, 3, v18\nv_add_u32 v18, s{sT3}, v18')
    a('v_lshlrev_b32 v19, 13, v10\nv_lshl_add_u32 v19, v7, 12, v19\nv_lshl_add_u32 v19, v9, 4, v19')
    for s in range(8):
        a(f's_waitcnt lgkmcnt({7-s})')
        a(f'v_smfmac_f32_16x16x64_bf16 {vr(AC,4)}, {vr(AR+4*s,4)}, {vr(WGT+8*s,8)}, v5')
        a(f'v_smfmac_f32_16x16x64_bf16 {vr(AC+4,4)}, {vr(AR+4*s,4)}, {vr(WUP+8*s,8)}, v5')
    parity(20, AC); parity(21, AC+4)
    a('ds_write_b64 v16, v[20:21]')
    for i in range(4): a(f'v_mov_b32 v{AC+i}, 0')
    a(f's_mov_b32 s{sT0}, {f32(-math.log2(math.e))}')
    a('s_waitcnt lgkmcnt(0)\ns_barrier')
    stamp(9)
    for w in range(4): a(f'ds_read_b64 {vr(32 + 2*w, 2)}, v17 offset:{512*w}')
    a('s_waitcnt lgkmcnt(2)\nv_pk_add_f32 v[32:33], v[32:33], v[34:35]\ns_waitcnt lgkmcnt(0)\nv_pk_add_f32 v[36:37], v[36:37], v[38:39]\nv_pk_add_f32 v[32:33], v[32:33], v[36:37]')
    a(f'v_mul_f32 v32, s{sT0}, v32\nv_exp_f32 v32, v32\nv_add_f32 v32, 1.0, v32\nv_rcp_f32 v32, v32\nv_mul_f32 v32, v32, v33\nv_cvt_pk_bf16_f32 v20, v32, 0')
    a('ds_write2_b32 v18, v20, v20 offset0:0 offset1:33')
    for s in range(8): a(f'ds_read_b128 {vr(AR + 4*s, 4)}, v12 offset:{s*SIG}')
    for s in range(8):
        a(f's_waitcnt lgkmcnt({7-s})')
        a(f'v_smfmac_f32_16x16x64_bf16 {vr(AC,4)}, {vr(AR+4*s,4)}, {vr(WDN+8*s,8)}, v14')
    a('s_mov_b32 exec_hi, 0')
    tagit(AC)
    a(f'buffer_store_dwordx4 {vr(AC,4)}, v19, {sr(rWS,4)}, s{sB2} offen sc1')
    stamp(10)
    a.lab('L_fin')
    stamp(11)
    dump_ts(12)
    a.lab('L_end')
    a('s_endpgm')
    a.lab('L_codeend')

    body, added = hazard_pass(a.L)
    out = [HEADER + f'; @launch grid=(256,1,1) block=(512,1,1) lds={L_END}',
           '.amdgcn_target "amdgcn-amd-amdhsa--gfx950"', '.text', f'.globl {NAME}_kernel', '.p2align 8', f'.type {NAME}_kernel,@function']
    out += [l if l.endswith(':') else '    ' + l for l in body]
    out += ['.section .rodata,"a"', '.p2align 6', f'.amdhsa_kernel {NAME}_kernel',
            '  .amdhsa_next_free_vgpr 256', '  .amdhsa_next_free_sgpr 102', '  .amdhsa_accum_offset 256',
            '  .amdhsa_group_segment_fixed_size 0', '  .amdhsa_kernarg_size 112', '  .amdhsa_user_sgpr_count 2',
            '  .amdhsa_user_sgpr_kernarg_segment_ptr 1', '  .amdhsa_system_sgpr_workgroup_id_x 1',
            '  .amdhsa_float_denorm_mode_32 3', '.end_amdhsa_kernel']
    return '\n'.join(out) + '\n'

if __name__ == '__main__':
    kw = {}
    for arg in sys.argv[2:]:
        k, v = arg.split('=')
        try: v = eval(v)
        except Exception: pass
        kw[k] = v
    open(sys.argv[1], 'w').write(gen(**kw))
```

```python
import sys, struct, math
from asmlib import Asm, hazard_pass, vr, sr
NAME = 'adaLN_cond__sliding_block_cached__glu_gated_glu__decode'

HEADER = '''; Kernarg layout for this problem (112 bytes, ptrs only, base s[0:1]):
'''

def f32(x): return '0x%08x' % struct.unpack('<I', struct.pack('<f', x))[0]

WS_MOD = 0x10000
WS_QP  = 0x80000
WS_OP  = 0x100000
OPS    = 2176
WS_YP  = 0x200000
WS_FP  = 0x220000
WS_B   = 0x400000
WS_TS  = 0x8000000
SIG = 288; PASS = 8 * SIG; IMG = 2 * PASS
L_IMG = 65536
L_Q   = L_IMG + 4 * IMG
L_ORED = L_Q + 1536
L_LS  = L_ORED + 8192
L_WT  = L_LS + 64
L_RED = L_WT + 1024
L_ST  = L_RED + 2048
L_X1  = L_ST + 64
L_FL  = L_X1 + 2048
F_T, F_Q, F_P, F_M, F_O = 0, 4, 8, 12, 32
F_MX = 16
L_END = L_FL + 64
TAGMASK = 0xFFF
SPIN_LIM = 1 << 20
POLL_LIM = 1 << 18

sG, sR, sB, sS = 4, 5, 6, 7
pX, pK, pV, pWQ, pWO, pWG, pWU, pWD, pC, pWM, pOUT, pWS = 8, 10, 12, 14, 16, 20, 22, 24, 26, 28, 30, 32
rWS, rA, rB, rC = 32, 36, 40, 44
sE, sMASK, sOFF, sB1, sB2, sCNT, sTW, sROLE, sX, sLO, sHI, sT0, sT1, sT2, sT3 = 48, 49, 50, 51, 52, 53, 54, 55, 56, 58, 59, 60, 61, 62, 63
TS0 = 64

def gen(NT=8, NTT=8, kvfl='nt', wfl='nt', hfl='nt', ts=False, tflag=32, fb=96, fsleep=8, prio=0, leak=None):
    if leak: ts = True
    a = Asm()
    uid = [0]
    def U(p): uid[0] += 1; return f'{p}_{uid[0]}'
    def stamp(k):
        if ts: a(f's_memrealtime {sr(TS0 + 2*k, 2)}')
    def srd(r, p, size):
        a(f's_mov_b32 s{r}, s{p}\ns_mov_b32 s{r+1}, s{p+1}\ns_mov_b32 s{r+2}, {size}\ns_mov_b32 s{r+3}, 0x20000')
    def spin(vt, vaddr, off, n, sleep=0, extra=None):
        l, d = U('L_spin'), U('L_spun')
        a(f's_mov_b32 s{sCNT}, 0')
        a.lab(l)
        a(f'ds_read_b32 v{vt}, v{vaddr} offset:{off}')
        if extra: a(extra)
        a('s_waitcnt lgkmcnt(0)')
        a(f'v_readfirstlane_b32 s{sT0}, v{vt}')
        a(f's_cmp_ge_u32 s{sT0}, {n}\ns_cbranch_scc1 {d}')
        if sleep: a(f's_sleep {sleep}')
        a(f's_add_u32 s{sCNT}, s{sCNT}, 1\ns_cmp_lt_u32 s{sCNT}, {SPIN_LIM}\ns_cbranch_scc1 {l}\ns_endpgm')
        a.lab(d)
    def poll(loads, firsts, vacc, fallback=None, pre_check=None, mid=None):
        l, d = U('L_poll'), U('L_got')
        a(f's_mov_b32 s{sCNT}, 0')
        a.lab(l)
        loads()
        a('s_waitcnt vmcnt(0)')
        if pre_check: pre_check()
        else:
            for f in firsts: a(f'v_xor_b32 v{f}, v{f}, v1')
        fs = list(firsts)
        if len(fs) == 1: a(f'v_and_b32 v{vacc}, s{sMASK}, v{fs[0]}')
        else:
            if len(fs) % 2: a(f'v_or3_b32 v{vacc}, v{fs[0]}, v{fs[1]}, v{fs[2]}'); fs = fs[3:]
            else: a(f'v_or_b32 v{vacc}, v{fs[0]}, v{fs[1]}'); fs = fs[2:]
            while fs: a(f'v_or3_b32 v{vacc}, v{vacc}, v{fs[0]}, v{fs[1]}'); fs = fs[2:]
            a(f'v_and_b32 v{vacc}, s{sMASK}, v{vacc}')
        a(f'v_cmp_ne_u32 vcc, 0, v{vacc}\ns_cbranch_vccz {d}')
        a(f's_add_u32 s{sCNT}, s{sCNT}, 1')
        if fallback is not None:
            a(f's_cmp_eq_u32 s{sCNT}, {fb}\ns_cselect_b32 s{sT0}, {WS_B}, 0\ns_add_u32 s{fallback}, s{fallback}, s{sT0}')
        a(f's_cmp_lt_u32 s{sCNT}, {POLL_LIM}\ns_cbranch_scc1 {l}\ns_endpgm')
        a.lab(d)
    def tagit(v): a(f'v_bfi_b32 v{v}, s{sMASK}, v1, v{v}')
    def mktag():
        a(f'v_and_b32 v1, 3, v0\nv_mul_u32_u24 v1, 0x2d5, v1\ns_add_u32 s{sE}, s{sE}, 1\nv_add_u32 v1, s{sE}, v1\nv_and_b32 v1, s{sMASK}, v1')
    def red8(R, dst):
        a(f'v_pk_add_f32 {vr(R,2)}, {vr(R,2)}, {vr(R+4,2)}\nv_pk_add_f32 {vr(R+2,2)}, {vr(R+2,2)}, {vr(R+6,2)}')
        red4(R, dst)
    def red4(R, dst):
        a(f'v_permlane32_swap_b32 v{R}, v{R+2}\nv_permlane32_swap_b32 v{R+1}, v{R+3}')
        a(f'v_pk_add_f32 {vr(R,2)}, {vr(R,2)}, {vr(R+2,2)}')
        a(f'v_permlane16_swap_b32 v{R}, v{R+1}\nv_add_f32 v{dst}, v{R}, v{R+1}')
    def dump_ts(nstamps):
        if not ts: return
        a('s_waitcnt lgkmcnt(0)')
        a(f's_lshl_b32 s{sOFF}, s2, 3\ns_add_u32 s{sOFF}, s{sOFF}, s3\ns_lshl_b32 s{sOFF}, s{sOFF}, 6\ns_add_u32 s{sOFF}, s{sOFF}, {WS_TS}')
        a('s_mov_b64 exec, 1\nv_mov_b32 v2, 0')
        for k in range(nstamps):
            a(f'v_mov_b32 v3, s{TS0+2*k}\nbuffer_store_dword v3, v2, {sr(rWS,4)}, s{sOFF} offen offset:{4*k}')

    a.lab(f'{NAME}_kernel')
    if ts:
        a(f's_memrealtime {sr(TS0,2)}')
    a('s_cmp_ge_u32 s2, 256\ns_cbranch_scc1 L_end')
    a('s_load_dwordx16 s[8:23], s[0:1], 0\ns_load_dwordx8 s[24:31], s[0:1], 64\ns_load_dwordx2 s[32:33], s[0:1], 104')
    a(f'v_lshrrev_b32 v1, 6, v0\nv_and_b32 v0, 63, v0\ns_and_b32 s{sG}, s2, 7\nv_readfirstlane_b32 s3, v1')
    a(f's_lshr_b32 s{sR}, s2, 3\ns_and_b32 s{sB}, s{sR}, 3\ns_lshr_b32 s{sS}, s{sR}, 2')
    a(f's_mov_b32 s34, 0x10000000\ns_mov_b32 s35, 0x20000\ns_movk_i32 s{sMASK}, {TAGMASK}')
    if ts:
        for k in range(1, 16): a(f's_mov_b32 s{TS0+2*k}, 0')
    a(f'v_lshlrev_b32 v6, 4, v0')
    a(f'v_mov_b32 v13, {L_FL}')
    a('s_cmp_ge_u32 s3, 4\ns_cbranch_scc1 L_T')

    VR, KF, PV_, QF, DD, ACC, ACL, ONE = 32, 96, 160, 192, 208, 224, 232, 236
    a(f's_lshl_b32 s{sB1}, s{sB}, 24\ns_lshl_b32 s{sT0}, s{sG}, 21\ns_or_b32 s{sB1}, s{sB1}, s{sT0}')
    a(f's_lshl_b32 s{sT0}, s{sS}, 16\ns_or_b32 s{sB1}, s{sB1}, s{sT0}\ns_lshl_b32 s{sT1}, s3, 14\ns_or_b32 s{sB1}, s{sB1}, s{sT1}')
    a(f's_and_b32 s{sT0}, s{sR}, 7\ns_lshl_b32 s{sT0}, s{sT0}, 10\ns_or_b32 s{sB1}, s{sB1}, s{sT0}\ns_or_b32 s{sB1}, s{sB1}, 0x180000')
    a(f's_mov_b32 m0, s{sT1}')
    a('v_lshrrev_b32 v7, 4, v0\nv_lshlrev_b32 v8, 6, v7\nv_xor_b32 v2, v6, v8')
    a('v_xor_b32 v3, 16, v2\nv_xor_b32 v4, 32, v2\nv_xor_b32 v5, 48, v2')
    a('s_waitcnt lgkmcnt(0)')
    stamp(1)
    a(f's_load_dword s{sE}, s[32:33], 0')
    srd(rA, pK, 0x4000000); srd(rB, pV, 0x4000000)
    def setup_A():
        a(f'v_and_b32 v16, 15, v0\nv_and_b32 v17, 3, v0\nv_lshrrev_b32 v18, 2, v16\nv_lshl_add_u32 v18, v17, 2, v18')
        a(f'v_xor_b32 v16, v7, v16\nv_lshlrev_b32 v16, 4, v16\nv_lshl_add_u32 v16, v18, 8, v16\nv_add_u32 v8, s{sT1}, v16')
        a('v_xor_b32 v9, 64, v8\nv_xor_b32 v10, 0x80, v8\nv_xor_b32 v11, 0xc0, v8')
        a(f'v_mul_u32_u24 v12, 320, v17\nv_lshl_add_u32 v12, v7, 4, v12\nv_add_u32 v12, {L_Q}, v12')
        a(f'v_lshl_add_u32 v14, v17, 2, v13')
        for i in range(32): a(f'v_mov_b32 v{PV_+i}, 0')
        for i in range(4): a(f'v_mov_b32 v{ONE+i}, 0x3f803f80')
        a(f's_mov_b32 s{sLO}, 0x05040100\ns_mov_b32 s{sHI}, 0x07060302')
        a('v_mov_b32 v15, 1')
        a('s_waitcnt lgkmcnt(0)')
        mktag()
        a('s_barrier')
    for n in range(32):
        i = n & 15
        if n >= NT: a(f's_waitcnt vmcnt({NT-1})')
        if n == tflag: a(f's_mov_b64 exec, 1\nds_add_u32 v13, v15 offset:{F_T}\ns_mov_b64 exec, -1')
        if i: a(f's_xor_b32 s{sOFF}, s{sB1}, {i << 10}')
        so = sOFF if i else sB1
        if n < 16:
            a(f'buffer_load_dwordx4 v{2 + (i & 3)}, {sr(rA,4)}, s{so} offen {kvfl} lds')
            if n < 15: a('s_add_u32 m0, m0, 0x400')
        else:
            a(f'buffer_load_dwordx4 {vr(VR + 4*i, 4)}, v6, {sr(rB,4)}, s{so} offen {kvfl}')
        if n == min(NT, 32) - 1: setup_A()
    if tflag >= 32: a(f's_mov_b64 exec, 1\nds_add_u32 v13, v15 offset:{F_T}\ns_mov_b64 exec, -1')
    stamp(2)
    a('s_waitcnt vmcnt(16)')
    for t in range(4):
        for j in range(4):
            a(f'ds_read_b128 {vr(KF + 16*t + 4*j, 4)}, v{8+j} offset:{4096*t}')
    spin(16, 13, F_Q, 2)
    stamp(3)
    for j in range(4): a(f'ds_read_b128 {vr(QF + 4*j, 4)}, v12 offset:{64*j}')
    for j in range(4):
        a(f's_waitcnt lgkmcnt({3-j})')
        for t in range(4):
            c = '0' if j == 0 else vr(DD + 4*t, 4)
            a(f'v_mfma_f32_16x16x32_bf16 {vr(DD + 4*t, 4)}, {vr(KF + 16*t + 4*j, 4)}, {vr(QF + 4*j, 4)}, {c}')
    for t in range(1, 4):
        for r in range(4):
            a(f'v_mov_b32_dpp v{DD+r}, v{DD+4*t+r} quad_perm:[0,1,2,3] row_mask:0xf bank_mask:{1<<t:#x}')
    a(f'v_max3_f32 v16, v{DD}, v{DD+1}, v{DD+2}\nv_max_f32 v16, v16, v{DD+3}')
    a('v_max_f32_dpp v16, v16, v16 row_ror:4 row_mask:0xf bank_mask:0xf')
    a('v_max_f32_dpp v16, v16, v16 row_ror:8 row_mask:0xf bank_mask:0xf')
    a(f's_mov_b32 exec_lo, 0x000f000f\ns_mov_b32 exec_hi, 0x000f000f\nds_max_f32 v14, v16 offset:{F_MX}')
    a(f's_mov_b64 exec, 1\nds_add_u32 v13, v15 offset:{F_M}\ns_mov_b64 exec, -1')
    SC = math.log2(math.e) / math.sqrt(128.0)
    a(f's_mov_b32 s{sT2}, {f32(SC)}')
    spin(16, 13, F_M, 4, extra=f'ds_read_b32 v17, v14 offset:{F_MX}')
    a(f'v_mul_f32 v17, s{sT2}, v17')
    for r in range(4): a(f'v_fma_f32 v{DD+r}, v{DD+r}, s{sT2}, -v17')
    for r in range(4): a(f'v_exp_f32 v{DD+r}, v{DD+r}')
    a(f'v_cvt_pk_bf16_f32 v18, v{DD}, v{DD+1}\nv_cvt_pk_bf16_f32 v19, v{DD+2}, v{DD+3}')
    for blk in range(2):
        for u in range(4):
            for d in range(4):
                t = 2*blk + (d >> 1)
                rot = (4 * (u - t)) & 15
                ctl = f'row_ror:{rot}' if rot else 'quad_perm:[0,1,2,3]'
                a(f'v_mov_b32_dpp v{PV_ + 16*blk + 4*u + d}, v{18 + (d & 1)} {ctl} row_mask:0xf bank_mask:{1<<u:#x}')
    a(f'v_mfma_f32_16x16x32_bf16 {vr(ACL,4)}, {vr(ONE,4)}, {vr(PV_,4)}, 0')
    a(f'v_mfma_f32_16x16x32_bf16 {vr(ACL,4)}, {vr(ONE,4)}, {vr(PV_+16,4)}, {vr(ACL,4)}')
    stamp(4)
    for blk in range(2):
        for p in range(4):
            if blk == 0 and p == 0: a('s_waitcnt vmcnt(8)')
            if blk == 1: a(f's_waitcnt vmcnt({6 - 2*p})')
            if blk == 1 and p == 3: stamp(5)
            r0 = VR + 32*blk + 8*p
            for c in range(4):
                a(f'v_perm_b32 v{KF + 32*blk + 8*c + p}, v{r0+4+c}, v{r0+c}, s{sLO}')
                a(f'v_perm_b32 v{KF + 32*blk + 8*c + 4 + p}, v{r0+4+c}, v{r0+c}, s{sHI}')
        for j in range(8):
            x, u = j >> 2, j & 3
            c = '0' if (blk == 0 and u == 0) else vr(ACC + 4*x, 4)
            a(f'v_mfma_f32_16x16x32_bf16 {vr(ACC + 4*x, 4)}, {vr(KF + 32*blk + 4*j, 4)}, {vr(PV_ + 16*blk + 4*u, 4)}, {c}')
        if blk == 0:
            a(f's_lshl_b32 s{sT0}, s3, 11\ns_add_u32 s{sT0}, s{sT0}, {L_ORED}\nv_add_u32 v20, s{sT0}, v6')
            a(f's_lshl_b32 s{sT0}, s3, 2\ns_add_u32 s{sT0}, s{sT0}, {L_LS}\nv_add_u32 v21, s{sT0}, v6')
            a(f's_lshl_b32 s{sT0}, s3, 10\ns_add_u32 s{sT0}, s{sT0}, {L_ORED}\nv_add_u32 v22, s{sT0}, v6')
            a(f's_mov_b64 exec, 15\nds_write_b32 v21, v{ACL}\ns_mov_b64 exec, -1')
            a(f's_lshl_b32 s{sT0}, s{sG}, 2\ns_add_u32 s{sT0}, s{sT0}, s{sB}\ns_lshl_b32 s{sT0}, s{sT0}, 3\ns_add_u32 s{sT0}, s{sT0}, s{sS}')
            a(f's_mul_i32 s{sB1}, s{sT0}, {OPS}\ns_lshl_b32 s{sT0}, s3, 10\ns_add_u32 s{sB1}, s{sB1}, s{sT0}\ns_add_u32 s{sB1}, s{sB1}, {WS_OP}\ns_add_u32 s{sB2}, s{sB1}, {WS_B}')
    a(f'ds_write_b128 v20, {vr(ACC,4)}\nds_write_b128 v20, {vr(ACC+4,4)} offset:1024')
    a(f's_mov_b64 exec, 1\nds_add_u32 v13, v15 offset:{F_O}\ns_mov_b64 exec, -1')
    a('s_cmp_eq_u32 s3, 3\ns_cbranch_scc1 L_A_done')
    spin(16, 13, F_O, 4)
    a('s_cmp_eq_u32 s3, 2\ns_cbranch_scc1 L_A_stats')
    for w in range(4): a(f'ds_read_b128 {vr(32 + 4*w, 4)}, v22 offset:{2048*w}')
    a('s_waitcnt lgkmcnt(2)\nv_pk_add_f32 v[32:33], v[32:33], v[36:37]\nv_pk_add_f32 v[34:35], v[34:35], v[38:39]')
    a('s_waitcnt lgkmcnt(0)\nv_pk_add_f32 v[40:41], v[40:41], v[44:45]\nv_pk_add_f32 v[42:43], v[42:43], v[46:47]')
    a('v_pk_add_f32 v[32:33], v[32:33], v[40:41]\nv_pk_add_f32 v[34:35], v[34:35], v[42:43]')
    tagit(32)
    a(f'buffer_store_dwordx4 v[32:35], v6, {sr(rWS,4)}, s{sB1} offen\nbuffer_store_dwordx4 v[32:35], v6, {sr(rWS,4)}, s{sB2} offen sc1')
    a('s_branch L_A_done')
    a.lab('L_A_stats')
    a(f'v_add_u32 v21, {L_LS}, v6\ns_mov_b64 exec, 15\nds_read_b128 v[36:39], v21\nv_mov_b32 v32, v1\nv_mov_b32 v33, v17\nv_mov_b32 v35, 0')
    a('s_waitcnt lgkmcnt(0)\nv_add_f32 v36, v36, v37\nv_add_f32 v38, v38, v39\nv_add_f32 v34, v36, v38')
    a(f'buffer_store_dwordx4 v[32:35], v6, {sr(rWS,4)}, s{sB1} offen\nbuffer_store_dwordx4 v[32:35], v6, {sr(rWS,4)}, s{sB2} offen sc1')
    a('s_mov_b64 exec, -1')
    a.lab('L_A_done')
    stamp(6)
    a(f's_cmp_lt_u32 s{sR}, 16\ns_cbranch_scc0 L_A_notO\ns_barrier\ns_branch L_fin')
    a.lab('L_A_notO')
    a(f's_cmp_eq_u32 s{sG}, 7\ns_cbranch_scc1 L_fin')
    a(f's_cmp_lt_u32 s{sG}, 4\ns_cselect_b32 s{sT0}, s3, 0\ns_cmp_eq_u32 s{sT0}, 3\ns_cbranch_scc1 L_final')
    a('s_barrier\ns_barrier\ns_branch L_fin')
    a.lab('L_final')
    a(f's_lshl_b32 s{sT1}, s{sG}, 2\ns_add_u32 s{sT1}, s{sT1}, s{sS}\ns_sub_u32 s{sT1}, s{sT1}, 4')
    a(f's_lshr_b32 s{sT2}, s{sT1}, 1\ns_and_b32 s{sT3}, s{sT1}, 1')
    a(f's_lshl_b32 s{sB1}, s{sT2}, 14\ns_lshl_b32 s{sT0}, s{sB}, 11\ns_add_u32 s{sB1}, s{sB1}, s{sT0}\ns_lshl_b32 s{sT0}, s{sT3}, 7\ns_add_u32 s{sB1}, s{sB1}, s{sT0}')
    a(f's_add_u32 s{sB1}, s{sB1}, {WS_MOD + 8*16384 + 8192}')
    a('v_lshrrev_b32 v16, 3, v0\nv_and_b32 v17, 7, v0\nv_lshlrev_b32 v18, 4, v17\nv_lshl_add_u32 v18, v16, 8, v18')
    poll(lambda: a(f'buffer_load_dwordx4 v[32:35], v18, {sr(rWS,4)}, s{sB1} offen sc1'), [32], 19)
    red4(32, 20)
    a('v_add_f32_dpp v20, v20, v20 row_ror:8 row_mask:0xf bank_mask:0xf')
    a(f's_lshl_b32 s{sT0}, s{sT2}, 6\ns_lshl_b32 s{sT3}, s{sT3}, 2\ns_add_u32 s{sT0}, s{sT0}, s{sT3}')
    a(f'v_lshl_add_u32 v21, v17, 3, v7\nv_add_u32 v21, s{sT0}, v21')
    a(f'v_lshlrev_b32 v22, 2, v21\nv_lshlrev_b32 v21, 1, v21')
    a(f's_lshl_b32 s{sB1}, s{sB}, 4\ns_add_u32 s{sB1}, s{sB1}, s{sT1}\ns_lshl_b32 s{sB1}, s{sB1}, 12\ns_add_u32 s{sB1}, s{sB1}, {WS_FP}')
    srd(rA, pOUT, 4096)
    a(f's_lshl_b32 s{sB2}, s{sB}, 10')
    for i in range(4): a(f'v_mov_b32 v{44+i}, 0')
    a('s_barrier')
    a(f'ds_read_b32 v23, v22 offset:{L_X1 - 65536}' if False else f'v_add_u32 v22, {L_X1}, v22\nds_read_b32 v23, v22')
    a('s_barrier')
    stamp(7)
    if fsleep: a(f's_sleep {fsleep}')
    def fl():
        for j in range(3): a(f'buffer_load_dwordx4 {vr(32+4*j,4)}, v6, {sr(rWS,4)}, s{sB1} offen offset:{1024*j} sc1')
        a(f's_mov_b32 exec_hi, 0\nbuffer_load_dwordx4 v[44:47], v6, {sr(rWS,4)}, s{sB1} offen offset:3072 sc1')
    def fchk():
        a('v_xor_b32 v44, v44, v1\ns_mov_b32 exec_hi, -1')
        for j in range(3): a(f'v_xor_b32 v{32+4*j}, v{32+4*j}, v1')
    poll(fl, [32, 36, 40, 44], 19, pre_check=fchk)
    stamp(8)
    a('v_pk_add_f32 v[32:33], v[32:33], v[40:41]\nv_pk_add_f32 v[34:35], v[34:35], v[42:43]')
    a('v_pk_add_f32 v[36:37], v[36:37], v[44:45]\nv_pk_add_f32 v[38:39], v[38:39], v[46:47]')
    red8(32, 24)
    a('v_add_f32_dpp v24, v24, v24 row_ror:8 row_mask:0xf bank_mask:0xf')
    a('s_waitcnt lgkmcnt(0)\nv_fma_f32 v24, v24, v20, v23\nv_cvt_pk_bf16_f32 v24, v24, v24')
    a('s_mov_b32 exec_lo, 0x00ff00ff\ns_mov_b32 exec_hi, 0x00ff00ff')
    a(f'buffer_store_short v24, v21, {sr(rA,4)}, s{sB2} offen')
    a(f's_cmp_eq_u32 s2, 128\ns_cbranch_scc0 L_fin')
    a(f's_mov_b64 exec, 1\nv_mov_b32 v24, s{sE}\nbuffer_store_dword v24, v6, {sr(rWS,4)}, 0 offen')
    a('s_branch L_fin')

    W0, AR, AC = 64, 32, 24
    a.lab('L_T')
    if prio: a(f's_setprio {prio}')
    a(f's_sub_u32 s{sTW}, s3, 4')
    a(f's_cmp_eq_u32 s{sTW}, 3\ns_cselect_b32 s{sT0}, s{sR}, 99\ns_cmp_lt_u32 s{sT0}, 2\ns_cbranch_scc0 L_nopf')
    a(f's_getpc_b64 {sr(sX,2)}')
    a.lab('L_pc')
    a(f's_sub_u32 s{sX}, s{sX}, L_pc-{NAME}_kernel\ns_subb_u32 s{sX+1}, s{sX+1}, 0')
    a(f's_lshl_b32 s{sT0}, s{sR}, 13\nv_lshl_add_u32 v2, v0, 7, s{sT0}\nv_min_u32 v2, L_codeend-{NAME}_kernel-4, v2')
    a(f'global_load_dword v255, v2, {sr(sX,2)}')
    a.lab('L_nopf')
    a('v_lshrrev_b32 v7, 4, v0\nv_and_b32 v8, 15, v0\nv_and_b32 v9, 7, v0\nv_bfe_u32 v10, v0, 3, 1')
    a(f's_mul_i32 s{sT3}, s{sTW}, {IMG}\ns_add_u32 s{sT3}, s{sT3}, {L_IMG}')
    a(f's_cmp_eq_u32 s{sTW}, 1\ns_cbranch_scc1 L_T1_issue\ns_cmp_gt_u32 s{sTW}, 1\ns_cbranch_scc1 L_T23_issue')
    a(f's_lshr_b32 s{sT0}, s{sR}, 3\ns_and_b32 s{sT1}, s{sR}, 7')
    a(f's_movk_i32 s{sT2}, 1024\ns_cmp_eq_u32 s{sT0}, 1\ns_cselect_b32 s{sT2}, 3072, s{sT2}')
    a(f'v_mul_u32_u24 v2, 6144, v7\nv_lshl_add_u32 v2, v9, 4, v2\nv_mad_u32_u24 v2, v10, s{sT2}, v2')
    a(f's_cselect_b32 s{sB1}, 2048, 0\ns_cmp_eq_u32 s{sT0}, 2\ns_cselect_b32 s{sB1}, 3072, s{sB1}')
    a(f's_lshl_b32 s{sT1}, s{sT1}, 7\ns_add_u32 s{sB1}, s{sB1}, s{sT1}\ns_mul_i32 s{sT1}, s{sG}, {64*6144}\ns_add_u32 s{sB1}, s{sB1}, s{sT1}')
    a(f'v_lshlrev_b32 v3, 10, v7\nv_lshl_add_u32 v3, v9, 4, v3\nv_lshl_add_u32 v3, v10, 3, v3\ns_lshl_b32 s{sB2}, s{sG}, 7')
    a('s_waitcnt lgkmcnt(0)')
    stamp(1)
    a(f's_load_dword s{sE}, s[32:33], 0')
    a(f's_cmp_ge_u32 s{sR}, 24\ns_cbranch_scc1 L_T_setup')
    srd(rA, pWM, 512*6144); srd(rB, pC, 4096)
    a(f'buffer_load_dwordx2 v[4:5], v3, {sr(rB,4)}, s{sB2} offen')
    for i in range(16):
        a(f'buffer_load_dwordx4 {vr(W0+4*i,4)}, v2, {sr(rA,4)}, s{sB1} offen {hfl}')
        if i < 15: a(f's_add_u32 s{sB1}, s{sB1}, {4*6144}')
    a('s_branch L_T_setup')
    a.lab('L_T1_issue')
    a(f's_and_b32 s{sT0}, s{sR}, 7\ns_lshr_b32 s{sT1}, s{sR}, 3')
    a(f's_lshl_b32 s{sB1}, s{sT0}, 19\ns_lshl_b32 s{sT2}, s{sG}, 10\ns_add_u32 s{sB1}, s{sB1}, s{sT2}\ns_lshl_b32 s{sT2}, s{sT1}, 8\ns_add_u32 s{sB1}, s{sB1}, s{sT2}')
    a('v_lshlrev_b32 v2, 13, v7\nv_lshl_add_u32 v2, v8, 4, v2')
    a(f'v_lshlrev_b32 v3, 10, v7\nv_lshl_add_u32 v11, v8, 4, v3\nv_lshl_add_u32 v3, v9, 4, v3\nv_lshl_add_u32 v3, v10, 3, v3\ns_lshl_b32 s{sB2}, s{sT0}, 7')
    a('s_waitcnt lgkmcnt(0)')
    stamp(1)
    a(f's_load_dword s{sE}, s[32:33], 0')
    srd(rA, pWQ, 512*8192); srd(rB, pX, 4096)
    a(f'buffer_load_dwordx2 v[4:5], v3, {sr(rB,4)}, s{sB2} offen')
    for j in range(4): a(f'buffer_load_dwordx4 {vr(AR+4*j,4)}, v11, {sr(rB,4)}, 0 offen offset:{256*j}')
    for i in range(16):
        a(f'buffer_load_dwordx4 {vr(W0+4*i,4)}, v2, {sr(rA,4)}, s{sB1} offen {hfl}')
        if i < 15: a(f's_add_u32 s{sB1}, s{sB1}, {4*8192}')
    a('s_branch L_T_setup')
    a.lab('L_T23_issue')
    a(f'v_mov_b32 v16, 0\nv_mov_b32 v17, 0\nv_mov_b32 v18, 0\nv_mov_b32 v19, 0\nv_mov_b32 v20, 0xff800000\nv_mov_b32 v21, 0xff800000\nv_mov_b32 v22, 0xff800000\nv_mov_b32 v23, 0xff800000')
    a(f'ds_write_b128 v13, v[16:19]\nds_write_b128 v13, v[20:23] offset:16\nds_write_b128 v13, v[16:19] offset:32')
    a(f's_lshl_b32 s{sT0}, s{sG}, 2\ns_add_u32 s{sT0}, s{sT0}, s{sB}\ns_lshl_b32 s{sT0}, s{sT0}, 3\ns_add_u32 s{sT0}, s{sT0}, s{sS}')
    a(f's_mul_i32 s{sB1}, s{sT0}, {OPS}\ns_add_u32 s{sB1}, s{sB1}, {WS_OP}')
    a('v_min_u32 v2, 16, v0\nv_lshlrev_b32 v2, 7, v2')
    a(f's_cmp_eq_u32 s{sTW}, 2\ns_cbranch_scc1 L_T23_go')
    a(f's_lshl_b32 s{sB1}, s{sG}, 16\ns_lshr_b32 s{sT0}, s{sR}, 3\ns_lshl_b32 s{sT0}, s{sT0}, 12\ns_add_u32 s{sB1}, s{sB1}, s{sT0}')
    a(f's_and_b32 s{sT0}, s{sR}, 7\ns_lshl_b32 s{sT0}, s{sT0}, 9\ns_add_u32 s{sB1}, s{sB1}, s{sT0}\ns_add_u32 s{sB1}, s{sB1}, {WS_QP}')
    a('v_and_b32 v2, 3, v0\nv_lshlrev_b32 v2, 7, v2\nv_lshl_add_u32 v2, v7, 14, v2')
    a.lab('L_T23_go')
    a('s_waitcnt lgkmcnt(0)')
    stamp(1)
    a(f's_load_dword s{sE}, s[32:33], 0')
    a(f'buffer_load_dword v254, v2, {sr(rWS,4)}, s{sB1} offen')
    a.lab('L_T_setup')
    a(f'v_mov_b32 v16, 0\nv_mov_b32 v17, 0\nv_mov_b32 v18, 0\nv_mov_b32 v19, 0\nv_add_u32 v20, s{sT3}, v6')
    for k in range(4): a(f'ds_write_b128 v20, v[16:19] offset:{1024*k}')
    a(f's_mov_b32 exec_hi, 0\nds_write_b128 v20, v[16:19] offset:4096\ns_mov_b32 exec_hi, -1')
    a(f'v_bfe_u32 v16, v0, 2, 1\nv_lshlrev_b32 v16, 7, v16\nv_lshl_add_u32 v16, v7, 5, v16\nv_lshl_add_u32 v16, v10, 4, v16\nv_add_u32 v12, s{sT3}, v16')
    a('v_and_b32 v14, 3, v0\nv_mul_u32_u24 v14, 0x5555, v14\nv_mov_b32 v15, 1')
    a('s_waitcnt lgkmcnt(0)')
    mktag()
    a('s_barrier')
    a(f's_cmp_gt_u32 s{sTW}, 1\ns_cbranch_scc1 L_T_rest')
    a(f'v_lshrrev_b32 v16, 5, v0\nv_mul_u32_u24 v16, {PASS}, v16\nv_mul_u32_u24 v17, {SIG}, v9\nv_add3_u32 v16, v16, v17, s{sT3}')
    a('v_and_b32 v17, 1, v7\nv_lshlrev_b32 v17, 4, v17\nv_lshl_add_u32 v17, v10, 6, v17\nv_add_u32 v11, v16, v17')
    def imgw4(vaddr, V):
        a(f'ds_write2_b32 v{vaddr}, v{V}, v{V+1} offset0:0 offset1:2\nds_write2_b32 v{vaddr}, v{V+2}, v{V+3} offset0:8 offset1:10')
        a(f'ds_write2_b32 v{vaddr}, v{V}, v{V+1} offset0:33 offset1:35\nds_write2_b32 v{vaddr}, v{V+2}, v{V+3} offset0:41 offset1:43')
    def two_pass(vrd, vidx, A2, waitw=None):
        for p in range(2):
            for s in range(8): a(f'ds_read_b128 {vr(A2 + 32*p + 4*s, 4)}, v{vrd} offset:{p*PASS + s*SIG}')
        if waitw: a(waitw)
        for p in range(2):
            for s in range(8):
                k = 15 - (8*p + s)
                a(f's_waitcnt lgkmcnt({k})')
                a(f'v_smfmac_f32_16x16x64_bf16 {vr(AC+4*p,4)}, {vr(A2 + 32*p + 4*s, 4)}, {vr(W0 + 8*s, 8)}, v{vidx}')
    for i in range(8): a(f'v_mov_b32 v{AC+i}, 0')
    a(f's_cmp_eq_u32 s{sTW}, 1\ns_cbranch_scc1 L_T1_job')
    a(f's_cmp_ge_u32 s{sR}, 24\ns_cbranch_scc1 L_T_rest')
    a('v_lshrrev_b32 v16, 1, v7\nv_lshlrev_b32 v16, 11, v16\nv_lshl_add_u32 v16, v10, 13, v16\nv_and_b32 v17, 1, v7\nv_lshl_add_u32 v16, v17, 7, v16\nv_lshl_add_u32 v2, v9, 4, v16')
    a(f's_lshl_b32 s{sB1}, s{sR}, 14\ns_lshl_b32 s{sT0}, s{sG}, 8\ns_add_u32 s{sB1}, s{sB1}, s{sT0}\ns_add_u32 s{sB1}, s{sB1}, {WS_MOD}\ns_add_u32 s{sB2}, s{sB1}, 4096')
    a(f's_mov_b32 s{sT0}, {f32(-math.log2(math.e))}')
    a('s_waitcnt vmcnt(16)')
    a('v_lshlrev_b32 v16, 16, v4\nv_and_b32 v17, 0xffff0000, v4\nv_lshlrev_b32 v18, 16, v5\nv_and_b32 v19, 0xffff0000, v5')
    for r in range(4): a(f'v_mul_f32 v{20+r}, s{sT0}, v{16+r}')
    for r in range(4): a(f'v_exp_f32 v{20+r}, v{20+r}')
    for r in range(4): a(f'v_add_f32 v{20+r}, 1.0, v{20+r}')
    for r in range(4): a(f'v_rcp_f32 v{20+r}, v{20+r}')
    for r in range(4): a(f'v_mul_f32 v{16+r}, v{16+r}, v{20+r}')
    for r in range(4): a(f'v_cvt_pk_bf16_f32 v{16+r}, v{16+r}, 0')
    imgw4(11, 16)
    two_pass(12, 14, 128, waitw='s_waitcnt vmcnt(0)')
    stamp(2)
    tagit(AC); tagit(AC+4)
    a(f'buffer_store_dwordx4 {vr(AC,4)}, v2, {sr(rWS,4)}, s{sB1} offen sc1\nbuffer_store_dwordx4 {vr(AC+4,4)}, v2, {sr(rWS,4)}, s{sB2} offen sc1')
    a('s_branch L_T_rest')
    a.lab('L_T1_job')
    a('s_waitcnt vmcnt(16)')
    X = 128
    for i in range(16):
        a(f'v_lshlrev_b32 v{X+2*i}, 16, v{AR+i}\nv_and_b32 v{X+2*i+1}, 0xffff0000, v{AR+i}')
    a(f'v_pk_add_f32 v[16:17], {vr(X,2)}, {vr(X+2,2)}')
    for i in range(2, 16): a(f'v_pk_add_f32 v[16:17], v[16:17], {vr(X+2*i,2)}')
    a('v_add_f32 v16, v16, v17')
    def rowsum(v):
        for k in (1, 2, 4, 8): a(f'v_add_f32_dpp v{v}, v{v}, v{v} row_ror:{k} row_mask:0xf bank_mask:0xf')
    rowsum(16)
    a(f'v_mul_f32 v16, {f32(-1.0/512)}, v16\nv_mov_b32 v17, v16\nv_mov_b32 v18, 0\nv_mov_b32 v19, 0')
    for i in range(16):
        a(f'v_pk_add_f32 {vr(X+2*i,2)}, {vr(X+2*i,2)}, v[16:17]\nv_pk_fma_f32 v[18:19], {vr(X+2*i,2)}, {vr(X+2*i,2)}, v[18:19]')
    a('v_add_f32 v18, v18, v19')
    rowsum(18)
    a(f'v_mov_b32 v19, {f32(1e-5)}\nv_fmac_f32 v19, {f32(1.0/512)}, v18\nv_rsq_f32 v19, v19')
    a('v_lshlrev_b32 v20, 16, v4\nv_and_b32 v21, 0xffff0000, v4\nv_lshlrev_b32 v22, 16, v5\nv_and_b32 v23, 0xffff0000, v5')
    for r in range(4): a(f'v_add_f32 v{20+r}, v{20+r}, v16')
    for r in range(4): a(f'v_mul_f32 v{20+r}, v{20+r}, v19')
    a(f'v_lshlrev_b32 v3, 11, v7\nv_lshl_add_u32 v3, v8, 4, v3\ns_and_b32 s{sT0}, s{sR}, 7\ns_lshl_b32 s{sB1}, s{sT0}, 14\ns_add_u32 s{sB1}, s{sB1}, {WS_MOD}\ns_add_u32 s{sB2}, s{sB1}, 8192')
    a('v_lshrrev_b32 v16, 1, v7\nv_lshlrev_b32 v16, 14, v16\nv_lshl_add_u32 v16, v10, 8, v16\nv_and_b32 v17, 1, v7\nv_lshl_add_u32 v16, v17, 7, v16\nv_lshl_add_u32 v2, v9, 4, v16')
    stamp(2)
    def l1():
        for sg in range(2):
            for kp in range(8): a(f'buffer_load_dwordx4 {vr(X + 32*sg + 4*kp, 4)}, v3, {sr(rWS,4)}, s{sB2 if sg else sB1} offen offset:{256*kp} sc1')
    poll(l1, [X + 4*k for k in range(16)], 16)
    stamp(3)
    def tree(R, n):
        st = 4
        while n > 1:
            for k in range(0, n, 2):
                for h in (0, 2): a(f'v_pk_add_f32 {vr(R + st*k + h, 2)}, {vr(R + st*k + h, 2)}, {vr(R + st*(k+1) + h, 2)}')
            st *= 2; n //= 2
    tree(X, 8); tree(X + 32, 8)
    for r in range(4): a(f'v_add_f32 v{X+r}, v{X+r}, v{20+r}')
    for r in range(4): a(f'v_fmac_f32 v{X+r}, v{X+32+r}, v{20+r}')
    for r in range(4): a(f'v_cvt_pk_bf16_f32 v{16+r}, v{X+r}, 0')
    imgw4(11, 16)
    a(f's_lshl_b32 s{sB1}, s{sG}, 16\ns_lshr_b32 s{sT0}, s{sR}, 3\ns_lshl_b32 s{sT0}, s{sT0}, 12\ns_add_u32 s{sB1}, s{sB1}, s{sT0}')
    a(f's_and_b32 s{sT0}, s{sR}, 7\ns_lshl_b32 s{sT0}, s{sT0}, 9\ns_add_u32 s{sB1}, s{sB1}, s{sT0}\ns_add_u32 s{sB1}, s{sB1}, {WS_QP}')
    a(f's_add_u32 s{sB2}, s{sB1}, 32768\ns_add_u32 s{sT1}, s{sB1}, {WS_B}\ns_add_u32 s{sT2}, s{sB2}, {WS_B}')
    two_pass(12, 14, 128)
    tagit(AC); tagit(AC+4)
    a(f'buffer_store_dwordx4 {vr(AC,4)}, v2, {sr(rWS,4)}, s{sB1} offen\nbuffer_store_dwordx4 {vr(AC+4,4)}, v2, {sr(rWS,4)}, s{sB2} offen')
    a(f's_mov_b64 exec, 1\nds_add_u32 v13, v15 offset:{F_P}\ns_mov_b64 exec, -1')
    a(f'buffer_store_dwordx4 {vr(AC,4)}, v2, {sr(rWS,4)}, s{sT1} offen sc1\nbuffer_store_dwordx4 {vr(AC+4,4)}, v2, {sr(rWS,4)}, s{sT2} offen sc1')
    stamp(4)
    a.lab('L_T_rest')
    a(f's_cmp_lt_u32 s{sR}, 16\ns_cselect_b32 s{sROLE}, 0, 1\ns_cmp_eq_u32 s{sG}, 7\ns_cselect_b32 s{sT0}, 1, 0\ns_lshl_b32 s{sROLE}, s{sROLE}, s{sT0}')
    a(f's_cmp_eq_u32 s{sROLE}, 1\ns_cbranch_scc0 L_T_g')
    GA, SB, CB, XX = 16, 18, 20, 22
    srd(rB, pX, 4096)
    a(f'v_lshl_add_u32 v4, v9, 3, v7\nv_lshl_add_u32 v4, v10, 2, v4\nv_lshlrev_b32 v5, 1, v4')
    a(f's_lshl_b32 s{sT0}, s{sB}, 10\ns_lshl_b32 s{sT1}, s{sTW}, 8\ns_add_u32 s{sT0}, s{sT0}, s{sT1}')
    a(f'buffer_load_ushort v{XX}, v5, {sr(rB,4)}, s{sT0} offen\nbuffer_load_ushort v{XX+1}, v5, {sr(rB,4)}, s{sT0} offen offset:128')
    a(f's_lshl_b32 s{sB1}, s{sTW}, 15\ns_lshl_b32 s{sT0}, s{sB}, 11\ns_add_u32 s{sB1}, s{sB1}, s{sT0}\ns_add_u32 s{sB1}, s{sB1}, {WS_MOD}')
    srcs = [(8*16384, GA), (16*16384, SB), (16*16384 + 8192, CB)]
    def l2():
        for k, (o, _) in enumerate(srcs):
            for blk in range(2):
                a(f's_add_u32 s{sOFF}, s{sB1}, {o + blk*16384}')
                for j in range(2): a(f'buffer_load_dwordx4 {vr(W0 + 16*k + 8*blk + 4*j, 4)}, v6, {sr(rWS,4)}, s{sOFF} offen offset:{1024*j} sc1')
    poll(l2, [W0 + 4*k for k in range(12)], 3)
    for k, (_, d) in enumerate(srcs):
        for blk in range(2): red8(W0 + 16*k + 8*blk, d + blk)
    a(f'v_add_f32 v{CB}, 1.0, v{CB}\nv_add_f32 v{CB+1}, 1.0, v{CB+1}\nv_lshlrev_b32 v{XX}, 16, v{XX}\nv_lshlrev_b32 v{XX+1}, 16, v{XX+1}')
    stamp(5)
    a.lab('L_T_g')
    a(f's_cmp_lt_u32 s{sTW}, 2\ns_cbranch_scc1 L_T_tail')
    a(f's_lshl_b32 s{sB1}, s{sG}, 16\ns_lshl_b32 s{sT0}, s{sB}, 14\ns_add_u32 s{sB1}, s{sB1}, s{sT0}\ns_and_b32 s{sT1}, s{sTW}, 1\ns_lshl_b32 s{sT0}, s{sT1}, 13\ns_add_u32 s{sB1}, s{sB1}, s{sT0}\ns_add_u32 s{sB1}, s{sB1}, {WS_QP}')
    a('v_lshrrev_b32 v3, 5, v0\nv_and_b32 v2, 31, v0\nv_lshlrev_b32 v2, 4, v2\nv_lshl_add_u32 v2, v3, 12, v2')
    a(f's_mul_i32 s{sT1}, s{sT1}, 640\ns_add_u32 s{sT1}, s{sT1}, {L_Q}\nv_mul_u32_u24 v3, 320, v3\nv_and_b32 v11, 1, v7\nv_lshl_add_u32 v3, v11, 7, v3\nv_lshl_add_u32 v3, v9, 4, v3\nv_lshl_add_u32 v3, v10, 3, v3\nv_add_u32 v11, s{sT1}, v3')
    spin(3, 13, F_P, 1, sleep=1)
    stamp(2)
    def l3():
        for e in range(8): a(f'buffer_load_dwordx4 {vr(W0 + 4*e, 4)}, v2, {sr(rWS,4)}, s{sB1} offen offset:{512*e} sc1')
    poll(l3, [W0 + 4*k for k in range(8)], 3, fallback=sB1)
    stamp(3)
    tree(W0, 8)
    a(f'v_cvt_pk_bf16_f32 v{W0}, v{W0}, v{W0+1}\nv_cvt_pk_bf16_f32 v{W0+1}, v{W0+2}, v{W0+3}\nds_write_b64 v11, {vr(W0,2)}')
    a(f's_mov_b64 exec, 1\nds_add_u32 v13, v15 offset:{F_Q}\ns_mov_b64 exec, -1')
    stamp(4)
    a.lab('L_T_tail')
    a(f's_cmp_eq_u32 s{sROLE}, 2\ns_cbranch_scc1 L_fin')
    a(f's_mul_i32 s{sT3}, s{sTW}, {IMG}\ns_add_u32 s{sT3}, s{sT3}, {L_IMG}')
    a(f'v_and_b32 v2, 1, v0\nv_lshlrev_b32 v2, 4, v2\nv_lshl_add_u32 v2, v7, 5, v2\nv_lshl_add_u32 v2, v10, 7, v2\nv_add_u32 v11, s{sT3}, v2')
    a('v_bfe_u32 v5, v0, 1, 2\nv_mul_u32_u24 v5, 0x5555, v5')
    for i in range(8): a(f'v_mov_b32 v{AC+i}, 0')
    a(f's_cmp_eq_u32 s{sROLE}, 1\ns_cbranch_scc1 L_F')
    def tloads(seq):
        for n, (dst, va, rs, so, inc) in enumerate(seq):
            if n >= NTT: a(f's_waitcnt vmcnt({NTT-1})')
            a(f'buffer_load_dwordx4 {vr(dst,4)}, v{va}, {sr(rs,4)}, s{so} offen {wfl}')
            if inc: a(f's_add_u32 s{so}, s{so}, {inc & 0xffffffff:#x}')
    srd(rA, pWO, 4096*1024)
    a('v_lshlrev_b32 v2, 13, v7\nv_lshl_add_u32 v2, v10, 15, v2\nv_lshl_add_u32 v2, v9, 4, v2')
    a(f's_lshl_b32 s{sB1}, s{sG}, 19\ns_lshr_b32 s{sT0}, s{sR}, 1\ns_lshl_b32 s{sT0}, s{sT0}, 7\ns_add_u32 s{sB1}, s{sB1}, s{sT0}')
    a(f's_and_b32 s{sT0}, s{sTW}, 1\ns_lshl_b32 s{sT0}, s{sT0}, 16\ns_add_u32 s{sB1}, s{sB1}, s{sT0}\ns_lshr_b32 s{sT0}, s{sTW}, 1\ns_lshl_b32 s{sT0}, s{sT0}, 12\ns_add_u32 s{sB1}, s{sB1}, s{sT0}')
    a(f'v_lshrrev_b32 v16, 5, v0\nv_and_b32 v17, 31, v0\nv_mul_u32_u24 v3, {OPS}, v16\nv_lshl_add_u32 v3, v17, 4, v3\ns_lshl_b32 s{sT0}, s{sTW}, 9\nv_add_u32 v3, s{sT0}, v3')
    a(f'v_lshrrev_b32 v18, 2, v0\nv_mul_u32_u24 v4, {OPS}, v18\nv_and_b32 v19, 3, v0\nv_lshl_add_u32 v4, v19, 4, v4')
    a(f's_and_b32 s{sT0}, s{sR}, 1\ns_lshl_b32 s{sT1}, s{sG}, 1\ns_add_u32 s{sT0}, s{sT0}, s{sT1}\ns_mul_i32 s{sB2}, s{sT0}, {16*OPS}\ns_add_u32 s{sB2}, s{sB2}, {WS_OP}')
    a(f's_lshl_b32 s{sT0}, s{sTW}, 8\ns_add_u32 s{sT0}, s{sT0}, {L_WT}')
    a(f'v_and_b32 v20, 1, v18\nv_lshlrev_b32 v20, 5, v20\nv_lshl_add_u32 v20, v19, 6, v20\nv_lshl_add_u32 v20, v16, 4, v20\nv_bfe_u32 v21, v0, 3, 2\nv_lshl_add_u32 v20, v21, 2, v20\nv_add_u32 v20, s{sT0}, v20')
    a(f'v_lshlrev_b32 v21, 6, v19\nv_lshl_add_u32 v21, v16, 5, v21\nv_add_u32 v21, s{sT0}, v21')
    a(f'v_mul_u32_u24 v22, {PASS}, v16\nv_lshrrev_b32 v23, 1, v8\nv_mul_u32_u24 v23, {SIG}, v23\nv_add3_u32 v22, v22, v23, s{sT3}')
    a('v_and_b32 v23, 1, v0\nv_lshl_add_u32 v22, v23, 6, v22\nv_and_b32 v23, 1, v7\nv_lshl_add_u32 v22, v23, 4, v22')
    a(f'v_lshlrev_b32 v23, 3, v23\nv_lshl_add_u32 v23, v16, 7, v23\nv_lshl_add_u32 v23, v9, 4, v23\nv_lshl_add_u32 v23, v10, 2, v23\ns_lshl_b32 s{sT0}, s{sTW}, 9\ns_add_u32 s{sT0}, s{sT0}, {L_RED}\nv_add_u32 v23, s{sT0}, v23')
    spin(17, 13, F_T, 4, sleep=1)
    stamp(6)
    seq = []
    for i in range(16):
        cur = ((i & 3) * 128 + (i >> 2)) * 1024
        nxt = (((i+1) & 3) * 128 + ((i+1) >> 2)) * 1024
        seq.append((W0 + 4*i, 2, rA, sB1, nxt - cur if i < 15 else 0))
    tloads(seq)
    G = 128; ST = 160
    def l4():
        a(f'buffer_load_dwordx4 {vr(ST,4)}, v4, {sr(rWS,4)}, s{sB2} offen offset:2048 sc1')
        for bb in range(2):
            for jj in range(4):
                o = (bb*8 + 2*jj) * OPS
                if o: a(f's_add_u32 s{sOFF}, s{sB2}, {o}')
                a(f'buffer_load_dwordx4 {vr(G + 16*bb + 4*jj, 4)}, v3, {sr(rWS,4)}, s{sOFF if o else sB2} offen sc1')
    stamp(7)
    poll(l4, [ST] + [G + 4*k for k in range(8)], 17, fallback=sB2)
    stamp(8)
    a(f'v_max_f32_dpp v17, v{ST+1}, v{ST+1} row_ror:4 row_mask:0xf bank_mask:0xf')
    a('v_max_f32_dpp v17, v17, v17 row_ror:8 row_mask:0xf bank_mask:0xf')
    a('v_mov_b32 v18, v17\nv_permlane16_swap_b32 v17, v18\nv_max_f32 v17, v17, v18')
    a(f'v_sub_f32 v17, v{ST+1}, v17\nv_exp_f32 v17, v17\nv_mul_f32 v18, v17, v{ST+2}')
    a('v_add_f32_dpp v18, v18, v18 row_ror:4 row_mask:0xf bank_mask:0xf')
    a('v_add_f32_dpp v18, v18, v18 row_ror:8 row_mask:0xf bank_mask:0xf')
    a('v_mov_b32 v19, v18\nv_permlane16_swap_b32 v18, v19\nv_add_f32 v18, v18, v19\nv_rcp_f32 v18, v18\nv_mul_f32 v17, v17, v18')
    a(f'ds_write_b32 v20, v17\nds_read_b128 {vr(ST,4)}, v21\nds_read_b128 {vr(ST+4,4)}, v21 offset:16')
    for bb in range(2):
        a(f's_waitcnt lgkmcnt({1-bb})')
        for r in range(4): a(f'v_mul_f32 v{G+16*bb+r}, v{G+16*bb+r}, v{ST+4*bb}')
        for jj in range(1, 4):
            for r in range(4): a(f'v_fmac_f32 v{G+16*bb+r}, v{G+16*bb+4*jj+r}, v{ST+4*bb+jj}')
    for r in range(4): a(f'v_permlane32_swap_b32 v{G+r}, v{G+16+r}')
    for r in range(4): a(f'v_add_f32 v{G+r}, v{G+r}, v{G+16+r}')
    for r in range(4): a(f'v_cvt_pk_bf16_f32 v{G+r}, v{G+r}, 0')
    imgw4(22, G)
    two_pass(11, 5, 192)
    def parity(dst, D):
        a(f'v_add_f32_dpp v{dst}, v{D+1}, v{D} row_ror:8 row_mask:0xf bank_mask:0x3')
        a(f'v_add_f32_dpp v{dst}, v{D+2}, v{D+3} row_ror:8 row_mask:0xf bank_mask:0xc')
    parity(16, AC); parity(17, AC+4)
    a('ds_write2_b32 v23, v16, v17 offset0:0 offset1:64')
    a(f's_and_b32 s{sT0}, s{sR}, 1\ns_lshl_b32 s{sB1}, s{sT0}, 15\ns_lshr_b32 s{sT0}, s{sR}, 1\ns_lshl_b32 s{sT0}, s{sT0}, 11\ns_add_u32 s{sB1}, s{sB1}, s{sT0}\ns_lshl_b32 s{sT0}, s{sG}, 8\ns_add_u32 s{sB1}, s{sB1}, s{sT0}\ns_add_u32 s{sB1}, s{sB1}, {WS_YP}')
    a(f'v_lshlrev_b32 v2, 14, v7\nv_lshl_add_u32 v2, v8, 4, v2\nv_add_u32 v3, {L_RED}, v6')
    a('s_waitcnt lgkmcnt(0)\ns_barrier')
    stamp(9)
    a(f's_cmp_eq_u32 s{sTW}, 0\ns_cbranch_scc0 L_fin')
    a('s_mov_b32 exec_hi, 0')
    for w in range(4): a(f'ds_read_b128 {vr(32 + 4*w, 4)}, v3 offset:{512*w}')
    a('s_waitcnt lgkmcnt(2)\nv_pk_add_f32 v[32:33], v[32:33], v[36:37]\nv_pk_add_f32 v[34:35], v[34:35], v[38:39]')
    a('s_waitcnt lgkmcnt(0)\nv_pk_add_f32 v[40:41], v[40:41], v[44:45]\nv_pk_add_f32 v[42:43], v[42:43], v[46:47]')
    a('v_pk_add_f32 v[32:33], v[32:33], v[40:41]\nv_pk_add_f32 v[34:35], v[34:35], v[42:43]')
    tagit(32)
    a(f'buffer_store_dwordx4 v[32:35], v2, {sr(rWS,4)}, s{sB1} offen sc1')
    stamp(10)
    a('s_branch L_fin')
    a.lab('L_F')
    WGT, WUP, WDN = 64, 128, 192
    srd(rA, pWG, 512*3584); srd(rB, pWU, 512*3584); srd(rC, pWD, 1792*1024)
    a(f's_lshl_b32 s{sT1}, s{sG}, 2\ns_add_u32 s{sT1}, s{sT1}, s{sS}\ns_sub_u32 s{sT1}, s{sT1}, 4')
    a(f's_mul_i32 s{sB1}, s{sTW}, {128*3584}\ns_lshl_b32 s{sT0}, s{sT1}, 7\ns_add_u32 s{sB1}, s{sB1}, s{sT0}')
    a(f's_lshl_b32 s{sB2}, s{sT1}, 16\ns_lshl_b32 s{sT0}, s{sTW}, 8\ns_add_u32 s{sB2}, s{sB2}, s{sT0}')
    a('v_lshrrev_b32 v2, 3, v0\nv_mul_u32_u24 v2, 3584, v2\nv_lshl_add_u32 v2, v9, 4, v2')
    a('v_lshlrev_b32 v3, 10, v7\nv_lshl_add_u32 v3, v8, 4, v3')
    spin(32, 13, F_T, 4, sleep=1)
    stamp(6)
    seq = []
    for i in range(16):
        seq.append((WGT + 4*i, 2, rA, sB1, 0))
        seq.append((WUP + 4*i, 2, rB, sB1, 8*3584 if i < 15 else 0))
    for i in range(16): seq.append((WDN + 4*i, 3, rC, sB2, 4096 if i < 15 else 0))
    tloads(seq)
    a(f'v_lshrrev_b32 v2, 1, v9\nv_mul_u32_u24 v2, {SIG}, v2\nv_and_b32 v3, 1, v0\nv_lshl_add_u32 v2, v3, 6, v2\nv_lshl_add_u32 v2, v10, 5, v2')
    a(f'v_and_b32 v3, 1, v7\nv_lshl_add_u32 v2, v3, 4, v2\nv_lshrrev_b32 v3, 1, v7\nv_lshl_add_u32 v2, v3, 3, v2\nv_add_u32 v2, s{sT3}, v2\nv_add_u32 v3, {4*SIG}, v2')
    a(f's_lshl_b32 s{sT0}, s{sTW}, 9\ns_add_u32 s{sT2}, s{sT0}, {L_X1}\nv_lshl_add_u32 v4, v4, 2, s{sT2}')
    a(f's_lshl_b32 s{sB1}, s{sB}, 14\ns_lshl_b32 s{sT2}, s{sTW}, 12\ns_add_u32 s{sB1}, s{sB1}, s{sT2}\ns_add_u32 s{sB1}, s{sB1}, {WS_YP}')
    a(f's_lshl_b32 s{sB2}, s{sB}, 16\ns_lshl_b32 s{sT2}, s{sTW}, 14\ns_add_u32 s{sB2}, s{sB2}, s{sT2}\ns_lshl_b32 s{sT2}, s{sT1}, 7\ns_add_u32 s{sB2}, s{sB2}, s{sT2}\ns_add_u32 s{sB2}, s{sB2}, {WS_FP}')
    stamp(7)
    def l5():
        for k in range(4): a(f'buffer_load_dwordx4 {vr(AR + 4*k, 4)}, v6, {sr(rWS,4)}, s{sB1} offen offset:{1024*k} sc1')
    poll(l5, [AR + 4*k for k in range(4)], 48)
    stamp(8)
    red8(AR, 48); red8(AR + 8, 49)
    a(f'v_fmac_f32 v{XX}, v48, v{GA}\nv_fmac_f32 v{XX+1}, v49, v{GA+1}')
    a(f'ds_write2_b32 v4, v{XX}, v{XX+1} offset0:0 offset1:64')
    a(f'v_add_f32 v48, v{XX}, v{XX+1}\nv_mul_f32 v49, v{XX}, v{XX}\nv_fmac_f32 v49, v{XX+1}, v{XX+1}')
    for k in (1, 2, 4, 8):
        a(f'v_add_f32_dpp v48, v48, v48 row_ror:{k} row_mask:0xf bank_mask:0xf\nv_add_f32_dpp v49, v49, v49 row_ror:{k} row_mask:0xf bank_mask:0xf')
    a('v_add_f32_dpp v48, v48, v48 row_bcast:15 row_mask:0xa bank_mask:0xf\nv_add_f32_dpp v49, v49, v49 row_bcast:15 row_mask:0xa bank_mask:0xf')
    a('v_add_f32_dpp v48, v48, v48 row_bcast:31 row_mask:0xc bank_mask:0xf\nv_add_f32_dpp v49, v49, v49 row_bcast:31 row_mask:0xc bank_mask:0xf')
    a(f's_lshl_b32 s{sT0}, s{sTW}, 3\ns_add_u32 s{sT0}, s{sT0}, {L_ST}\nv_mov_b32 v50, s{sT0}\nv_mov_b32 v51, {L_ST}')
    a('s_mov_b32 exec_lo, 0\ns_mov_b32 exec_hi, 0x80000000\nds_write_b64 v50, v[48:49]\ns_mov_b64 exec, -1')
    a('s_waitcnt lgkmcnt(0)\ns_barrier')
    a('ds_read_b128 v[32:35], v51\nds_read_b128 v[36:39], v51 offset:16')
    a('s_waitcnt lgkmcnt(0)\nv_pk_add_f32 v[32:33], v[32:33], v[34:35]\nv_pk_add_f32 v[36:37], v[36:37], v[38:39]\nv_pk_add_f32 v[32:33], v[32:33], v[36:37]')
    a(f'v_mul_f32 v32, {f32(1.0/512)}, v32\nv_mul_f32 v33, {f32(1.0/512)}, v33\nv_fma_f32 v33, -v32, v32, v33\nv_max_f32 v33, 0, v33\nv_add_f32 v33, {f32(1e-5)}, v33\nv_rsq_f32 v33, v33')
    a(f'v_sub_f32 v34, v{XX}, v32\nv_sub_f32 v35, v{XX+1}, v32\nv_mul_f32 v34, v34, v33\nv_mul_f32 v35, v35, v33')
    a(f'v_fma_f32 v34, v34, v{CB}, v{SB}\nv_fma_f32 v35, v35, v{CB+1}, v{SB+1}\nv_cvt_pk_bf16_f32 v34, v34, 0\nv_cvt_pk_bf16_f32 v35, v35, 0')
    a('ds_write2_b32 v2, v34, v34 offset0:0 offset1:33\nds_write2_b32 v3, v35, v35 offset0:0 offset1:33')
    for s in range(8): a(f'ds_read_b128 {vr(AR + 4*s, 4)}, v11 offset:{s*SIG}')
    a(f's_lshl_b32 s{sT0}, s{sTW}, 9\ns_add_u32 s{sT0}, s{sT0}, {L_RED}\nv_lshl_add_u32 v16, v0, 3, s{sT0}\nv_lshlrev_b32 v17, 3, v0\nv_add_u32 v17, {L_RED}, v17')
    a(f'v_mul_u32_u24 v18, {SIG}, v9\nv_lshl_add_u32 v18, v7, 5, v18\nv_lshl_add_u32 v18, v10, 3, v18\nv_add_u32 v18, s{sT3}, v18')
    a('v_lshlrev_b32 v19, 13, v10\nv_lshl_add_u32 v19, v7, 12, v19\nv_lshl_add_u32 v19, v9, 4, v19')
    for s in range(8):
        a(f's_waitcnt lgkmcnt({7-s})')
        a(f'v_smfmac_f32_16x16x64_bf16 {vr(AC,4)}, {vr(AR+4*s,4)}, {vr(WGT+8*s,8)}, v5')
        a(f'v_smfmac_f32_16x16x64_bf16 {vr(AC+4,4)}, {vr(AR+4*s,4)}, {vr(WUP+8*s,8)}, v5')
    parity(20, AC); parity(21, AC+4)
    a('ds_write_b64 v16, v[20:21]')
    for i in range(4): a(f'v_mov_b32 v{AC+i}, 0')
    a(f's_mov_b32 s{sT0}, {f32(-math.log2(math.e))}')
    a('s_waitcnt lgkmcnt(0)\ns_barrier')
    stamp(9)
    for w in range(4): a(f'ds_read_b64 {vr(32 + 2*w, 2)}, v17 offset:{512*w}')
    a('s_waitcnt lgkmcnt(2)\nv_pk_add_f32 v[32:33], v[32:33], v[34:35]\ns_waitcnt lgkmcnt(0)\nv_pk_add_f32 v[36:37], v[36:37], v[38:39]\nv_pk_add_f32 v[32:33], v[32:33], v[36:37]')
    a(f'v_mul_f32 v32, s{sT0}, v32\nv_exp_f32 v32, v32\nv_add_f32 v32, 1.0, v32\nv_rcp_f32 v32, v32\nv_mul_f32 v32, v32, v33\nv_cvt_pk_bf16_f32 v20, v32, 0')
    a('ds_write2_b32 v18, v20, v20 offset0:0 offset1:33')
    for s in range(8): a(f'ds_read_b128 {vr(AR + 4*s, 4)}, v12 offset:{s*SIG}')
    for s in range(8):
        a(f's_waitcnt lgkmcnt({7-s})')
        a(f'v_smfmac_f32_16x16x64_bf16 {vr(AC,4)}, {vr(AR+4*s,4)}, {vr(WDN+8*s,8)}, v14')
    a('s_mov_b32 exec_hi, 0')
    tagit(AC)
    a(f'buffer_store_dwordx4 {vr(AC,4)}, v19, {sr(rWS,4)}, s{sB2} offen sc1')
    stamp(10)
    a.lab('L_fin')
    stamp(11)
    if leak:
        W, w, ka, kb = leak
        a(f's_cmp_eq_u32 s2, {W}\ns_cbranch_scc0 L_end\ns_cmp_eq_u32 s3, {w}\ns_cbranch_scc0 L_end')
        a(f's_waitcnt lgkmcnt(0)\ns_sub_u32 s{sT0}, s{TS0+2*ka}, s{TS0+2*kb}\ns_min_u32 s{sT0}, s{sT0}, 5000\ns_mul_i32 s{sT0}, s{sT0}, 40')
        a.lab('L_leak')
        a(f's_memrealtime s[56:57]\ns_waitcnt lgkmcnt(0)\ns_sub_u32 s{sT1}, s56, s{TS0+22}\ns_cmp_lt_u32 s{sT1}, s{sT0}\ns_cbranch_scc1 L_leak')
    else:
        dump_ts(12)
    a.lab('L_end')
    a('s_endpgm')
    a.lab('L_codeend')

    body, added = hazard_pass(a.L)
    out = [HEADER + f'; @launch grid=(256,1,1) block=(512,1,1) lds={L_END}',
           '.amdgcn_target "amdgcn-amd-amdhsa--gfx950"', '.text', f'.globl {NAME}_kernel', '.p2align 8', f'.type {NAME}_kernel,@function']
    out += [l if l.endswith(':') else '    ' + l for l in body]
    out += ['.section .rodata,"a"', '.p2align 6', f'.amdhsa_kernel {NAME}_kernel',
            '  .amdhsa_next_free_vgpr 256', '  .amdhsa_next_free_sgpr 102', '  .amdhsa_accum_offset 256',
            '  .amdhsa_group_segment_fixed_size 0', '  .amdhsa_kernarg_size 112', '  .amdhsa_user_sgpr_count 2',
            '  .amdhsa_user_sgpr_kernarg_segment_ptr 1', '  .amdhsa_system_sgpr_workgroup_id_x 1',
            '  .amdhsa_float_denorm_mode_32 3', '.end_amdhsa_kernel']
    return '\n'.join(out) + '\n'

if __name__ == '__main__':
    kw = {}
    for arg in sys.argv[2:]:
        k, v = arg.split('=')
        try: v = eval(v)
        except Exception: pass
        kw[k] = v
    open(sys.argv[1], 'w').write(gen(**kw))
```

```python
import sys, struct, math
from asmlib import Asm, hazard_pass, vr, sr
from gen_v1 import HEADER
NAME = 'adaLN_cond__sliding_block_cached__glu_gated_glu__decode'
def f32(x): return '0x%08x' % struct.unpack('<I', struct.pack('<f', x))[0]

WS_MOD = 0x10000
WS_RD  = 0x70000
WS_QP  = 0x80000
WS_OP  = 0x100000
OPS    = 2176
WS_YP  = 0x200000
WS_FP  = 0x220000
WS_B   = 0x400000
WS_TS  = 0x8000000
SIG = 288; PASS = 8 * SIG; IMG = 2 * PASS
L_IMG = 65536
L_Q   = L_IMG + 4 * IMG
L_P   = L_Q + 1536
L_Z   = L_P + 2048
L_ORED = L_Z + 512
L_LS  = L_ORED + 8192
L_WT  = L_LS + 64
L_RED = L_WT + 1024
L_ST  = L_RED + 2048
L_X1  = L_ST + 64
L_RS  = L_X1 + 2048
L_FL  = L_RS + 8192
F_Q, F_S, F_P, F_M = 0, 4, 8, 12
F_MX = 16
F_H, F_E, F_K, F_PR = 32, 36, 40, 44
L_END = L_FL + 64
TAGMASK = 0xFFF
SPIN_LIM = 1 << 20
POLL_LIM = 1 << 18

sG, sR, sB, sS = 4, 5, 6, 7
pX, pK, pV, pWQ, pWO, pWG, pWU, pWD, pC, pWM, pOUT, pWS = 8, 10, 12, 14, 16, 20, 22, 24, 26, 28, 30, 32
rWS, rA, rB, rC = 32, 36, 40, 44
sE, sMASK, sOFF, sB1, sB2, sCNT, sW, sSLOW, sX, sLO, sHI, sT0, sT1, sT2, sT3 = 48, 49, 50, 51, 52, 53, 54, 55, 56, 58, 59, 60, 61, 62, 63
sXC = 18
sB3 = 19
TS0 = 64
VT, VTA = 1, 15
SC = math.log2(math.e) / math.sqrt(128.0)

def gen(NH=5, NS=4, NO=6, NTH=6, NTT=16, kvfl='nt', wfl='nt', hfl='nt', ofl='nt', ts=False, fb=64, fsleep=8, osleep=0, leak=None, g1=None,
        hold=True, rot=True, wopos=16, forceslow=False):
    if leak: ts = True
    assert NTH < 16
    a = Asm()
    uid = [0]
    def U(p): uid[0] += 1; return f'{p}_{uid[0]}'
    def stamp(k):
        if ts: a(f's_memrealtime {sr(TS0 + 2*k, 2)}')
    def srd(r, p, size):
        a(f's_mov_b32 s{r}, s{p}\ns_mov_b32 s{r+1}, s{p+1}\ns_mov_b32 s{r+2}, {size}\ns_mov_b32 s{r+3}, 0x20000')
    def sig(off): a(f's_mov_b64 exec, 1\nds_add_u32 v13, v14 offset:{off}\ns_mov_b64 exec, -1')
    def spin(vt, off, n, sleep=0, extra=None):
        l, d = U('L_spin'), U('L_spun')
        a(f's_mov_b32 s{sCNT}, 0')
        a.lab(l)
        a(f'ds_read_b32 v{vt}, v13 offset:{off}')
        if extra: a(extra)
        a('s_waitcnt lgkmcnt(0)')
        a(f'v_readfirstlane_b32 s{sT0}, v{vt}')
        a(f's_cmp_ge_u32 s{sT0}, {n}\ns_cbranch_scc1 {d}')
        if sleep: a(f's_sleep {sleep}')
        a(f's_add_u32 s{sCNT}, s{sCNT}, 1\ns_cmp_lt_u32 s{sCNT}, {SPIN_LIM}\ns_cbranch_scc1 {l}\ns_endpgm')
        a.lab(d)
    def poll(loads, firsts, vacc, local=None, pre_check=None, cnt=None, setslow=False):
        l, d = U('L_poll'), U('L_got')
        vt = VT
        if local:
            sb, vt, vd = local
            a(f'v_mov_b32 v{vt}, v{VTA}\nv_xor_b32 v{vd}, v{VT}, v{VTA}')
            if setslow: a(f's_mov_b32 s{sCNT}, 0')
            else: a(f's_cmp_eq_u32 s{sSLOW}, 0\ns_cselect_b32 s{sCNT}, 0, {fb}')
        else: a(f's_mov_b32 s{sCNT}, 0')
        a.lab(l)
        loads()
        a('s_waitcnt vmcnt(0)')
        if pre_check: pre_check()
        else:
            for f in firsts: a(f'v_xor_b32 v{f}, v{f}, v{vt}')
        fs = list(firsts)
        if len(fs) == 1: a(f'v_and_b32 v{vacc}, s{sMASK}, v{fs[0]}')
        else:
            if len(fs) % 2: a(f'v_or3_b32 v{vacc}, v{fs[0]}, v{fs[1]}, v{fs[2]}'); fs = fs[3:]
            else: a(f'v_or_b32 v{vacc}, v{fs[0]}, v{fs[1]}'); fs = fs[2:]
            while fs: a(f'v_or3_b32 v{vacc}, v{vacc}, v{fs[0]}, v{fs[1]}'); fs = fs[2:]
            a(f'v_and_b32 v{vacc}, s{sMASK}, v{vacc}')
        a(f'v_cmp_ne_u32 vcc, 0, v{vacc}\ns_cbranch_vccz {d}')
        a(f's_add_u32 s{sCNT}, s{sCNT}, 1')
        if local:
            a(f's_cmp_lt_u32 s{sCNT}, {fb}\ns_cbranch_scc1 {l}')
            if setslow: sig(F_S)
            a(f's_xor_b32 s{sb}, s{sb}, {WS_B}\nv_xor_b32 v{vt}, v{vt}, v{vd}')
        a(f's_cmp_lt_u32 s{sCNT}, {POLL_LIM}\ns_cbranch_scc1 {l}\ns_endpgm')
        a.lab(d)
        if ts and cnt is not None: a(f's_add_u32 s{TS0+2*cnt}, s{sCNT}, 1')
    def tagit(v, vt=VT): a(f'v_bfi_b32 v{v}, s{sMASK}, v{vt}, v{v}')
    def mktag():
        a(f'v_and_b32 v{VT}, 3, v0\nv_mul_u32_u24 v{VT}, 0x2d5, v{VT}\ns_add_u32 s{sE}, s{sE}, 1\nv_add_u32 v{VT}, s{sE}, v{VT}')
        a(f'v_add_u32 v{VTA}, s{sXC}, v{VT}\nv_and_b32 v{VT}, s{sMASK}, v{VT}\nv_and_b32 v{VTA}, s{sMASK}, v{VTA}')
    def red8(R, dst):
        a(f'v_pk_add_f32 {vr(R,2)}, {vr(R,2)}, {vr(R+4,2)}\nv_pk_add_f32 {vr(R+2,2)}, {vr(R+2,2)}, {vr(R+6,2)}')
        red4(R, dst)
    def red4(R, dst):
        a(f'v_permlane32_swap_b32 v{R}, v{R+2}\nv_permlane32_swap_b32 v{R+1}, v{R+3}')
        a(f'v_pk_add_f32 {vr(R,2)}, {vr(R,2)}, {vr(R+2,2)}')
        a(f'v_permlane16_swap_b32 v{R}, v{R+1}\nv_add_f32 v{dst}, v{R}, v{R+1}')
    def tree(R, n):
        st = 4
        while n > 1:
            for k in range(0, n, 2):
                for h in (0, 2): a(f'v_pk_add_f32 {vr(R + st*k + h, 2)}, {vr(R + st*k + h, 2)}, {vr(R + st*(k+1) + h, 2)}')
            st *= 2; n //= 2
    def sum4(R, vaddr, stride):
        for w in range(4): a(f'ds_read_b128 {vr(R + 4*w, 4)}, v{vaddr} offset:{stride*w}')
        a(f's_waitcnt lgkmcnt(2)\nv_pk_add_f32 {vr(R,2)}, {vr(R,2)}, {vr(R+4,2)}\nv_pk_add_f32 {vr(R+2,2)}, {vr(R+2,2)}, {vr(R+6,2)}')
        a(f's_waitcnt lgkmcnt(1)\nv_pk_add_f32 {vr(R,2)}, {vr(R,2)}, {vr(R+8,2)}\nv_pk_add_f32 {vr(R+2,2)}, {vr(R+2,2)}, {vr(R+10,2)}')
        a(f's_waitcnt lgkmcnt(0)\nv_pk_add_f32 {vr(R,2)}, {vr(R,2)}, {vr(R+12,2)}\nv_pk_add_f32 {vr(R+2,2)}, {vr(R+2,2)}, {vr(R+14,2)}')
    def imgw4(vaddr, V):
        a(f'ds_write2_b32 v{vaddr}, v{V}, v{V+1} offset0:0 offset1:2\nds_write2_b32 v{vaddr}, v{V+2}, v{V+3} offset0:8 offset1:10')
        a(f'ds_write2_b32 v{vaddr}, v{V}, v{V+1} offset0:33 offset1:35\nds_write2_b32 v{vaddr}, v{V+2}, v{V+3} offset0:41 offset1:43')
    AC = 24
    def two_pass(vrd, vidx, A2, W, waitw=None):
        for p in range(2):
            for s in range(8): a(f'ds_read_b128 {vr(A2 + 32*p + 4*s, 4)}, v{vrd} offset:{p*PASS + s*SIG}')
        if waitw: a(waitw)
        for p in range(2):
            for s in range(8):
                a(f's_waitcnt lgkmcnt({15 - (8*p + s)})')
                a(f'v_smfmac_f32_16x16x64_bf16 {vr(AC+4*p,4)}, {vr(A2 + 32*p + 4*s, 4)}, {vr(W + 8*s, 8)}, v{vidx}')
    def parity(dst, D):
        a(f'v_add_f32_dpp v{dst}, v{D+1}, v{D} row_ror:8 row_mask:0xf bank_mask:0x3')
        a(f'v_add_f32_dpp v{dst}, v{D+2}, v{D+3} row_ror:8 row_mask:0xf bank_mask:0xc')
    def oprec(dst):
        a(f's_lshl_b32 s{sT0}, s{sG}, 2\ns_add_u32 s{sT0}, s{sT0}, s{sB}\ns_lshl_b32 s{sT0}, s{sT0}, 3\ns_add_u32 s{sT0}, s{sT0}, s{sS}')
        a(f's_mul_i32 s{dst}, s{sT0}, {OPS}\ns_add_u32 s{dst}, s{dst}, {WS_OP}')
    def qprec(dst):
        a(f's_lshl_b32 s{dst}, s{sG}, 16\ns_lshr_b32 s{sT0}, s{sR}, 3\ns_lshl_b32 s{sT0}, s{sT0}, 12\ns_add_u32 s{dst}, s{dst}, s{sT0}')
        a(f's_and_b32 s{sT0}, s{sR}, 7\ns_lshl_b32 s{sT0}, s{sT0}, 9\ns_add_u32 s{dst}, s{dst}, s{sT0}\ns_add_u32 s{dst}, s{dst}, {WS_QP}')
    def qpaddr(v):
        a(f'v_lshrrev_b32 v16, 1, v7\nv_lshlrev_b32 v16, 14, v16\nv_lshl_add_u32 v16, v10, 8, v16\nv_and_b32 v17, 1, v7\nv_lshl_add_u32 v16, v17, 7, v16\nv_lshl_add_u32 v{v}, v9, 4, v16')
    def par_addr(vrd, vidx):
        a(f'v_and_b32 v{vrd}, 1, v0\nv_lshlrev_b32 v{vrd}, 4, v{vrd}\nv_lshl_add_u32 v{vrd}, v7, 5, v{vrd}\nv_lshl_add_u32 v{vrd}, v10, 7, v{vrd}\nv_add_u32 v{vrd}, s{sT3}, v{vrd}')
        a(f'v_bfe_u32 v{vidx}, v0, 1, 2\nv_mul_u32_u24 v{vidx}, 0x5555, v{vidx}')
    def imgbase(): a(f's_mul_i32 s{sT3}, s{sW}, {IMG}\ns_add_u32 s{sT3}, s{sT3}, {L_IMG}')
    def rdslow(vt):
        a(f'ds_read_b32 v{vt}, v13 offset:{F_S}\ns_waitcnt lgkmcnt(0)\nv_readfirstlane_b32 s{sSLOW}, v{vt}')
    def pubdup(V, vaddr, sbase):
        l = U('L_nodup')
        a(f's_cmp_eq_u32 s{sSLOW}, 0\ns_cbranch_scc1 {l}')
        a(f's_add_u32 s{sOFF}, s{sbase}, {WS_B}\ns_nop 1')
        tagit(V)
        a(f'buffer_store_dwordx4 {vr(V,4)}, v{vaddr}, {sr(rWS,4)}, s{sOFF} offen sc1')
        a.lab(l)
    def dump_ts(nstamps):
        a('s_waitcnt lgkmcnt(0)')
        a(f's_lshl_b32 s{sOFF}, s2, 3\ns_add_u32 s{sOFF}, s{sOFF}, s3\ns_lshl_b32 s{sOFF}, s{sOFF}, 6\ns_add_u32 s{sOFF}, s{sOFF}, {WS_TS}')
        a('s_mov_b64 exec, 1\nv_mov_b32 v2, 0')
        for k in range(nstamps):
            a(f'v_mov_b32 v3, s{TS0+2*k}\nbuffer_store_dword v3, v2, {sr(rWS,4)}, s{sOFF} offen offset:{4*k}')
    def zero_ts():
        if ts:
            for k in range(2, 16): a(f's_mov_b32 s{TS0+2*k}, 0')

    a.lab(f'{NAME}_kernel')
    stamp(0)
    a('s_cmp_ge_u32 s2, 256\ns_cbranch_scc1 L_end')
    a('s_load_dwordx16 s[8:23], s[0:1], 0\ns_load_dwordx8 s[24:31], s[0:1], 64\ns_load_dwordx2 s[32:33], s[0:1], 104')
    a(f's_cmp_lt_u32 s2, 8\ns_cbranch_scc0 L_nopf\ns_getpc_b64 {sr(sX,2)}')
    a.lab('L_pc')
    a(f'v_lshlrev_b32 v2, 7, v0\nv_cmp_gt_u32 vcc, L_codeend-L_pc, v2\ns_and_saveexec_b64 {sr(sT0,2)}, vcc\ns_cbranch_execz L_pfx')
    a(f'global_load_dword v63, v2, {sr(sX,2)}')
    a.lab('L_pfx')
    a('s_mov_b64 exec, -1')
    a.lab('L_nopf')
    a(f'v_lshrrev_b32 v1, 6, v0\nv_and_b32 v0, 63, v0\nv_readfirstlane_b32 s3, v1\nv_mov_b32 v13, {L_FL}\nv_and_b32 v8, 15, v0')
    a(f's_and_b32 s{sG}, s2, 7\ns_lshr_b32 s{sR}, s2, 3\ns_and_b32 s{sB}, s{sR}, 3')
    a(f's_lshr_b32 s{sS}, s{sR}, 2\ns_mov_b32 s34, 0x10000000\ns_mov_b32 s35, 0x20000\ns_movk_i32 s{sMASK}, {TAGMASK}\ns_and_b32 s{sW}, s3, 3')
    a('v_lshlrev_b32 v6, 4, v0\nv_lshrrev_b32 v7, 4, v0\nv_and_b32 v9, 7, v0\nv_bfe_u32 v10, v0, 3, 1\nv_mov_b32 v14, 1')
    a('s_cmp_lt_u32 s3, 4\ns_cbranch_scc1 L_A')

    W0, AR = 64, 32
    a(f's_cmp_gt_u32 s{sW}, 1\ns_cbranch_scc1 L_T23_issue')
    sSTEP, sSEG = sLO, sHI
    a(f's_lshr_b32 s{sT0}, s{sR}, 3\ns_and_b32 s{sT1}, s{sR}, 7')
    a(f'v_lshlrev_b32 v3, 10, v7\nv_lshl_add_u32 v11, v8, 4, v3\nv_lshl_add_u32 v3, v9, 4, v3\nv_lshl_add_u32 v3, v10, 3, v3')
    a(f's_cmp_eq_u32 s{sW}, 1\ns_cbranch_scc1 L_T1_par')
    a(f's_movk_i32 s{sSTEP}, 6144\ns_movk_i32 s{sSEG}, 1024\ns_cmp_eq_u32 s{sT0}, 1\ns_cselect_b32 s{sSEG}, 3072, s{sSEG}')
    a(f's_cselect_b32 s{sB1}, 2048, 0\ns_cmp_eq_u32 s{sT0}, 2\ns_cselect_b32 s{sB1}, 3072, s{sB1}')
    a(f's_lshl_b32 s{sT1}, s{sT1}, 7\ns_add_u32 s{sB1}, s{sB1}, s{sT1}\ns_mul_i32 s{sT1}, s{sG}, {64*6144}\ns_add_u32 s{sB1}, s{sB1}, s{sT1}\ns_lshl_b32 s{sB2}, s{sG}, 7')
    a('s_waitcnt lgkmcnt(0)')
    a(f's_mov_b32 s{rA}, s{pWM}\ns_mov_b32 s{rA+1}, s{pWM+1}\ns_mov_b32 s{rA+2}, {512*6144}\ns_mov_b32 s{rB}, s{pC}\ns_mov_b32 s{rB+1}, s{pC+1}')
    a(f's_load_dword s{sE}, s[32:33], 0')
    a(f's_cmp_ge_u32 s{sR}, 24\ns_cbranch_scc0 L_T01_go\ns_barrier\ns_branch L_T_setup')
    a.lab('L_T1_par')
    a(f's_movk_i32 s{sSTEP}, 8192\ns_movk_i32 s{sSEG}, 128')
    a(f's_lshl_b32 s{sB1}, s{sT1}, 19\ns_lshl_b32 s{sT2}, s{sG}, 10\ns_add_u32 s{sB1}, s{sB1}, s{sT2}\ns_lshl_b32 s{sT2}, s{sT0}, 8\ns_add_u32 s{sB1}, s{sB1}, s{sT2}\ns_lshl_b32 s{sB2}, s{sT1}, 7')
    a('s_waitcnt lgkmcnt(0)')
    a(f's_mov_b32 s{rA}, s{pWQ}\ns_mov_b32 s{rA+1}, s{pWQ+1}\ns_mov_b32 s{rA+2}, {512*8192}\ns_mov_b32 s{rB}, s{pX}\ns_mov_b32 s{rB+1}, s{pX+1}')
    a(f's_load_dword s{sE}, s[32:33], 0')
    a(f's_cmp_lt_u32 s{sR}, 8\ns_cbranch_scc0 L_T01_go\ns_barrier')
    if hold: spin(2, F_H, 1, sleep=1)
    a.lab('L_T01_go')
    stamp(1)
    a(f's_mov_b32 s{rA+3}, 0x20000\ns_movk_i32 s{rB+2}, 4096\ns_mov_b32 s{rB+3}, 0x20000')
    a(f'v_mul_u32_u24 v2, s{sSTEP}, v7\nv_lshl_add_u32 v2, v9, 4, v2\nv_mad_u32_u24 v2, v10, s{sSEG}, v2\ns_lshl_b32 s{sSTEP}, s{sSTEP}, 2')
    a(f'buffer_load_dwordx2 v[4:5], v3, {sr(rB,4)}, s{sB2} offen')
    a(f's_cmp_eq_u32 s{sW}, 0\ns_cbranch_scc1 L_T01_w')
    for j in range(4): a(f'buffer_load_dwordx4 {vr(AR+4*j,4)}, v11, {sr(rB,4)}, 0 offen offset:{256*j}')
    a.lab('L_T01_w')
    a(f's_cmp_ge_u32 s{sR}, 8\ns_cselect_b64 vcc, -1, 0')
    for i in range(16):
        if i >= NTH and (i - NTH) % 2 == 0:
            l = U('L_nw'); a(f's_cbranch_vccz {l}')
            if i == NTH: a('s_barrier')
            a(f's_waitcnt vmcnt({NTH-2})'); a.lab(l)
        a(f'buffer_load_dwordx4 {vr(W0+4*i,4)}, v2, {sr(rA,4)}, s{sB1} offen {hfl}')
        if i < 15: a(f's_add_u32 s{sB1}, s{sB1}, s{sSTEP}')
    a(f's_cbranch_vccnz L_T_setup\ns_cmp_eq_u32 s{sW}, 0\ns_cbranch_scc0 L_T_setup\ns_barrier\ns_branch L_T_setup')
    a.lab('L_T23_issue')
    a(f'v_lshrrev_b32 v2, 2, v8\nv_cmp_eq_u32 vcc, 1, v2\nv_mov_b32 v3, 0xff800000\nv_lshl_add_u32 v4, v8, 2, v13\nv_cndmask_b32 v3, 0, v3, vcc\nds_write_b32 v4, v3')
    a('s_waitcnt lgkmcnt(0)\ns_barrier')
    stamp(1)
    a(f's_load_dword s{sE}, s[32:33], 0')
    a.lab('L_T_setup')
    zero_ts()
    imgbase()
    a(f's_getreg_b32 s{sXC}, hwreg(HW_REG_XCC_ID, 0, 3)')
    if forceslow: a(f's_and_b32 s{sXC}, s{sR}, 1')
    a(f's_lshl_b32 s{sXC}, s{sXC}, 9')
    a(f'v_mov_b32 v16, 0\nv_mov_b32 v17, 0\nv_mov_b32 v18, 0\nv_mov_b32 v19, 0\nv_add_u32 v20, s{sT3}, v6')
    for k in range(4): a(f'ds_write_b128 v20, v[16:19] offset:{1024*k}')
    a(f's_mov_b32 exec_hi, 0\nds_write_b128 v20, v[16:19] offset:4096\nv_add_u32 v20, {L_Z}, v6\nds_write_b128 v20, v[16:19]\ns_mov_b32 exec_hi, -1')
    a(f'v_bfe_u32 v16, v0, 2, 1\nv_lshlrev_b32 v16, 7, v16\nv_lshl_add_u32 v16, v7, 5, v16\nv_lshl_add_u32 v16, v10, 4, v16\nv_add_u32 v12, s{sT3}, v16')
    VI = 63
    a(f'v_and_b32 v{VI}, 3, v0\nv_mul_u32_u24 v{VI}, 0x5555, v{VI}')
    a('s_waitcnt lgkmcnt(0)')
    mktag()
    a(f's_cmp_gt_u32 s{sW}, 1\ns_cbranch_scc1 L_T23_job')
    sig(F_E)
    a(f'v_lshrrev_b32 v16, 5, v0\nv_mul_u32_u24 v16, {PASS}, v16\nv_mul_u32_u24 v17, {SIG}, v9\nv_add3_u32 v16, v16, v17, s{sT3}')
    a('v_and_b32 v17, 1, v7\nv_lshlrev_b32 v17, 4, v17\nv_lshl_add_u32 v17, v10, 6, v17\nv_add_u32 v11, v16, v17')
    for i in range(8): a(f'v_mov_b32 v{AC+i}, 0')
    a(f's_cmp_eq_u32 s{sW}, 1\ns_cbranch_scc1 L_T1_job')
    a(f's_cmp_ge_u32 s{sR}, 24\ns_cbranch_scc1 L_T0_red')
    a('v_lshrrev_b32 v16, 1, v7\nv_lshlrev_b32 v16, 11, v16\nv_lshl_add_u32 v16, v10, 13, v16\nv_and_b32 v17, 1, v7\nv_lshl_add_u32 v16, v17, 7, v16\nv_lshl_add_u32 v2, v9, 4, v16')
    a(f's_lshl_b32 s{sB1}, s{sR}, 14\ns_lshl_b32 s{sT0}, s{sG}, 8\ns_add_u32 s{sB1}, s{sB1}, s{sT0}\ns_add_u32 s{sB1}, s{sB1}, {WS_MOD}\ns_add_u32 s{sB2}, s{sB1}, 4096')
    a(f's_mov_b32 s{sT0}, {f32(-math.log2(math.e))}')
    a('s_waitcnt vmcnt(16)')
    a('v_lshlrev_b32 v16, 16, v4\nv_and_b32 v17, 0xffff0000, v4\nv_lshlrev_b32 v18, 16, v5\nv_and_b32 v19, 0xffff0000, v5')
    for r in range(4): a(f'v_mul_f32 v{20+r}, s{sT0}, v{16+r}')
    for r in range(4): a(f'v_exp_f32 v{20+r}, v{20+r}')
    for r in range(4): a(f'v_add_f32 v{20+r}, 1.0, v{20+r}')
    for r in range(4): a(f'v_rcp_f32 v{20+r}, v{20+r}')
    for r in range(4): a(f'v_mul_f32 v{16+r}, v{16+r}, v{20+r}')
    for r in range(4): a(f'v_cvt_pk_bf16_f32 v{16+r}, v{16+r}, 0')
    imgw4(11, 16)
    two_pass(12, VI, 128, W0, waitw='s_waitcnt vmcnt(0)')
    tagit(AC); tagit(AC+4)
    a(f'buffer_store_dwordx4 {vr(AC,4)}, v2, {sr(rWS,4)}, s{sB1} offen sc1\nbuffer_store_dwordx4 {vr(AC+4,4)}, v2, {sr(rWS,4)}, s{sB2} offen sc1')
    sig(F_H)
    stamp(2)
    a('s_branch L_T_qk')
    a.lab('L_T0_red')
    a(f's_and_b32 s{sT1}, s{sS}, 1\ns_lshl_b32 s{sB1}, s{sT1}, 3\ns_add_u32 s{sB1}, s{sB1}, s{sG}\ns_lshl_b32 s{sB1}, s{sB1}, 14\ns_lshl_b32 s{sT0}, s{sB}, 11\ns_add_u32 s{sB1}, s{sB1}, s{sT0}')
    a(f's_add_u32 s{sB1}, s{sB1}, {WS_MOD + 8*16384}\ns_add_u32 s{sB2}, s{sB1}, 8192')
    a(f's_lshl_b32 s{sB3}, s{sB}, 13\ns_lshl_b32 s{sT1}, s{sT1}, 12\ns_add_u32 s{sB3}, s{sB3}, s{sT1}\ns_lshl_b32 s{sT0}, s{sG}, 8\ns_add_u32 s{sB3}, s{sB3}, s{sT0}\ns_add_u32 s{sB3}, s{sB3}, {WS_RD}')
    a(f'v_lshlrev_b32 v2, 4, v8\nv_lshl_add_u32 v3, v7, 2, v2\nv_add_u32 v3, {L_RED}, v3\nv_lshl_add_u32 v2, v7, 11, v2\nv_add_u32 v4, {L_RED}, v6')
    spin(16, F_P, 1, sleep=1)
    def lr():
        for sg in range(2):
            for j in range(2): a(f'buffer_load_dwordx4 {vr(W0 + 8*sg + 4*j, 4)}, v6, {sr(rWS,4)}, s{sB2 if sg else sB1} offen offset:{1024*j} sc1')
    poll(lr, [W0 + 4*k for k in range(4)], 16, cnt=13)
    red8(W0, 16); red8(W0 + 8, 17)
    a('ds_write2_b32 v3, v16, v17 offset0:0 offset1:64\ns_mov_b32 exec_hi, 0\nds_read_b128 v[16:19], v4\ns_waitcnt lgkmcnt(0)')
    tagit(16)
    a(f'buffer_store_dwordx4 v[16:19], v2, {sr(rWS,4)}, s{sB3} offen sc1\ns_mov_b32 exec_hi, -1')
    stamp(2)
    a('s_branch L_T_qk')
    a.lab('L_T1_job')
    a('s_waitcnt vmcnt(16)')
    X = 128
    for i in range(16):
        a(f'v_lshlrev_b32 v{X+2*i}, 16, v{AR+i}\nv_and_b32 v{X+2*i+1}, 0xffff0000, v{AR+i}')
    a(f'v_pk_add_f32 v[16:17], {vr(X,2)}, {vr(X+2,2)}')
    for i in range(2, 16): a(f'v_pk_add_f32 v[16:17], v[16:17], {vr(X+2*i,2)}')
    a('v_add_f32 v16, v16, v17')
    def rowsum(v):
        for k in (1, 2, 4, 8): a(f'v_add_f32_dpp v{v}, v{v}, v{v} row_ror:{k} row_mask:0xf bank_mask:0xf')
    rowsum(16)
    a(f'v_mul_f32 v16, {f32(-1.0/512)}, v16\nv_mov_b32 v17, v16\nv_mov_b32 v18, 0\nv_mov_b32 v19, 0')
    for i in range(16):
        a(f'v_pk_add_f32 {vr(X+2*i,2)}, {vr(X+2*i,2)}, v[16:17]\nv_pk_fma_f32 v[18:19], {vr(X+2*i,2)}, {vr(X+2*i,2)}, v[18:19]')
    a('v_add_f32 v18, v18, v19')
    rowsum(18)
    a(f'v_mov_b32 v19, {f32(1e-5)}\nv_fmac_f32 v19, {f32(1.0/512)}, v18\nv_rsq_f32 v19, v19')
    a('v_lshlrev_b32 v20, 16, v4\nv_and_b32 v21, 0xffff0000, v4\nv_lshlrev_b32 v22, 16, v5\nv_and_b32 v23, 0xffff0000, v5')
    for r in range(4): a(f'v_add_f32 v{20+r}, v{20+r}, v16')
    for r in range(4): a(f'v_mul_f32 v{20+r}, v{20+r}, v19')
    a(f'v_lshlrev_b32 v3, 11, v7\nv_lshl_add_u32 v3, v8, 4, v3\ns_and_b32 s{sT0}, s{sR}, 7\ns_lshl_b32 s{sB1}, s{sT0}, 14\ns_add_u32 s{sB1}, s{sB1}, {WS_MOD}\ns_add_u32 s{sB2}, s{sB1}, 8192')
    qpaddr(2)
    spin(16, F_E, 8)
    a('s_waitcnt vmcnt(0)' if g1 is None else f's_waitcnt vmcnt({g1})')
    stamp(2)
    def l1():
        for sg in range(2):
            for kp in range(8): a(f'buffer_load_dwordx4 {vr(X + 32*sg + 4*kp, 4)}, v3, {sr(rWS,4)}, s{sB2 if sg else sB1} offen offset:{256*kp} sc1')
    poll(l1, [X + 4*k for k in range(16)], 16, cnt=12)
    stamp(3)
    tree(X, 8); tree(X + 32, 8)
    for r in range(4): a(f'v_add_f32 v{X+r}, v{X+r}, v{20+r}')
    for r in range(4): a(f'v_fmac_f32 v{X+r}, v{X+32+r}, v{20+r}')
    for r in range(4): a(f'v_cvt_pk_bf16_f32 v{16+r}, v{X+r}, 0')
    imgw4(11, 16)
    qprec(sB1)
    a(f's_add_u32 s{sB2}, s{sB1}, 32768')
    two_pass(12, VI, 128, W0)
    tagit(AC, VTA); tagit(AC+4, VTA)
    a(f'buffer_store_dwordx4 {vr(AC,4)}, v2, {sr(rWS,4)}, s{sB1} offen\nbuffer_store_dwordx4 {vr(AC+4,4)}, v2, {sr(rWS,4)}, s{sB2} offen')
    sig(F_P)
    stamp(4)
    l, d = U('L_qs'), U('L_qsd')
    a(f's_mov_b32 s{sCNT}, 0')
    a.lab(l)
    a(f'ds_read_b64 v[16:17], v13 offset:{F_Q}\ns_waitcnt lgkmcnt(0)\nv_readfirstlane_b32 s{sT0}, v16\nv_readfirstlane_b32 s{sSLOW}, v17')
    a(f's_lshl_b32 s{sT1}, s{sSLOW}, 1\ns_max_u32 s{sT0}, s{sT0}, s{sT1}\ns_cmp_ge_u32 s{sT0}, 2\ns_cbranch_scc1 {d}')
    a(f's_add_u32 s{sCNT}, s{sCNT}, 1\ns_cmp_lt_u32 s{sCNT}, {SPIN_LIM}\ns_cbranch_scc1 {l}\ns_endpgm')
    a.lab(d)
    pubdup(AC, 2, sB1); pubdup(AC+4, 2, sB2)
    a('s_branch L_T_qk')
    a.lab('L_T23_job')
    a(f'v_not_b32 v16, v{VTA}\nv_mov_b32 v17, 0\nv_mov_b32 v18, 0\nv_mov_b32 v19, 0')
    a(f's_cmp_eq_u32 s{sW}, 2\ns_cbranch_scc1 L_T2_pre')
    qprec(sB1); qpaddr(2)
    a(f'v_not_b32 v16, v{VTA}\nv_mov_b32 v17, 0\ns_add_u32 s{sB2}, s{sB1}, 32768')
    a(f'buffer_store_dwordx4 v[16:19], v2, {sr(rWS,4)}, s{sB1} offen\nbuffer_store_dwordx4 v[16:19], v2, {sr(rWS,4)}, s{sB2} offen')
    a('s_branch L_T23_pre')
    a.lab('L_T2_pre')
    oprec(sB1)
    a(f'buffer_store_dwordx4 v[16:19], v6, {sr(rWS,4)}, s{sB1} offen\nbuffer_store_dwordx4 v[16:19], v6, {sr(rWS,4)}, s{sB1} offen offset:1024')
    a(f's_mov_b64 exec, 0xff\nbuffer_store_dwordx4 v[16:19], v6, {sr(rWS,4)}, s{sB1} offen offset:2048\ns_mov_b64 exec, -1')
    a.lab('L_T23_pre')
    a(f's_lshl_b32 s{sB1}, s{sG}, 16\ns_lshl_b32 s{sT0}, s{sB}, 14\ns_add_u32 s{sB1}, s{sB1}, s{sT0}\ns_and_b32 s{sT1}, s{sW}, 1\ns_lshl_b32 s{sT0}, s{sT1}, 13\ns_add_u32 s{sB1}, s{sB1}, s{sT0}\ns_add_u32 s{sB1}, s{sB1}, {WS_QP}')
    a('v_lshrrev_b32 v3, 5, v0\nv_and_b32 v2, 31, v0\nv_lshlrev_b32 v2, 4, v2\nv_lshl_add_u32 v2, v3, 12, v2')
    a(f's_mul_i32 s{sT1}, s{sT1}, 640\ns_add_u32 s{sT1}, s{sT1}, {L_Q}\nv_mul_u32_u24 v3, 320, v3\nv_and_b32 v11, 1, v7\nv_lshl_add_u32 v3, v11, 7, v3\nv_lshl_add_u32 v3, v9, 4, v3\nv_lshl_add_u32 v3, v10, 3, v3\nv_add_u32 v11, s{sT1}, v3')
    a('s_waitcnt vmcnt(0)')
    sig(F_E)
    spin(3, F_P, 1, sleep=1)
    stamp(2)
    def l3():
        for e in range(8): a(f'buffer_load_dwordx4 {vr(W0 + 4*e, 4)}, v2, {sr(rWS,4)}, s{sB1} offen offset:{512*e} sc1')
    poll(l3, [W0 + 4*k for k in range(8)], 3, local=(sB1, 4, 5), cnt=12, setslow=True)
    stamp(3)
    tree(W0, 8)
    a(f'v_cvt_pk_bf16_f32 v{W0}, v{W0}, v{W0+1}\nv_cvt_pk_bf16_f32 v{W0+1}, v{W0+2}, v{W0+3}\nds_write_b64 v11, {vr(W0,2)}')
    sig(F_Q)
    stamp(4)
    a.lab('L_T_qk')
    KF, QF, DD = 128, 192, 208
    a(f's_lshl_b32 s{sT1}, s{sW}, 14\nv_and_b32 v17, 3, v0\nv_lshrrev_b32 v18, 2, v8\nv_lshl_add_u32 v19, v17, 2, v18')
    a(f'v_xor_b32 v16, v7, v8\nv_lshlrev_b32 v16, 4, v16\nv_lshl_add_u32 v16, v19, 8, v16\nv_add_u32 v2, s{sT1}, v16')
    a('v_xor_b32 v3, 64, v2\nv_xor_b32 v4, 0x80, v2\nv_xor_b32 v5, 0xc0, v2')
    a(f'v_mul_u32_u24 v11, 320, v17\nv_lshl_add_u32 v11, v7, 4, v11\nv_add_u32 v11, {L_Q}, v11')
    a(f'v_lshl_add_u32 v20, v17, 2, v13')
    a(f's_lshl_b32 s{sT1}, s{sW}, 9\ns_add_u32 s{sT2}, s{sT1}, {L_P}\nv_and_b32 v18, 1, v18\nv_lshlrev_b32 v21, 3, v18\nv_lshl_add_u32 v21, v17, 4, v21\nv_lshl_add_u32 v21, v7, 6, v21\nv_lshl_add_u32 v21, v10, 8, v21\nv_add_u32 v21, s{sT2}, v21')
    a(f's_add_u32 s{sT2}, s{sT1}, {L_ORED}\nv_add_u32 v22, s{sT2}, v6')
    oprec(sB3)
    a(f's_add_u32 s{sB3}, s{sB3}, s{sT1}\ns_mov_b32 s{sT2}, {f32(SC)}')
    spin(16, F_K, 4, sleep=1)
    for t in range(4):
        for j in range(4):
            a(f'ds_read_b128 {vr(KF + 16*t + 4*j, 4)}, v{2+j} offset:{4096*t}')
    spin(16, F_Q, 2, extra=f'ds_read_b32 v17, v13 offset:{F_S}')
    stamp(5)
    for j in range(4): a(f'ds_read_b128 {vr(QF + 4*j, 4)}, v11 offset:{64*j}')
    a(f'v_readfirstlane_b32 s{sSLOW}, v17')
    for j in range(4):
        a(f's_waitcnt lgkmcnt({3-j})')
        for t in range(4):
            c = '0' if j == 0 else vr(DD + 4*t, 4)
            a(f'v_mfma_f32_16x16x32_bf16 {vr(DD + 4*t, 4)}, {vr(KF + 16*t + 4*j, 4)}, {vr(QF + 4*j, 4)}, {c}')
    for t in range(1, 4):
        for r in range(4):
            a(f'v_mov_b32_dpp v{DD+r}, v{DD+4*t+r} quad_perm:[0,1,2,3] row_mask:0xf bank_mask:{1<<t:#x}')
    a(f'v_max3_f32 v16, v{DD}, v{DD+1}, v{DD+2}\nv_max_f32 v16, v16, v{DD+3}')
    a('v_max_f32_dpp v16, v16, v16 row_ror:4 row_mask:0xf bank_mask:0xf')
    a('v_max_f32_dpp v16, v16, v16 row_ror:8 row_mask:0xf bank_mask:0xf')
    a(f's_mov_b32 exec_lo, 0x000f000f\ns_mov_b32 exec_hi, 0x000f000f\nds_max_f32 v20, v16 offset:{F_MX}')
    sig(F_M)
    spin(16, F_M, 4, extra=f'ds_read_b32 v17, v20 offset:{F_MX}')
    a(f'v_mul_f32 v17, s{sT2}, v17')
    for r in range(4): a(f'v_fma_f32 v{DD+r}, v{DD+r}, s{sT2}, -v17')
    for r in range(4): a(f'v_exp_f32 v{DD+r}, v{DD+r}')
    a(f'v_cvt_pk_bf16_f32 v18, v{DD}, v{DD+1}\nv_cvt_pk_bf16_f32 v19, v{DD+2}, v{DD+3}\nds_write_b64 v21, v[18:19]')
    sig(F_PR)
    stamp(6)
    WGT, WUP, WDN = 64, 128, 192
    srd(rA, pWG, 512*3584); srd(rB, pWU, 512*3584); srd(rC, pWD, 1792*1024)
    a(f's_lshl_b32 s{sT1}, s{sG}, 2\ns_add_u32 s{sT1}, s{sT1}, s{sS}')
    a(f's_mul_i32 s{sB1}, s{sW}, {128*3584}\ns_lshl_b32 s{sT0}, s{sT1}, 7\ns_add_u32 s{sB1}, s{sB1}, s{sT0}')
    a(f's_lshl_b32 s{sB2}, s{sT1}, 16\ns_lshl_b32 s{sT0}, s{sW}, 8\ns_add_u32 s{sB2}, s{sB2}, s{sT0}')
    a('v_lshrrev_b32 v2, 3, v0\nv_mul_u32_u24 v2, 3584, v2\nv_lshl_add_u32 v2, v9, 4, v2')
    a('v_lshlrev_b32 v3, 10, v7\nv_lshl_add_u32 v3, v8, 4, v3')
    a('s_mov_b32 exec_hi, 0\ns_barrier')
    sum4(32, 22, 2048)
    tagit(32, VTA)
    a(f'buffer_store_dwordx4 v[32:35], v6, {sr(rWS,4)}, s{sB3} offen')
    pubdup(32, 6, sB3)
    a('s_mov_b32 exec_hi, -1')
    stamp(7)
    a(f's_cmp_lt_u32 s{sR}, 16\ns_cbranch_scc1 L_T_notO\ns_barrier\ns_branch L_fin')
    a.lab('L_T_notO')
    a(f's_cmp_eq_u32 s{sG}, 7\ns_cbranch_scc1 L_fin')
    n = 0
    def tl(dst, va, rs, so):
        nonlocal n
        if n >= NTT and (n - NTT) % 2 == 0: a(f's_waitcnt vmcnt({NTT-2})')
        a(f'buffer_load_dwordx4 {vr(dst,4)}, v{va}, {sr(rs,4)}, s{so} offen {wfl}')
        n += 1
    for grp in range(4):
        if rot: a(f's_xor_b32 s{sT0}, s{sB}, {grp}\ns_mul_i32 s{sT0}, s{sT0}, {32*3584}\ns_add_u32 s{sOFF}, s{sB1}, s{sT0}')
        else: a(f's_add_u32 s{sOFF}, s{sB1}, {grp*32*3584}')
        for k in range(4):
            i = 4*grp + k
            tl(WGT + 4*i, 2, rA, sOFF); tl(WUP + 4*i, 2, rB, sOFF)
            if k < 3: a(f's_add_u32 s{sOFF}, s{sOFF}, {8*3584}')
    for grp in range(4):
        if rot: a(f's_xor_b32 s{sT0}, s{sB}, {grp}\ns_lshl_b32 s{sT0}, s{sT0}, 14\ns_add_u32 s{sOFF}, s{sB2}, s{sT0}')
        else: a(f's_add_u32 s{sOFF}, s{sB2}, {grp*16384}')
        for k in range(4):
            tl(WDN + 4*(4*grp + k), 3, rC, sOFF)
            if k < 3: a(f's_add_u32 s{sOFF}, s{sOFF}, 4096')
    GA, SB, CB, XX = 16, 18, 20, 22
    imgbase()
    srd(rB, pX, 4096)
    a(f'v_lshl_add_u32 v4, v9, 3, v7\nv_lshl_add_u32 v4, v10, 2, v4\nv_lshlrev_b32 v5, 1, v4')
    a(f's_lshl_b32 s{sT0}, s{sB}, 10\ns_lshl_b32 s{sT2}, s{sW}, 8\ns_add_u32 s{sT0}, s{sT0}, s{sT2}')
    a(f'buffer_load_ushort v{XX}, v5, {sr(rB,4)}, s{sT0} offen\nbuffer_load_ushort v{XX+1}, v5, {sr(rB,4)}, s{sT0} offen offset:128')
    par_addr(11, 5)
    for i in range(8): a(f'v_mov_b32 v{AC+i}, 0')
    a(f's_lshl_b32 s{sT2}, s{sB}, 1' if rot else f's_mov_b32 s{sT2}, 0')
    a(f'v_and_b32 v3, 1, v0\nv_lshlrev_b32 v32, 6, v3\nv_lshl_add_u32 v32, v10, 5, v32\nv_and_b32 v3, 1, v7\nv_lshl_add_u32 v32, v3, 4, v32\nv_lshrrev_b32 v3, 1, v7\nv_lshl_add_u32 v32, v3, 3, v32\nv_add_u32 v32, s{sT3}, v32')
    a(f'v_lshrrev_b32 v2, 1, v9\nv_xor_b32 v2, s{sT2}, v2\nv_xor_b32 v3, 4, v2\nv_mov_b32 v33, {SIG}\nv_mad_u32_u24 v2, v2, v33, v32\nv_mad_u32_u24 v3, v3, v33, v32')
    a(f'v_xor_b32 v62, s{sT2}, v9\nv_mul_u32_u24 v62, {SIG}, v62\nv_lshl_add_u32 v62, v7, 5, v62\nv_lshl_add_u32 v62, v10, 3, v62\nv_add_u32 v62, s{sT3}, v62')
    a(f's_lshl_b32 s{sT0}, s{sW}, 9\ns_add_u32 s{sT2}, s{sT0}, {L_X1}\nv_lshl_add_u32 v4, v4, 2, s{sT2}')
    a(f's_add_u32 s{sT2}, s{sT0}, {L_RS}\nv_lshlrev_b32 v32, 4, v8\nv_lshl_add_u32 v32, v7, 2, v32\nv_add_u32 v32, s{sT2}, v32')
    a(f's_lshl_b32 s{sB1}, s{sB}, 14\ns_lshl_b32 s{sT2}, s{sW}, 12\ns_add_u32 s{sB1}, s{sB1}, s{sT2}\ns_add_u32 s{sB1}, s{sB1}, {WS_YP}')
    a(f's_lshl_b32 s{sB2}, s{sB}, 16\ns_lshl_b32 s{sT2}, s{sW}, 14\ns_add_u32 s{sB2}, s{sB2}, s{sT2}\ns_lshl_b32 s{sT2}, s{sT1}, 7\ns_add_u32 s{sB2}, s{sB2}, s{sT2}\ns_add_u32 s{sB2}, s{sB2}, {WS_FP}')
    a('s_barrier')
    a(f'ds_read2st64_b32 {vr(GA,2)}, v32 offset0:0 offset1:1\nds_read2st64_b32 {vr(SB,2)}, v32 offset0:16 offset1:17\nds_read2st64_b32 {vr(CB,2)}, v32 offset0:24 offset1:25')
    stamp(15)
    AR2 = 32
    def l5():
        for k in range(4): a(f'buffer_load_dwordx4 {vr(AR + 4*k, 4)}, v6, {sr(rWS,4)}, s{sB1} offen offset:{1024*k} sc1')
    a('s_waitcnt lgkmcnt(0)')
    a(f'v_add_f32 v{CB}, 1.0, v{CB}\nv_add_f32 v{CB+1}, 1.0, v{CB+1}')
    poll(l5, [AR + 4*k for k in range(4)], 48, cnt=14)
    stamp(8)
    red8(AR, 48); red8(AR + 8, 49)
    a(f'v_lshlrev_b32 v{XX}, 16, v{XX}\nv_lshlrev_b32 v{XX+1}, 16, v{XX+1}')
    a(f'v_fmac_f32 v{XX}, v48, v{GA}\nv_fmac_f32 v{XX+1}, v49, v{GA+1}')
    a(f'ds_write2_b32 v4, v{XX}, v{XX+1} offset0:0 offset1:64')
    a(f'v_add_f32 v48, v{XX}, v{XX+1}\nv_mul_f32 v49, v{XX}, v{XX}\nv_fmac_f32 v49, v{XX+1}, v{XX+1}')
    for k in (1, 2, 4, 8):
        a(f'v_add_f32_dpp v48, v48, v48 row_ror:{k} row_mask:0xf bank_mask:0xf\nv_add_f32_dpp v49, v49, v49 row_ror:{k} row_mask:0xf bank_mask:0xf')
    a('v_add_f32_dpp v48, v48, v48 row_bcast:15 row_mask:0xa bank_mask:0xf\nv_add_f32_dpp v49, v49, v49 row_bcast:15 row_mask:0xa bank_mask:0xf')
    a('v_add_f32_dpp v48, v48, v48 row_bcast:31 row_mask:0xc bank_mask:0xf\nv_add_f32_dpp v49, v49, v49 row_bcast:31 row_mask:0xc bank_mask:0xf')
    a(f's_lshl_b32 s{sT0}, s{sW}, 3\ns_add_u32 s{sT0}, s{sT0}, {L_ST}\nv_mov_b32 v50, s{sT0}\nv_mov_b32 v51, {L_ST}')
    a('s_mov_b32 exec_lo, 0\ns_mov_b32 exec_hi, 0x80000000\nds_write_b64 v50, v[48:49]\ns_mov_b64 exec, -1')
    a('s_waitcnt lgkmcnt(0)\ns_barrier')
    a('ds_read_b128 v[32:35], v51\nds_read_b128 v[36:39], v51 offset:16')
    a('s_waitcnt lgkmcnt(0)\nv_pk_add_f32 v[32:33], v[32:33], v[34:35]\nv_pk_add_f32 v[36:37], v[36:37], v[38:39]\nv_pk_add_f32 v[32:33], v[32:33], v[36:37]')
    a(f'v_mul_f32 v32, {f32(1.0/512)}, v32\nv_mul_f32 v33, {f32(1.0/512)}, v33\nv_fma_f32 v33, -v32, v32, v33\nv_max_f32 v33, 0, v33\nv_add_f32 v33, {f32(1e-5)}, v33\nv_rsq_f32 v33, v33')
    a(f'v_sub_f32 v34, v{XX}, v32\nv_sub_f32 v35, v{XX+1}, v32\nv_mul_f32 v34, v34, v33\nv_mul_f32 v35, v35, v33')
    a(f'v_fma_f32 v34, v34, v{CB}, v{SB}\nv_fma_f32 v35, v35, v{CB+1}, v{SB+1}\nv_cvt_pk_bf16_f32 v60, v34, 0\nv_cvt_pk_bf16_f32 v61, v35, 0')
    a('ds_write2_b32 v2, v60, v60 offset0:0 offset1:33\nds_write2_b32 v3, v61, v61 offset0:0 offset1:33')
    AO = [32 + 4*s for s in range(7)] + [16]
    for s in range(8): a(f'ds_read_b128 {vr(AO[s], 4)}, v11 offset:{s*SIG}')
    a(f's_lshl_b32 s{sT0}, s{sW}, 9\ns_add_u32 s{sT0}, s{sT0}, {L_RED}\nv_lshl_add_u32 v2, v0, 3, s{sT0}\nv_lshlrev_b32 v3, 3, v0\nv_add_u32 v3, {L_RED}, v3')
    a('v_lshlrev_b32 v4, 13, v10\nv_lshl_add_u32 v4, v7, 12, v4\nv_lshl_add_u32 v4, v9, 4, v4')
    for s in range(8):
        a(f's_waitcnt lgkmcnt({7-s})')
        a(f'v_smfmac_f32_16x16x64_bf16 {vr(AC,4)}, {vr(AO[s],4)}, {vr(WGT+8*s,8)}, v5')
        a(f'v_smfmac_f32_16x16x64_bf16 {vr(AC+4,4)}, {vr(AO[s],4)}, {vr(WUP+8*s,8)}, v5')
    parity(20, AC); parity(21, AC+4)
    a('ds_write_b64 v2, v[20:21]')
    for i in range(4): a(f'v_mov_b32 v{AC+i}, 0')
    a(f's_mov_b32 s{sT0}, {f32(-math.log2(math.e))}')
    a('s_waitcnt lgkmcnt(0)\ns_barrier')
    stamp(9)
    for w in range(4): a(f'ds_read_b64 {vr(32 + 2*w, 2)}, v3 offset:{512*w}')
    a('s_waitcnt lgkmcnt(2)\nv_pk_add_f32 v[32:33], v[32:33], v[34:35]\ns_waitcnt lgkmcnt(0)\nv_pk_add_f32 v[36:37], v[36:37], v[38:39]\nv_pk_add_f32 v[32:33], v[32:33], v[36:37]')
    a(f'v_mul_f32 v32, s{sT0}, v32\nv_exp_f32 v32, v32\nv_add_f32 v32, 1.0, v32\nv_rcp_f32 v32, v32\nv_mul_f32 v32, v32, v33\nv_cvt_pk_bf16_f32 v20, v32, 0')
    a('ds_write2_b32 v62, v20, v20 offset0:0 offset1:33')
    for s in range(8): a(f'ds_read_b128 {vr(AO[s], 4)}, v12 offset:{s*SIG}')
    for s in range(8):
        a(f's_waitcnt lgkmcnt({7-s})')
        a(f'v_smfmac_f32_16x16x64_bf16 {vr(AC,4)}, {vr(AO[s],4)}, {vr(WDN+8*s,8)}, v{VI}')
    a('s_mov_b32 exec_hi, 0')
    tagit(AC)
    a(f'buffer_store_dwordx4 {vr(AC,4)}, v4, {sr(rWS,4)}, s{sB2} offen sc1')
    stamp(10)
    a('s_branch L_fin')

    VR, PX, PV_, WO, ACL, ONE = 32, 96, 160, 192, 20, 16
    a.lab('L_A')
    a(f's_lshl_b32 s{sB1}, s{sB}, 24\ns_lshl_b32 s{sT0}, s{sG}, 21\ns_or_b32 s{sB1}, s{sB1}, s{sT0}')
    a(f's_lshl_b32 s{sT0}, s{sS}, 16\ns_or_b32 s{sB1}, s{sB1}, s{sT0}\ns_lshl_b32 s{sT1}, s3, 14\ns_or_b32 s{sB1}, s{sB1}, s{sT1}')
    a(f's_and_b32 s{sT0}, s{sR}, 15\ns_lshl_b32 s{sT0}, s{sT0}, 10\ns_or_b32 s{sB1}, s{sB1}, s{sT0}\ns_or_b32 s{sB1}, s{sB1}, 0x180000')
    a(f's_mov_b32 m0, s{sT1}')
    a('v_lshlrev_b32 v2, 6, v7\nv_xor_b32 v2, v6, v2\nv_xor_b32 v3, 16, v2\nv_xor_b32 v4, 32, v2\nv_xor_b32 v5, 48, v2')
    a(f's_mov_b32 s{sLO}, 0x05040100\ns_mov_b32 s{sHI}, 0x07060302')
    a('s_waitcnt lgkmcnt(0)')
    stamp(1)
    a(f's_load_dword s{sE}, s[32:33], 0')
    srd(rA, pK, 0x4000000); srd(rB, pV, 0x4000000)
    def setup_A():
        a('s_barrier')
        zero_ts()
        a(f's_getreg_b32 s{sXC}, hwreg(HW_REG_XCC_ID, 0, 3)')
        if forceslow: a(f's_and_b32 s{sXC}, s{sR}, 1')
        a(f's_lshl_b32 s{sXC}, s{sXC}, 9\ns_waitcnt lgkmcnt(0)')
        mktag()
        sig(F_E)
    def perm_pair(k):
        blk, p = k >> 2, k & 3
        r0 = VR + 32*blk + 8*p
        for c in range(4):
            a(f'v_perm_b32 v{PX + 32*blk + 8*c + p}, v{r0+4+c}, v{r0+c}, s{sLO}')
            a(f'v_perm_b32 v{PX + 32*blk + 8*c + 4 + p}, v{r0+4+c}, v{r0+c}, s{sHI}')
    NMAX = max(math.ceil(x) for x in (NH, NS, NO))
    PAIRS_IN_LOOP = (16 - NMAX) // 2
    def stream(N, with_wo, early_setup):
        seq = [('K', i) for i in range(16)] + [('V', i) for i in range(16)]
        if with_wo: seq = seq[:wopos] + [('O', i) for i in range(16)] + seq[wopos:]
        kl = max(n for n, x in enumerate(seq) if x[0] == 'K')
        done_pairs = 0; ksig = False; did_setup = early_setup
        for n, (t, i) in enumerate(seq):
            w = int(N*(n+1)) - int(N*n)
            if n >= w:
                if not did_setup: setup_A(); did_setup = True
                a(f's_waitcnt vmcnt({w-1})')
            landed = n - w + 1
            if t == 'O':
                a(f'buffer_load_dwordx4 {vr(WO + 4*i, 4)}, v11, {sr(rC,4)}, s{sB2} offen {ofl}')
                if i < 15:
                    cur = ((i & 3) * 128 + (i >> 2)) * 1024; nxt = (((i+1) & 3) * 128 + ((i+1) >> 2)) * 1024
                    a(f's_add_u32 s{sB2}, s{sB2}, {(nxt - cur) & 0xffffffff:#x}')
            else:
                if i: a(f's_xor_b32 s{sOFF}, s{sB1}, {i << 10}')
                so = sOFF if i else sB1
                if t == 'K':
                    a(f'buffer_load_dwordx4 v{2 + (i & 3)}, {sr(rA,4)}, s{so} offen {kvfl} lds')
                    if i < 15: a('s_add_u32 m0, m0, 0x400')
                else:
                    a(f'buffer_load_dwordx4 {vr(VR + 4*i, 4)}, v6, {sr(rB,4)}, s{so} offen {kvfl}')
            if not ksig and landed > kl: sig(F_K); ksig = True
            vl = sum(1 for x in seq[:max(landed, 0)] if x[0] == 'V')
            while done_pairs < PAIRS_IN_LOOP and vl >= 2*done_pairs + 2:
                perm_pair(done_pairs); done_pairs += 1
        assert ksig and done_pairs == PAIRS_IN_LOOP, (ksig, done_pairs)
    a(f's_cmp_ge_u32 s{sR}, 16\ns_cbranch_scc1 L_A_O')
    if hold:
        a(f's_cmp_ge_u32 s{sR}, 8\ns_cbranch_scc1 L_A_S')
        setup_A()
        spin(16, F_H, 1, sleep=1)
        stream(NH, False, True)
        a('s_branch L_A_pv')
        a.lab('L_A_S')
    stream(NS, False, False)
    a('s_branch L_A_pv')
    a.lab('L_A_O')
    srd(rC, pWO, 4096*1024)
    a('v_lshlrev_b32 v11, 13, v7\nv_lshl_add_u32 v11, v10, 15, v11\nv_lshl_add_u32 v11, v9, 4, v11')
    a(f's_lshl_b32 s{sB2}, s{sG}, 19\ns_bfe_u32 s{sT0}, s{sR}, 0x30001\ns_lshl_b32 s{sT0}, s{sT0}, 7\ns_add_u32 s{sB2}, s{sB2}, s{sT0}')
    a(f's_and_b32 s{sT0}, s{sW}, 1\ns_lshl_b32 s{sT0}, s{sT0}, 16\ns_add_u32 s{sB2}, s{sB2}, s{sT0}\ns_lshr_b32 s{sT0}, s{sW}, 1\ns_lshl_b32 s{sT0}, s{sT0}, 12\ns_add_u32 s{sB2}, s{sB2}, s{sT0}')
    stream(NO, True, False)
    a.lab('L_A_pv')
    stamp(2)
    a(f's_lshl_b32 s{sT1}, s{sW}, 9\ns_add_u32 s{sT1}, s{sT1}, {L_P}\nv_and_b32 v11, 3, v0\nv_lshlrev_b32 v11, 4, v11\nv_lshl_add_u32 v11, v7, 6, v11\nv_add_u32 v11, s{sT1}, v11')
    for u in range(4): a(f'v_mov_b32 v{2+u}, {L_Z}')
    for u in range(4): a(f'v_mov_b32_dpp v{2+u}, v11 quad_perm:[0,1,2,3] row_mask:0xf bank_mask:{1<<u:#x}')
    for i in range(4): a(f'v_mov_b32 v{ONE+i}, 0x3f803f80')
    a(f's_lshl_b32 s{sT0}, s3, 11\ns_add_u32 s{sT0}, s{sT0}, {L_ORED}\nv_add_u32 v11, s{sT0}, v6')
    a(f's_lshl_b32 s{sT0}, s3, 2\ns_add_u32 s{sT0}, s{sT0}, {L_LS}\nv_add_u32 v12, s{sT0}, v6')
    assert PAIRS_IN_LOOP >= 4
    spin(20, F_PR, 4, extra=f'ds_read_b32 v21, v13 offset:{F_S}')
    stamp(3)
    for blk in range(2):
        for u in range(4): a(f'ds_read_b128 {vr(PV_ + 16*blk + 4*u, 4)}, v{2+u} offset:{256*blk}')
    a(f'v_readfirstlane_b32 s{sSLOW}, v21')
    def pv(blk, j):
        x, u = j >> 2, j & 3
        c = '0' if (blk == 0 and u == 0) else vr(AC + 4*x, 4)
        a(f'v_mfma_f32_16x16x32_bf16 {vr(AC + 4*x, 4)}, {vr(PX + 32*blk + 4*j, 4)}, {vr(PV_ + 16*blk + 4*u, 4)}, {c}')
    for u in range(4):
        a(f's_waitcnt lgkmcnt({7-u})')
        pv(0, u); pv(0, 4 + u)
    a('s_waitcnt lgkmcnt(0)')
    a(f'v_mfma_f32_16x16x32_bf16 {vr(ACL,4)}, {vr(ONE,4)}, {vr(PV_,4)}, 0')
    a(f'v_mfma_f32_16x16x32_bf16 {vr(ACL,4)}, {vr(ONE,4)}, {vr(PV_+16,4)}, {vr(ACL,4)}')
    stamp(4)
    for k in range(PAIRS_IN_LOOP, 8):
        a(f's_waitcnt vmcnt({14 - 2*k})')
        if k == 7: stamp(5)
        perm_pair(k)
        if k == 6: a(f's_mov_b64 exec, 15\nds_write_b32 v12, v{ACL}\ns_mov_b64 exec, -1')
    for j in range(8): pv(1, j)
    a(f'ds_write_b128 v11, {vr(AC,4)}\nds_write_b128 v11, {vr(AC+4,4)} offset:1024')
    a('s_waitcnt lgkmcnt(0)\ns_barrier')
    stamp(6)
    a('s_cmp_eq_u32 s3, 0\ns_cbranch_scc0 L_A_done')
    a(f'v_add_u32 v12, {L_LS}, v6\nv_lshl_add_u32 v11, v0, 2, v13\ns_mov_b64 exec, 15\nds_read_b128 v[36:39], v12\nds_read_b32 v33, v11 offset:{F_MX}')
    oprec(sB1)
    a(f's_add_u32 s{sB1}, s{sB1}, 2048\nv_mov_b32 v32, v{VTA}\nv_mov_b32 v35, 0')
    a(f's_waitcnt lgkmcnt(0)\nv_add_f32 v36, v36, v37\nv_add_f32 v38, v38, v39\nv_mul_f32 v33, {f32(SC)}, v33\nv_add_f32 v34, v36, v38')
    a(f'buffer_store_dwordx4 v[32:35], v6, {sr(rWS,4)}, s{sB1} offen')
    pubdup(32, 6, sB1)
    a('s_mov_b64 exec, -1')
    a.lab('L_A_done')
    a(f's_cmp_lt_u32 s{sR}, 16\ns_cbranch_scc1 L_A_notO')
    imgbase()
    par_addr(11, 5)
    for i in range(8): a(f'v_mov_b32 v{AC+i}, 0')
    a(f'v_lshrrev_b32 v16, 5, v0\nv_and_b32 v17, 31, v0\nv_mul_u32_u24 v3, {OPS}, v16\nv_lshl_add_u32 v3, v17, 4, v3\ns_lshl_b32 s{sT0}, s{sW}, 9\nv_add_u32 v3, s{sT0}, v3')
    a(f'v_lshrrev_b32 v18, 2, v0\nv_mul_u32_u24 v4, {OPS}, v18\nv_and_b32 v19, 3, v0\nv_lshl_add_u32 v4, v19, 4, v4')
    a(f's_and_b32 s{sT0}, s{sR}, 1\ns_lshl_b32 s{sT1}, s{sG}, 1\ns_add_u32 s{sT0}, s{sT0}, s{sT1}\ns_mul_i32 s{sB2}, s{sT0}, {16*OPS}\ns_add_u32 s{sB2}, s{sB2}, {WS_OP}')
    a(f's_lshl_b32 s{sT0}, s{sW}, 8\ns_add_u32 s{sT0}, s{sT0}, {L_WT}')
    a(f'v_and_b32 v20, 1, v18\nv_lshlrev_b32 v20, 5, v20\nv_lshl_add_u32 v20, v19, 6, v20\nv_lshl_add_u32 v20, v16, 4, v20\nv_bfe_u32 v21, v0, 3, 2\nv_lshl_add_u32 v20, v21, 2, v20\nv_add_u32 v20, s{sT0}, v20')
    a(f'v_lshlrev_b32 v21, 6, v19\nv_lshl_add_u32 v21, v16, 5, v21\nv_add_u32 v21, s{sT0}, v21')
    a(f'v_mul_u32_u24 v22, {PASS}, v16\nv_lshrrev_b32 v23, 1, v8\nv_mul_u32_u24 v23, {SIG}, v23\nv_add3_u32 v22, v22, v23, s{sT3}')
    a('v_and_b32 v23, 1, v0\nv_lshl_add_u32 v22, v23, 6, v22\nv_and_b32 v23, 1, v7\nv_lshl_add_u32 v22, v23, 4, v22')
    a(f'v_lshlrev_b32 v23, 3, v23\nv_lshl_add_u32 v23, v16, 7, v23\nv_lshl_add_u32 v23, v9, 4, v23\nv_lshl_add_u32 v23, v10, 2, v23\ns_lshl_b32 s{sT0}, s{sW}, 9\ns_add_u32 s{sT0}, s{sT0}, {L_RED}\nv_add_u32 v23, s{sT0}, v23')
    G = 40; ST = 72
    def l4():
        a(f'buffer_load_dwordx4 {vr(ST,4)}, v4, {sr(rWS,4)}, s{sB2} offen offset:2048 sc1')
        for bb in range(2):
            for jj in range(4):
                o = (bb*8 + 2*jj) * OPS
                if o: a(f's_add_u32 s{sOFF}, s{sB2}, {o}')
                a(f'buffer_load_dwordx4 {vr(G + 16*bb + 4*jj, 4)}, v3, {sr(rWS,4)}, s{sOFF if o else sB2} offen sc1')
    if osleep: a(f's_sleep {osleep}')
    stamp(7)
    poll(l4, [ST] + [G + 4*k for k in range(8)], 17, local=(sB2, 2, 12), cnt=14)
    stamp(8)
    a(f'v_max_f32_dpp v17, v{ST+1}, v{ST+1} row_ror:4 row_mask:0xf bank_mask:0xf')
    a('v_max_f32_dpp v17, v17, v17 row_ror:8 row_mask:0xf bank_mask:0xf')
    a('v_mov_b32 v18, v17\nv_permlane16_swap_b32 v17, v18\nv_max_f32 v17, v17, v18')
    a(f'v_sub_f32 v17, v{ST+1}, v17\nv_exp_f32 v17, v17\nv_mul_f32 v18, v17, v{ST+2}')
    a('v_add_f32_dpp v18, v18, v18 row_ror:4 row_mask:0xf bank_mask:0xf')
    a('v_add_f32_dpp v18, v18, v18 row_ror:8 row_mask:0xf bank_mask:0xf')
    a('v_mov_b32 v19, v18\nv_permlane16_swap_b32 v18, v19\nv_add_f32 v18, v18, v19\nv_rcp_f32 v18, v18\nv_mul_f32 v17, v17, v18')
    a(f'ds_write_b32 v20, v17\nds_read_b128 {vr(ST,4)}, v21\nds_read_b128 {vr(ST+4,4)}, v21 offset:16')
    for bb in range(2):
        a(f's_waitcnt lgkmcnt({1-bb})')
        for r in range(4): a(f'v_mul_f32 v{G+16*bb+r}, v{G+16*bb+r}, v{ST+4*bb}')
        for jj in range(1, 4):
            for r in range(4): a(f'v_fmac_f32 v{G+16*bb+r}, v{G+16*bb+4*jj+r}, v{ST+4*bb+jj}')
    for r in range(4): a(f'v_permlane32_swap_b32 v{G+r}, v{G+16+r}')
    for r in range(4): a(f'v_add_f32 v{G+r}, v{G+r}, v{G+16+r}')
    for r in range(4): a(f'v_cvt_pk_bf16_f32 v{G+r}, v{G+r}, 0')
    imgw4(22, G)
    two_pass(11, 5, 96, WO)
    parity(16, AC); parity(17, AC+4)
    a('ds_write2_b32 v23, v16, v17 offset0:0 offset1:64')
    a(f's_and_b32 s{sT0}, s{sR}, 1\ns_lshl_b32 s{sB1}, s{sT0}, 15\ns_bfe_u32 s{sT0}, s{sR}, 0x30001\ns_lshl_b32 s{sT0}, s{sT0}, 11\ns_add_u32 s{sB1}, s{sB1}, s{sT0}\ns_lshl_b32 s{sT0}, s{sG}, 8\ns_add_u32 s{sB1}, s{sB1}, s{sT0}\ns_add_u32 s{sB1}, s{sB1}, {WS_YP}')
    a(f'v_lshlrev_b32 v2, 14, v7\nv_lshl_add_u32 v2, v8, 4, v2\nv_add_u32 v3, {L_RED}, v6')
    a('s_waitcnt lgkmcnt(0)\ns_barrier')
    stamp(9)
    a(f's_cmp_eq_u32 s{sW}, 0\ns_cbranch_scc0 L_fin')
    a('s_mov_b32 exec_hi, 0')
    sum4(32, 3, 512)
    tagit(32)
    a(f'buffer_store_dwordx4 v[32:35], v2, {sr(rWS,4)}, s{sB1} offen sc1')
    stamp(10)
    a('s_branch L_fin')
    a.lab('L_A_notO')
    a(f's_cmp_eq_u32 s{sG}, 7\ns_cbranch_scc1 L_fin')
    a(f's_lshl_b32 s{sB1}, s{sB}, 13\ns_lshl_b32 s{sT1}, s{sW}, 11\ns_add_u32 s{sB1}, s{sB1}, s{sT1}\ns_add_u32 s{sB1}, s{sB1}, {WS_RD}\ns_add_u32 s{sT1}, s{sT1}, {L_RS}\nv_add_u32 v2, s{sT1}, v6')
    if osleep: a(f's_sleep {osleep}')
    def l6():
        for j in range(2): a(f'buffer_load_dwordx4 {vr(40+4*j,4)}, v6, {sr(rWS,4)}, s{sB1} offen offset:{1024*j} sc1')
    poll(l6, [40, 44], 19, cnt=13)
    a('ds_write_b128 v2, v[40:43]\nds_write_b128 v2, v[44:47] offset:1024\ns_waitcnt lgkmcnt(0)\ns_barrier')
    a(f's_cmp_lt_u32 s{sG}, 4\ns_cselect_b32 s{sT0}, s3, 0\ns_cmp_eq_u32 s{sT0}, 3\ns_cbranch_scc1 L_final')
    a('s_barrier\ns_barrier\ns_branch L_fin')
    a.lab('L_final')
    a(f's_lshl_b32 s{sT1}, s{sG}, 2\ns_add_u32 s{sT1}, s{sT1}, s{sS}')
    a(f's_lshr_b32 s{sT2}, s{sT1}, 1\ns_and_b32 s{sT3}, s{sT1}, 1')
    a(f's_lshl_b32 s{sT0}, s{sT1}, 7\ns_add_u32 s{sT0}, s{sT0}, {L_RS + 2048}\nv_lshlrev_b32 v18, 4, v9\nv_lshl_add_u32 v18, v7, 2, v18\nv_add_u32 v18, s{sT0}, v18\nds_read_b32 v20, v18')
    a(f's_lshl_b32 s{sT0}, s{sT2}, 6\ns_lshl_b32 s{sT3}, s{sT3}, 2\ns_add_u32 s{sT0}, s{sT0}, s{sT3}')
    a(f'v_lshl_add_u32 v21, v9, 3, v7\nv_add_u32 v21, s{sT0}, v21')
    a(f'v_lshlrev_b32 v22, 2, v21\nv_lshlrev_b32 v21, 1, v21\nv_add_u32 v22, {L_X1}, v22')
    a(f's_lshl_b32 s{sB1}, s{sB}, 4\ns_add_u32 s{sB1}, s{sB1}, s{sT1}\ns_lshl_b32 s{sB1}, s{sB1}, 12\ns_add_u32 s{sB1}, s{sB1}, {WS_FP}')
    srd(rA, pOUT, 4096)
    a(f's_lshl_b32 s{sB2}, s{sB}, 10')
    for i in range(4): a(f'v_mov_b32 v{44+i}, 0')
    a('s_barrier\nds_read_b32 v23, v22\ns_barrier')
    stamp(7)
    if fsleep: a(f's_sleep {fsleep}')
    def fl():
        for j in range(3): a(f'buffer_load_dwordx4 {vr(32+4*j,4)}, v6, {sr(rWS,4)}, s{sB1} offen offset:{1024*j} sc1')
        a(f's_mov_b32 exec_hi, 0\nbuffer_load_dwordx4 v[44:47], v6, {sr(rWS,4)}, s{sB1} offen offset:3072 sc1')
    def fchk():
        a(f'v_xor_b32 v44, v44, v{VT}\ns_mov_b32 exec_hi, -1')
        for j in range(3): a(f'v_xor_b32 v{32+4*j}, v{32+4*j}, v{VT}')
    poll(fl, [32, 36, 40, 44], 19, pre_check=fchk, cnt=14)
    stamp(8)
    a('v_pk_add_f32 v[32:33], v[32:33], v[40:41]\nv_pk_add_f32 v[34:35], v[34:35], v[42:43]')
    a('v_pk_add_f32 v[36:37], v[36:37], v[44:45]\nv_pk_add_f32 v[38:39], v[38:39], v[46:47]')
    red8(32, 24)
    a('v_add_f32_dpp v24, v24, v24 row_ror:8 row_mask:0xf bank_mask:0xf')
    a('s_waitcnt lgkmcnt(0)\nv_fma_f32 v24, v24, v20, v23\nv_cvt_pk_bf16_f32 v24, v24, v24')
    a('s_mov_b32 exec_lo, 0x00ff00ff\ns_mov_b32 exec_hi, 0x00ff00ff')
    a(f'buffer_store_short v24, v21, {sr(rA,4)}, s{sB2} offen')
    a(f's_cmp_eq_u32 s2, 0\ns_cbranch_scc0 L_fin')
    a(f's_mov_b64 exec, 1\nv_mov_b32 v24, s{sE}\nbuffer_store_dword v24, v6, {sr(rWS,4)}, 0 offen')
    a.lab('L_fin')
    stamp(11)
    if leak:
        W, w, ka, kb = leak
        a(f's_cmp_eq_u32 s2, {W}\ns_cbranch_scc0 L_end\ns_cmp_eq_u32 s3, {w}\ns_cbranch_scc0 L_end')
        a(f's_waitcnt lgkmcnt(0)\ns_sub_u32 s{sT0}, s{TS0+2*ka}, s{TS0+2*kb}\ns_min_u32 s{sT0}, s{sT0}, 5000\ns_mul_i32 s{sT0}, s{sT0}, 40')
        a.lab('L_leak')
        a(f's_memrealtime s[56:57]\ns_waitcnt lgkmcnt(0)\ns_sub_u32 s{sT1}, s56, s{TS0+22}\ns_cmp_lt_u32 s{sT1}, s{sT0}\ns_cbranch_scc1 L_leak')
    elif ts: dump_ts(16)
    a.lab('L_end')
    a('s_endpgm')
    a.lab('L_codeend')

    body, added = hazard_pass(a.L)
    out = [HEADER + f'; @launch grid=(256,1,1) block=(512,1,1) lds={L_END}',
           '.amdgcn_target "amdgcn-amd-amdhsa--gfx950"', '.text', f'.globl {NAME}_kernel', '.p2align 8', f'.type {NAME}_kernel,@function']
    out += [l if l.endswith(':') else '    ' + l for l in body]
    out += ['.section .rodata,"a"', '.p2align 6', f'.amdhsa_kernel {NAME}_kernel',
            '  .amdhsa_next_free_vgpr 256', '  .amdhsa_next_free_sgpr 102', '  .amdhsa_accum_offset 256',
            '  .amdhsa_group_segment_fixed_size 0', '  .amdhsa_kernarg_size 112', '  .amdhsa_user_sgpr_count 2',
            '  .amdhsa_user_sgpr_kernarg_segment_ptr 1', '  .amdhsa_system_sgpr_workgroup_id_x 1',
            '  .amdhsa_float_denorm_mode_32 3', '.end_amdhsa_kernel']
    return '\n'.join(out) + '\n'

if __name__ == '__main__':
    kw = {}
    for arg in sys.argv[2:]:
        k, v = arg.split('=')
        try: v = eval(v)
        except Exception: pass
        kw[k] = v
    open(sys.argv[1], 'w').write(gen(**kw))
```

```python
import sys, struct, math
from asmlib import Asm, hazard_pass, vr, sr
from gen_v1 import HEADER
NAME = 'adaLN_cond__sliding_block_cached__glu_gated_glu__decode'
def f32(x): return '0x%08x' % struct.unpack('<I', struct.pack('<f', x))[0]

WS_MOD = 0x10000
WS_RD  = 0x70000
WS_QP  = 0x80000
WS_OP  = 0x100000
OPS    = 2176
WS_YP  = 0x200000
WS_FP  = 0x220000
WS_B   = 0x400000
WS_TS  = 0x8000000
SIG = 288; PASS = 8 * SIG; IMG = 2 * PASS
L_IMG = 65536
L_Q   = L_IMG + 4 * IMG
L_P   = L_Q + 1536
L_Z   = L_P + 2048
L_ORED = L_Z + 512
L_LS  = L_ORED + 8192
L_WT  = L_LS + 64
L_RED = L_WT + 1024
L_ST  = L_RED + 2048
L_X1  = L_ST + 64
L_RS  = L_X1 + 2048
L_FL  = L_RS + 8192
F_Q, F_S, F_P, F_M = 0, 4, 8, 12
F_MX = 16
F_H, F_E, F_K, F_PR, F_G, F_GI, F_G2, F_I = 32, 36, 40, 44, 48, 52, 56, 60
F_G3, F_VI = 64, 68
L_END = L_FL + 128
TAGMASK = 0xFFF
SPIN_LIM = 1 << 20
POLL_LIM = 1 << 18

sG, sR, sB, sS = 4, 5, 6, 7
pX, pK, pV, pWQ, pWO, pWG, pWU, pWD, pC, pWM, pOUT, pWS = 8, 10, 12, 14, 16, 20, 22, 24, 26, 28, 30, 32
rWS, rA, rB, rC = 32, 36, 40, 44
sE, sMASK, sOFF, sB1, sB2, sCNT, sW, sSLOW, sX, sLO, sHI, sT0, sT1, sT2, sT3 = 48, 49, 50, 51, 52, 53, 54, 55, 56, 58, 59, 60, 61, 62, 63
sXC = 18
sB3 = 19
sB4, sMK = 56, 57
TS0 = 64
VT, VTA = 1, 15
SC = math.log2(math.e) / math.sqrt(128.0)

def gen(NO=8, NF=8, n1=2, n1w=0, n2=3, NR=24, k1=8, gr=14, g2o=(30,None), g2f=(16,None), NTT=16, kvfl='nt', wfl='', hfl='nt', ofl='', ts=False,
        fb=64, fsleep=8, osleep=0, leak=None, rot=True, wopos=22, forceslow=0, abl='', pf=(0,5,2), pfgate=True, hland=False, ne=4, kfirst=False, dnlate=True, prog=False, NO2=None, nsw=24, NF1=None):
    if leak: ts = True
    a = Asm()
    uid = [0]
    def U(p): uid[0] += 1; return f'{p}_{uid[0]}'
    def stamp(k):
        if ts: a(f's_memrealtime {sr(TS0 + 2*k, 2)}')
    def srd(r, p, size):
        a(f's_mov_b32 s{r}, s{p}\ns_mov_b32 s{r+1}, s{p+1}\ns_mov_b32 s{r+2}, {size}\ns_mov_b32 s{r+3}, 0x20000')
    def sig(off, n=1): a(f's_mov_b64 exec, {(1<<n)-1}\nds_add_u32 v13, v14 offset:{off}\ns_mov_b64 exec, -1')
    def spin(vt, off, n, sleep=0, extra=None):
        l, d = U('L_spin'), U('L_spun')
        a(f's_mov_b32 s{sCNT}, 0')
        a.lab(l)
        a(f'ds_read_b32 v{vt}, v13 offset:{off}')
        if extra: a(extra)
        a('s_waitcnt lgkmcnt(0)')
        a(f'v_readfirstlane_b32 s{sT0}, v{vt}')
        a(f's_cmp_ge_u32 s{sT0}, {n}\ns_cbranch_scc1 {d}')
        if sleep: a(f's_sleep {sleep}')
        a(f's_add_u32 s{sCNT}, s{sCNT}, 1\ns_cmp_lt_u32 s{sCNT}, {SPIN_LIM}\ns_cbranch_scc1 {l}\ns_endpgm')
        a.lab(d)
    def poll(loads, firsts, vacc, local=None, pre_check=None, cnt=None, setslow=False, after_issue=None, marker=None, first=None):
        l, d = U('L_poll'), U('L_got')
        vt = VT
        if local:
            sb, vt, vd = local
            a(f'v_mov_b32 v{vt}, v{VTA}\nv_xor_b32 v{vd}, v{VT}, v{VTA}')
            if setslow: a(f's_mov_b32 s{sCNT}, 0')
            else: a(f's_cmp_eq_u32 s{sSLOW}, 0\ns_cselect_b32 s{sCNT}, 0, {fb}')
        else: a(f's_mov_b32 s{sCNT}, 0')
        if first:
            c = U('L_chk')
            loads(); first[0]()
            a(f's_waitcnt vmcnt({first[1]})\ns_branch {c}')
        a.lab(l)
        loads()
        if after_issue: after_issue()
        a('s_waitcnt vmcnt(0)')
        if first: a.lab(c)
        if pre_check: pre_check()
        else:
            for f in firsts: a(f'v_xor_b32 v{f}, v{f}, v{vt}')
        if marker is not None: a(f'v_and_b32 v{marker}, s{sMK}, v{marker}')
        fs = list(firsts)
        if len(fs) == 1: a(f'v_and_b32 v{vacc}, s{sMASK}, v{fs[0]}')
        else:
            if len(fs) % 2: a(f'v_or3_b32 v{vacc}, v{fs[0]}, v{fs[1]}, v{fs[2]}'); fs = fs[3:]
            else: a(f'v_or_b32 v{vacc}, v{fs[0]}, v{fs[1]}'); fs = fs[2:]
            while fs: a(f'v_or3_b32 v{vacc}, v{vacc}, v{fs[0]}, v{fs[1]}'); fs = fs[2:]
            a(f'v_and_b32 v{vacc}, s{sMASK}, v{vacc}')
        a(f'v_cmp_ne_u32 vcc, 0, v{vacc}\ns_cbranch_vccz {d}')
        a(f's_add_u32 s{sCNT}, s{sCNT}, 1')
        if local:
            a(f's_cmp_lt_u32 s{sCNT}, {fb}\ns_cbranch_scc1 {l}')
            if setslow: sig(F_S)
            a(f's_xor_b32 s{sb}, s{sb}, {WS_B}\nv_xor_b32 v{vt}, v{vt}, v{vd}')
            if marker is not None: a(f's_xor_b32 s{sMK}, s{sMK}, s{sMASK}')
        a(f's_cmp_lt_u32 s{sCNT}, {POLL_LIM}\ns_cbranch_scc1 {l}\ns_endpgm')
        a.lab(d)
        if ts and cnt is not None: a(f's_add_u32 s{TS0+2*cnt}, s{sCNT}, 1')
    def tagit(v, vt=VT): a(f'v_bfi_b32 v{v}, s{sMASK}, v{vt}, v{v}')
    def mktag():
        a(f'v_and_b32 v{VT}, 3, v0\nv_mul_u32_u24 v{VT}, 0x2d5, v{VT}\ns_add_u32 s{sE}, s{sE}, 1\nv_add_u32 v{VT}, s{sE}, v{VT}')
        a(f'v_add_u32 v{VTA}, s{sXC}, v{VT}\nv_and_b32 v{VT}, s{sMASK}, v{VT}\nv_and_b32 v{VTA}, s{sMASK}, v{VTA}')
    def red8(R, dst):
        a(f'v_pk_add_f32 {vr(R,2)}, {vr(R,2)}, {vr(R+4,2)}\nv_pk_add_f32 {vr(R+2,2)}, {vr(R+2,2)}, {vr(R+6,2)}')
        red4(R, dst)
    def red4(R, dst):
        a(f'v_permlane32_swap_b32 v{R}, v{R+2}\nv_permlane32_swap_b32 v{R+1}, v{R+3}')
        a(f'v_pk_add_f32 {vr(R,2)}, {vr(R,2)}, {vr(R+2,2)}')
        a(f'v_permlane16_swap_b32 v{R}, v{R+1}\nv_add_f32 v{dst}, v{R}, v{R+1}')
    def tree(R, n):
        st = 4
        while n > 1:
            for k in range(0, n, 2):
                for h in (0, 2): a(f'v_pk_add_f32 {vr(R + st*k + h, 2)}, {vr(R + st*k + h, 2)}, {vr(R + st*(k+1) + h, 2)}')
            st *= 2; n //= 2
    def sum4(R, vaddr, stride):
        for w in range(4): a(f'ds_read_b128 {vr(R + 4*w, 4)}, v{vaddr} offset:{stride*w}')
        a(f's_waitcnt lgkmcnt(2)\nv_pk_add_f32 {vr(R,2)}, {vr(R,2)}, {vr(R+4,2)}\nv_pk_add_f32 {vr(R+2,2)}, {vr(R+2,2)}, {vr(R+6,2)}')
        a(f's_waitcnt lgkmcnt(1)\nv_pk_add_f32 {vr(R,2)}, {vr(R,2)}, {vr(R+8,2)}\nv_pk_add_f32 {vr(R+2,2)}, {vr(R+2,2)}, {vr(R+10,2)}')
        a(f's_waitcnt lgkmcnt(0)\nv_pk_add_f32 {vr(R,2)}, {vr(R,2)}, {vr(R+12,2)}\nv_pk_add_f32 {vr(R+2,2)}, {vr(R+2,2)}, {vr(R+14,2)}')
    def imgw4(vaddr, V):
        a(f'ds_write2_b32 v{vaddr}, v{V}, v{V+1} offset0:0 offset1:2\nds_write2_b32 v{vaddr}, v{V+2}, v{V+3} offset0:8 offset1:10')
        a(f'ds_write2_b32 v{vaddr}, v{V}, v{V+1} offset0:33 offset1:35\nds_write2_b32 v{vaddr}, v{V+2}, v{V+3} offset0:41 offset1:43')
    AC = 24
    def two_pass(vrd, vidx, A2, W, waitw=None):
        for p in range(2):
            for s in range(8): a(f'ds_read_b128 {vr(A2 + 32*p + 4*s, 4)}, v{vrd} offset:{p*PASS + s*SIG}')
        if waitw: a(waitw)
        for p in range(2):
            for s in range(8):
                a(f's_waitcnt lgkmcnt({15 - (8*p + s)})')
                a(f'v_smfmac_f32_16x16x64_bf16 {vr(AC+4*p,4)}, {vr(A2 + 32*p + 4*s, 4)}, {vr(W + 8*s, 8)}, v{vidx}')
    def parity(dst, D):
        a(f'v_add_f32_dpp v{dst}, v{D+1}, v{D} row_ror:8 row_mask:0xf bank_mask:0x3')
        a(f'v_add_f32_dpp v{dst}, v{D+2}, v{D+3} row_ror:8 row_mask:0xf bank_mask:0xc')
    def oprec(dst):
        a(f's_lshl_b32 s{sT0}, s{sG}, 2\ns_add_u32 s{sT0}, s{sT0}, s{sB}\ns_lshl_b32 s{sT0}, s{sT0}, 3\ns_add_u32 s{sT0}, s{sT0}, s{sS}')
        a(f's_mul_i32 s{dst}, s{sT0}, {OPS}\ns_add_u32 s{dst}, s{dst}, {WS_OP}')
    def qprec(dst):
        a(f's_lshl_b32 s{dst}, s{sG}, 15\ns_and_b32 s{sT0}, s{sR}, 15\ns_lshl_b32 s{sT0}, s{sT0}, 9\ns_add_u32 s{dst}, s{dst}, s{sT0}\ns_add_u32 s{dst}, s{dst}, {WS_QP}')
    def qpaddr(v):
        a(f'v_lshrrev_b32 v16, 1, v7\nv_lshlrev_b32 v16, 13, v16\nv_lshl_add_u32 v16, v10, 8, v16\nv_and_b32 v17, 1, v7\nv_lshl_add_u32 v16, v17, 7, v16\nv_lshl_add_u32 v{v}, v9, 4, v16')
    def par_addr(vrd, vidx):
        a(f'v_and_b32 v{vrd}, 1, v0\nv_lshlrev_b32 v{vrd}, 4, v{vrd}\nv_lshl_add_u32 v{vrd}, v7, 5, v{vrd}\nv_lshl_add_u32 v{vrd}, v10, 7, v{vrd}\nv_add_u32 v{vrd}, s{sT3}, v{vrd}')
        a(f'v_bfe_u32 v{vidx}, v0, 1, 2\nv_mul_u32_u24 v{vidx}, 0x5555, v{vidx}')
    def imgbase(): a(f's_mul_i32 s{sT3}, s{sW}, {IMG}\ns_add_u32 s{sT3}, s{sT3}, {L_IMG}')
    def rdslow(vt):
        a(f'ds_read_b32 v{vt}, v13 offset:{F_S}\ns_waitcnt lgkmcnt(0)\nv_readfirstlane_b32 s{sSLOW}, v{vt}')
    def pubdup(V, vaddr, sbase):
        l = U('L_nodup')
        a(f's_cmp_eq_u32 s{sSLOW}, 0\ns_cbranch_scc1 {l}')
        a(f's_add_u32 s{sOFF}, s{sbase}, {WS_B}\ns_nop 1')
        tagit(V)
        a(f'buffer_store_dwordx4 {vr(V,4)}, v{vaddr}, {sr(rWS,4)}, s{sOFF} offen sc1')
        a.lab(l)
    def dump_ts(nstamps):
        a('s_waitcnt lgkmcnt(0)')
        a(f's_lshl_b32 s{sOFF}, s2, 3\ns_add_u32 s{sOFF}, s{sOFF}, s3\ns_lshl_b32 s{sOFF}, s{sOFF}, 6\ns_add_u32 s{sOFF}, s{sOFF}, {WS_TS}')
        a('s_mov_b64 exec, 1\nv_mov_b32 v2, 0')
        for k in range(nstamps):
            a(f'v_mov_b32 v3, s{TS0+2*k}\nbuffer_store_dword v3, v2, {sr(rWS,4)}, s{sOFF} offen offset:{4*k}')
    def zero_ts():
        if ts:
            for k in range(2, 16): a(f's_mov_b32 s{TS0+2*k}, 0')

    a.lab(f'{NAME}_kernel')
    stamp(0)
    a('s_cmp_ge_u32 s2, 256\ns_cbranch_scc1 L_end')
    a('s_load_dwordx16 s[8:23], s[0:1], 0\ns_load_dwordx8 s[24:31], s[0:1], 64\ns_load_dwordx2 s[32:33], s[0:1], 104')
    a(f's_cmp_lt_u32 s2, 8\ns_cbranch_scc0 L_nopf\ns_getpc_b64 {sr(sX,2)}')
    a.lab('L_pc')
    a(f'v_lshlrev_b32 v2, 7, v0\nv_cmp_gt_u32 vcc, L_codeend-L_pc, v2\ns_and_saveexec_b64 {sr(sT0,2)}, vcc\ns_cbranch_execz L_pfx')
    a(f'global_load_dword v63, v2, {sr(sX,2)}')
    a.lab('L_pfx')
    a('s_mov_b64 exec, -1')
    a.lab('L_nopf')
    a(f'v_lshrrev_b32 v1, 6, v0\nv_and_b32 v0, 63, v0\nv_readfirstlane_b32 s3, v1\nv_mov_b32 v13, {L_FL}\nv_and_b32 v8, 15, v0')
    a(f's_and_b32 s{sG}, s2, 7\ns_lshr_b32 s{sR}, s2, 3\ns_and_b32 s{sB}, s{sR}, 3')
    a(f's_lshr_b32 s{sS}, s{sR}, 2\ns_mov_b32 s34, 0x10000000\ns_mov_b32 s35, 0x20000\ns_movk_i32 s{sMASK}, {TAGMASK}\ns_and_b32 s{sW}, s3, 3')
    a('v_lshlrev_b32 v6, 4, v0\nv_lshrrev_b32 v7, 4, v0\nv_and_b32 v9, 7, v0\nv_bfe_u32 v10, v0, 3, 1\nv_mov_b32 v14, 1')
    a('s_cmp_lt_u32 s3, 4\ns_cbranch_scc1 L_A')

    W0, AR = 64, 32
    VI = 63
    a(f's_cmp_gt_u32 s{sW}, 1\ns_cbranch_scc1 L_T23_issue')
    sSTEP, sSEG = sLO, sHI
    a(f's_and_b32 s{sT1}, s{sR}, 7')
    a(f'v_lshlrev_b32 v3, 10, v7\nv_lshl_add_u32 v11, v8, 4, v3\nv_lshl_add_u32 v3, v9, 4, v3\nv_lshl_add_u32 v3, v10, 3, v3')
    a(f's_mov_b32 s{rA+3}, 0x20000\ns_movk_i32 s{rB+2}, 4096\ns_mov_b32 s{rB+3}, 0x20000')
    a(f's_cmp_ge_u32 s{sR}, 16\ns_cbranch_scc1 L_TF_par')
    a(f's_movk_i32 s{sSTEP}, 6144')
    a(f's_lshl_b32 s{sB1}, s{sT1}, 8\ns_mul_i32 s{sT1}, s{sG}, {64*6144}\ns_add_u32 s{sB1}, s{sB1}, s{sT1}\ns_lshl_b32 s{sB2}, s{sG}, 7')
    a('s_waitcnt lgkmcnt(0)')
    a(f's_mov_b32 s{rA}, s{pWM}\ns_mov_b32 s{rA+1}, s{pWM+1}\ns_mov_b32 s{rA+2}, {512*6144}\ns_mov_b32 s{rB}, s{pC}\ns_mov_b32 s{rB+1}, s{pC+1}')
    a(f's_load_dword s{sE}, s[32:33], 0')
    a(f's_cmp_eq_u32 s{sW}, 1\ns_cbranch_scc1 L_T_setup')
    a(f'buffer_load_dwordx2 v[4:5], v3, {sr(rB,4)}, s{sB2} offen')
    a(f's_cmp_ge_u32 s{sR}, 8\ns_cbranch_scc0 L_T01_go\ns_branch L_T0_rest')
    a.lab('L_TF_par')
    a(f's_movk_i32 s{sSTEP}, 8192\ns_lshl_b32 s{sT1}, s{sB}, 1\ns_add_u32 s{sT1}, s{sT1}, s{sW}\ns_and_b32 s{sT0}, s{sS}, 3\ns_lshl_b32 s{sT0}, s{sT0}, 8')
    a(f's_lshl_b32 s{sB1}, s{sT1}, 19\ns_lshl_b32 s{sT2}, s{sG}, 10\ns_add_u32 s{sB1}, s{sB1}, s{sT2}\ns_add_u32 s{sB1}, s{sB1}, s{sT0}\ns_lshl_b32 s{sB2}, s{sT1}, 7')
    a('s_waitcnt lgkmcnt(0)')
    a(f's_mov_b32 s{rA}, s{pWQ}\ns_mov_b32 s{rA+1}, s{pWQ+1}\ns_mov_b32 s{rA+2}, {512*8192}\ns_mov_b32 s{rB}, s{pX}\ns_mov_b32 s{rB+1}, s{pX+1}')
    a(f's_load_dword s{sE}, s[32:33], 0')
    a.lab('L_T01_go')
    stamp(1)
    a(f'v_mul_u32_u24 v2, s{sSTEP}, v7\nv_lshl_add_u32 v2, v8, 4, v2\ns_lshl_b32 s{sSTEP}, s{sSTEP}, 2')
    for i in range(16):
        a(f'buffer_load_dwordx4 {vr(W0+4*i,4)}, v2, {sr(rA,4)}, s{sB1} offen {hfl}')
        if i < 15: a(f's_add_u32 s{sB1}, s{sB1}, s{sSTEP}')
    a(f's_cmp_lt_u32 s{sR}, 16\ns_cbranch_scc1 L_T_setup')
    a(f'buffer_load_dwordx2 v[4:5], v3, {sr(rB,4)}, s{sB2} offen')
    for j in range(4): a(f'buffer_load_dwordx4 {vr(AR+4*j,4)}, v11, {sr(rB,4)}, 0 offen offset:{256*j}')
    a('s_branch L_T_setup')
    a.lab('L_T0_rest')
    stamp(1)
    a(f'v_mul_u32_u24 v21, 6144, v7\nv_lshl_add_u32 v21, v8, 4, v21\ns_and_b32 s{sT1}, s{sR}, 7\ns_lshl_b32 s{sT1}, s{sT1}, 8\ns_add_u32 s{sB1}, s{sB1}, s{sT1}')
    def restld(i):
        a(f'buffer_load_dwordx4 {vr(W0 + 64*(i&1) + 4*(i>>1), 4)}, v21, {sr(rA,4)}, s{sB1} offen offset:{2304 if i&1 else 2048} {hfl}')
        if i & 1 and i < 31: a(f's_add_u32 s{sB1}, s{sB1}, {4*6144}')
    for i in range(32): restld(i)
    a('s_branch L_T_setup')
    a.lab('L_T23_issue')
    a(f'v_and_b32 v4, 31, v0\nv_lshrrev_b32 v2, 2, v4\nv_cmp_eq_u32 vcc, 1, v2\nv_mov_b32 v3, 0xff800000\nv_lshl_add_u32 v4, v4, 2, v13\nv_cndmask_b32 v3, 0, v3, vcc\nds_write_b32 v4, v3')
    a('s_waitcnt lgkmcnt(0)')
    stamp(1)
    a(f's_load_dword s{sE}, s[32:33], 0')
    a.lab('L_T_setup')
    zero_ts()
    imgbase()
    a(f's_getreg_b32 s{sXC}, hwreg(HW_REG_XCC_ID, 0, 3)')
    if forceslow: a(f's_cmp_eq_u32 s{sR}, {forceslow}\ns_cselect_b32 s{sXC}, 1, 0')
    a(f's_lshl_b32 s{sXC}, s{sXC}, 9')
    a(f'v_mov_b32 v16, 0\nv_mov_b32 v17, 0\nv_mov_b32 v18, 0\nv_mov_b32 v19, 0\nv_add_u32 v20, s{sT3}, v6')
    for k in range(4): a(f'ds_write_b128 v20, v[16:19] offset:{1024*k}')
    a(f's_mov_b32 exec_hi, 0\nds_write_b128 v20, v[16:19] offset:4096\nv_add_u32 v20, {L_Z}, v6\nds_write_b128 v20, v[16:19]\ns_mov_b32 exec_hi, -1')
    a(f'v_bfe_u32 v16, v0, 2, 1\nv_lshlrev_b32 v16, 7, v16\nv_lshl_add_u32 v16, v7, 5, v16\nv_lshl_add_u32 v16, v10, 4, v16\nv_add_u32 v12, s{sT3}, v16')
    a(f'v_and_b32 v{VI}, 3, v0\nv_mul_u32_u24 v{VI}, 0x5555, v{VI}')
    a(f's_cmp_eq_u32 s{sW}, 0\ns_cbranch_scc0 L_T_gate\ns_cmp_lt_u32 s{sR}, 8\ns_cbranch_scc1 L_T_gate\ns_waitcnt vmcnt({NR})')
    a(f's_cmp_lt_u32 s{sR}, 16\ns_cbranch_scc1 L_T_gate\ns_waitcnt vmcnt({k1+5})')
    a.lab('L_T_gate')
    a('s_barrier\ns_waitcnt lgkmcnt(0)')
    mktag()
    a(f's_lshl_b32 s{sT1}, s{sW}, 14\nv_and_b32 v17, 3, v0\nv_lshrrev_b32 v18, 2, v8\nv_lshl_add_u32 v19, v17, 2, v18')
    a(f'v_xor_b32 v16, v7, v8\nv_lshlrev_b32 v16, 4, v16\nv_lshl_add_u32 v16, v19, 8, v16\nv_add_u32 v48, s{sT1}, v16')
    a('v_xor_b32 v49, 64, v48\nv_xor_b32 v50, 0x80, v48\nv_xor_b32 v51, 0xc0, v48')
    a(f'v_mul_u32_u24 v52, 320, v17\nv_lshl_add_u32 v52, v7, 4, v52\nv_add_u32 v52, {L_Q}, v52\nv_lshl_add_u32 v53, v17, 2, v13')
    a(f's_lshl_b32 s{sT1}, s{sW}, 9\ns_add_u32 s{sT2}, s{sT1}, {L_P}\nv_and_b32 v18, 1, v18\nv_lshlrev_b32 v54, 3, v18\nv_lshl_add_u32 v54, v17, 4, v54\nv_lshl_add_u32 v54, v7, 6, v54\nv_lshl_add_u32 v54, v10, 8, v54\nv_add_u32 v54, s{sT2}, v54')
    a(f's_add_u32 s{sT2}, s{sT1}, {L_ORED}\nv_add_u32 v55, s{sT2}, v6')
    oprec(sB3)
    KF, QF, DD = 128, 192, 208
    def kread():
        spin(16, F_K, 4, sleep=1)
        for t in range(4):
            for j in range(4):
                a(f'ds_read_b128 {vr(KF + 16*t + 4*j, 4)}, v{48+j} offset:{4096*t}')
    a(f's_cmp_gt_u32 s{sW}, 1\ns_cbranch_scc1 L_T23_job')
    sig(F_E)
    a(f'v_lshrrev_b32 v16, 5, v0\nv_mul_u32_u24 v16, {PASS}, v16\nv_mul_u32_u24 v17, {SIG}, v9\nv_add3_u32 v16, v16, v17, s{sT3}')
    a('v_and_b32 v17, 1, v7\nv_lshlrev_b32 v17, 4, v17\nv_lshl_add_u32 v17, v10, 6, v17\nv_add_u32 v11, v16, v17')
    for i in range(8): a(f'v_mov_b32 v{AC+i}, 0')
    a(f's_cmp_ge_u32 s{sR}, 16\ns_cbranch_scc1 L_TF_job')
    a(f's_cmp_eq_u32 s{sW}, 1\ns_cbranch_scc1 L_T1_red')
    a('v_lshrrev_b32 v16, 1, v7\nv_lshlrev_b32 v16, 11, v16\nv_lshl_add_u32 v16, v10, 13, v16\nv_and_b32 v17, 1, v7\nv_lshl_add_u32 v16, v17, 7, v16\nv_lshl_add_u32 v2, v9, 4, v16')
    a(f's_lshl_b32 s{sT0}, s{sR}, 1\ns_sub_u32 s{sT0}, s{sT0}, 8\ns_cmp_lt_u32 s{sR}, 8\ns_cselect_b32 s{sB1}, s{sR}, s{sT0}')
    a(f's_lshl_b32 s{sB1}, s{sB1}, 14\ns_lshl_b32 s{sT0}, s{sG}, 8\ns_add_u32 s{sB1}, s{sB1}, s{sT0}\ns_add_u32 s{sB1}, s{sB1}, {WS_MOD}\ns_add_u32 s{sB2}, s{sB1}, 4096')
    a(f's_mov_b32 s{sT0}, {f32(-math.log2(math.e))}')
    a('s_waitcnt vmcnt(16)')
    a('v_lshlrev_b32 v16, 16, v4\nv_and_b32 v17, 0xffff0000, v4\nv_lshlrev_b32 v18, 16, v5\nv_and_b32 v19, 0xffff0000, v5')
    for r in range(4): a(f'v_mul_f32 v{20+r}, s{sT0}, v{16+r}')
    for r in range(4): a(f'v_exp_f32 v{20+r}, v{20+r}')
    for r in range(4): a(f'v_add_f32 v{20+r}, 1.0, v{20+r}')
    for r in range(4): a(f'v_rcp_f32 v{20+r}, v{20+r}')
    for r in range(4): a(f'v_mul_f32 v{16+r}, v{16+r}, v{20+r}')
    for r in range(4): a(f'v_cvt_pk_bf16_f32 v{16+r}, v{16+r}, 0')
    imgw4(11, 16)
    two_pass(12, VI, 192, W0, waitw='s_waitcnt vmcnt(0)' + (f'\ns_waitcnt lgkmcnt(0)\ns_mov_b64 exec, 1\nds_add_u32 v13, v14 offset:{F_H}\ns_mov_b64 exec, -1' if hland else ''))
    tagit(AC); tagit(AC+4)
    a(f'buffer_store_dwordx4 {vr(AC,4)}, v2, {sr(rWS,4)}, s{sB1} offen sc1\nbuffer_store_dwordx4 {vr(AC+4,4)}, v2, {sr(rWS,4)}, s{sB2} offen sc1')
    sig(F_H)
    stamp(2)
    a(f's_cmp_lt_u32 s{sR}, 8\ns_cbranch_scc1 L_T_k')
    for i in range(8): a(f'v_mov_b32 v{32+i}, 0')
    a(f's_add_u32 s{sB1}, s{sB1}, 16384\ns_add_u32 s{sB2}, s{sB2}, 16384')
    for p in range(2):
        for sg in range(8): a(f'v_smfmac_f32_16x16x64_bf16 {vr(32+4*p,4)}, {vr(192 + 32*p + 4*sg, 4)}, {vr(128 + 8*sg, 8)}, v{VI}')
    tagit(32); tagit(36)
    a(f'buffer_store_dwordx4 v[32:35], v2, {sr(rWS,4)}, s{sB1} offen sc1\nbuffer_store_dwordx4 v[36:39], v2, {sr(rWS,4)}, s{sB2} offen sc1')
    a('s_branch L_T_k')
    a.lab('L_T1_red')
    a(f's_cmp_ge_u32 s{sR}, 8\ns_cbranch_scc1 L_T_k')
    a(f's_lshl_b32 s{sB1}, s{sS}, 3\ns_add_u32 s{sB1}, s{sB1}, s{sG}\ns_lshl_b32 s{sB1}, s{sB1}, 14\ns_lshl_b32 s{sT0}, s{sB}, 11\ns_add_u32 s{sB1}, s{sB1}, s{sT0}')
    a(f's_add_u32 s{sB1}, s{sB1}, {WS_MOD + 8*16384}\ns_add_u32 s{sB2}, s{sB1}, 8192')
    a(f's_lshl_b32 s{sB4}, s{sB}, 13\ns_lshl_b32 s{sT1}, s{sS}, 12\ns_add_u32 s{sB4}, s{sB4}, s{sT1}\ns_lshl_b32 s{sT0}, s{sG}, 9\ns_add_u32 s{sB4}, s{sB4}, s{sT0}\ns_add_u32 s{sB4}, s{sB4}, {WS_RD}')
    a(f'v_lshlrev_b32 v2, 4, v8\nv_lshl_add_u32 v3, v7, 2, v2\nv_add_u32 v3, {L_RED}, v3\nv_mov_b32 v2, v6\nv_add_u32 v4, {L_RED}, v6')
    spin(16, F_G, 2, sleep=1)
    def lr():
        for sg in range(2):
            for j in range(2): a(f'buffer_load_dwordx4 {vr(W0 + 8*sg + 4*j, 4)}, v6, {sr(rWS,4)}, s{sB2 if sg else sB1} offen offset:{1024*j} sc1')
    if 'r' not in abl: poll(lr, [W0 + 4*k for k in range(4)], 16, cnt=13)
    red8(W0, 16); red8(W0 + 8, 17)
    a('ds_write2_b32 v3, v16, v17 offset0:0 offset1:64\ns_mov_b32 exec_hi, 0\nds_read_b128 v[16:19], v4\ns_waitcnt lgkmcnt(0)')
    tagit(16)
    a(f'buffer_store_dwordx4 v[16:19], v2, {sr(rWS,4)}, s{sB4} offen sc1\ns_mov_b32 exec_hi, -1\ns_nop 0')
    stamp(2)
    a.lab('L_T_k')
    kread()
    a('s_branch L_T_qk')
    a.lab('L_TF_job')
    qpaddr(2)
    qprec(sB1)
    a(f's_lshl_b32 s{sT0}, s{sW}, 14\ns_add_u32 s{sB1}, s{sB1}, s{sT0}')
    a(f's_lshl_b32 s{sT0}, s{sW}, 10\ns_add_u32 s{sT1}, s{sT0}, {L_RED}\nv_add_u32 v56, s{sT1}, v6\ns_sub_u32 s{sT1}, {L_RED + 1024}, s{sT0}\nv_add_u32 v57, s{sT1}, v6')
    a('s_waitcnt vmcnt(0)')
    X = 128
    for i in range(16):
        a(f'v_lshlrev_b32 v{X+2*i}, 16, v{AR+i}\nv_and_b32 v{X+2*i+1}, 0xffff0000, v{AR+i}')
    a(f'v_pk_add_f32 v[16:17], {vr(X,2)}, {vr(X+2,2)}')
    for i in range(2, 16): a(f'v_pk_add_f32 v[16:17], v[16:17], {vr(X+2*i,2)}')
    a('v_add_f32 v16, v16, v17')
    def rowsum(v):
        for k in (1, 2, 4, 8): a(f'v_add_f32_dpp v{v}, v{v}, v{v} row_ror:{k} row_mask:0xf bank_mask:0xf')
    rowsum(16)
    a(f'v_mul_f32 v16, {f32(-1.0/512)}, v16\nv_mov_b32 v17, v16\nv_mov_b32 v18, 0\nv_mov_b32 v19, 0')
    for i in range(16):
        a(f'v_pk_add_f32 {vr(X+2*i,2)}, {vr(X+2*i,2)}, v[16:17]\nv_pk_fma_f32 v[18:19], {vr(X+2*i,2)}, {vr(X+2*i,2)}, v[18:19]')
    a('v_add_f32 v18, v18, v19')
    rowsum(18)
    a(f'v_mov_b32 v19, {f32(1e-5)}\nv_fmac_f32 v19, {f32(1.0/512)}, v18\nv_rsq_f32 v19, v19')
    a('v_lshlrev_b32 v20, 16, v4\nv_and_b32 v21, 0xffff0000, v4\nv_lshlrev_b32 v22, 16, v5\nv_and_b32 v23, 0xffff0000, v5')
    for r in range(4): a(f'v_add_f32 v{20+r}, v{20+r}, v16')
    for r in range(4): a(f'v_mul_f32 v{20+r}, v{20+r}, v19')
    a(f'v_lshlrev_b32 v3, 11, v7\nv_lshl_add_u32 v3, v8, 4, v3\ns_lshl_b32 s{sT1}, s{sB}, 1\ns_add_u32 s{sT1}, s{sT1}, s{sW}\ns_lshl_b32 s{sT1}, s{sT1}, 13\ns_add_u32 s{sT1}, s{sT1}, {WS_MOD}\ns_add_u32 s{sT2}, s{sT1}, 65536')
    spin(16, F_E, 8)
    spin(16, F_G, 4)
    stamp(2)
    def l1():
        for sg in range(2):
            for kp in range(8): a(f'buffer_load_dwordx4 {vr(X + 32*sg + 4*kp, 4)}, v3, {sr(rWS,4)}, s{sT2 if sg else sT1} offen offset:{256*kp} sc1')
    if '1' not in abl: poll(l1, [X + 4*k for k in range(16)], 16, cnt=12, after_issue=lambda: sig(F_GI))
    else: sig(F_GI)
    stamp(3)
    tree(X, 8); tree(X + 32, 8)
    for r in range(4): a(f'v_add_f32 v{X+r}, v{X+r}, v{20+r}')
    for r in range(4): a(f'v_fmac_f32 v{X+r}, v{X+32+r}, v{20+r}')
    for r in range(4): a(f'v_cvt_pk_bf16_f32 v{16+r}, v{X+r}, 0')
    imgw4(11, 16)
    a(f's_xor_b32 s{sT0}, s{sW}, 1\ns_mul_i32 s{sT0}, s{sT0}, {PASS}\nv_add_u32 v3, s{sT0}, v12\ns_mul_i32 s{sT0}, s{sW}, {PASS}\nv_add_u32 v4, s{sT0}, v12')
    for p in range(2):
        for sg in range(8): a(f'ds_read_b128 {vr(128 + 32*p + 4*sg, 4)}, v{3+p} offset:{sg*SIG}')
    for p in range(2):
        for sg in range(8):
            if p == 0 or sg <= 3: a(f's_waitcnt lgkmcnt({(15 - sg) if p == 0 else (7 - sg if sg < 3 else 0)})')
            a(f'v_smfmac_f32_16x16x64_bf16 {vr(AC+4*p,4)}, {vr(128 + 32*p + 4*sg, 4)}, {vr(W0 + 8*sg, 8)}, v{VI}')
            if p == 1 and sg == 3:
                a(f'ds_write_b128 v57, {vr(AC,4)}')
                sig(F_I)
    spin(16, F_I, 2, extra='ds_read_b128 v[20:23], v56')
    a(f'v_pk_add_f32 {vr(AC+4,2)}, {vr(AC+4,2)}, v[20:21]\nv_pk_add_f32 {vr(AC+6,2)}, {vr(AC+6,2)}, v[22:23]')
    tagit(AC+4, VTA)
    a(f'buffer_store_dwordx4 {vr(AC+4,4)}, v2, {sr(rWS,4)}, s{sB1} offen')
    sig(F_P)
    stamp(4)
    kread()
    l, d = U('L_qs'), U('L_qsd')
    a(f's_mov_b32 s{sCNT}, 0')
    a.lab(l)
    a(f'ds_read_b64 v[16:17], v13 offset:{F_Q}\ns_waitcnt lgkmcnt(0)\nv_readfirstlane_b32 s{sT0}, v16\nv_readfirstlane_b32 s{sSLOW}, v17')
    a(f's_cmp_lg_u32 s{sSLOW}, 0\ns_cbranch_scc1 {d}\ns_cmp_ge_u32 s{sT0}, 1\ns_cbranch_scc1 L_T_qk2')
    a(f's_add_u32 s{sCNT}, s{sCNT}, 1\ns_cmp_lt_u32 s{sCNT}, {SPIN_LIM}\ns_cbranch_scc1 {l}\ns_endpgm')
    a.lab(d)
    pubdup(AC+4, 2, sB1)
    a('s_branch L_T_qk')
    a.lab('L_T23_job')
    a(f's_cmp_eq_u32 s{sW}, 2\ns_cbranch_scc1 L_T2_pre\ns_cmp_lt_u32 s{sR}, 16\ns_cbranch_scc1 L_T23_pre')
    qprec(sB1); qpaddr(2)
    a(f'v_not_b32 v16, v{VTA}\nv_mov_b32 v17, 0\nv_mov_b32 v18, 0\nv_mov_b32 v19, 0\ns_add_u32 s{sB2}, s{sB1}, 16384')
    a(f'buffer_store_dwordx4 v[16:19], v2, {sr(rWS,4)}, s{sB1} offen\nbuffer_store_dwordx4 v[16:19], v2, {sr(rWS,4)}, s{sB2} offen')
    a('s_branch L_T23_pre')
    a.lab('L_T2_pre')
    a(f's_cmp_ge_u32 s{sR}, 16\ns_cbranch_scc1 L_T2_pre2')
    spin(16, F_E, 7, sleep=1)
    a.lab('L_T2_pre2')
    a(f'v_not_b32 v16, v{VTA}\nv_mov_b32 v17, 0\nv_mov_b32 v18, 0\nv_mov_b32 v19, 0\nv_mov_b32 v21, 0\nv_mov_b32 v22, 0\nv_mov_b32 v23, 0\nv_mov_b32 v20, v16')
    a(f'buffer_store_dwordx4 v[16:19], v6, {sr(rWS,4)}, s{sB3} offen\nbuffer_store_dwordx4 v[16:19], v6, {sr(rWS,4)}, s{sB3} offen offset:1024')
    a(f's_mov_b64 exec, 0xf0\nv_mov_b32 v20, v{VTA}\ns_mov_b64 exec, 0xff\nbuffer_store_dwordx4 v[20:23], v6, {sr(rWS,4)}, s{sB3} offen offset:2048\ns_mov_b64 exec, -1')
    a.lab('L_T23_pre')
    a('s_waitcnt vmcnt(0)')
    sig(F_E)
    if pf is not None:
        pc, pr, pff = pf
        rem = 64 - 8*pc - 6*pr - 16*pff
        assert 0 <= rem and rem % 2 == 0
        a(f's_cmp_eq_u32 s{sW}, 2\ns_cbranch_scc1 L_pf_x')
        srd(rA, pWO, 4096*1024)
        a(f's_mul_i32 s{sT1}, s{sR}, {pc}\ns_movk_i32 s{sT2}, {pc}')
        for (r0, n, base) in ((8, pr, 8*pc), (14, rem // 2, 8*pc + 6*pr), (16, pff, 64 - 16*pff)):
            a(f's_mul_i32 s{sT0}, s{sR}, {n}\ns_add_u32 s{sT0}, s{sT0}, {(base - r0*n) & 0xffffffff:#x}\ns_cmp_ge_u32 s{sR}, {r0}\ns_cselect_b32 s{sT1}, s{sT0}, s{sT1}\ns_cselect_b32 s{sT2}, {n}, s{sT2}')
        a(f's_lshl_b32 s{sT1}, s{sT1}, 13\ns_lshl_b32 s{sT0}, s{sG}, 19\ns_add_u32 s{sT1}, s{sT1}, s{sT0}\nv_lshlrev_b32 v2, 7, v0')
        a(f's_cmp_lt_u32 s{sR}, 8\ns_cbranch_scc0 L_pf_1')
        spin(16, F_H, 1, sleep=1)
        a.lab('L_pf_1')
        if pfgate:
            a(f's_cmp_lt_u32 s{sR}, 16\ns_cbranch_scc1 L_pf_l')
            spin(16, F_GI, 2)
        a.lab('L_pf_l')
        a(f's_cmp_eq_u32 s{sT2}, 0\ns_cbranch_scc1 L_pf_x')
        a(f'buffer_load_dword v58, v2, {sr(rA,4)}, s{sT1} offen\ns_add_u32 s{sT1}, s{sT1}, 8192\ns_sub_u32 s{sT2}, s{sT2}, 1\ns_branch L_pf_l')
        a.lab('L_pf_x')
    a(f's_lshl_b32 s{sB1}, s{sG}, 15\ns_lshl_b32 s{sT0}, s{sB}, 13\ns_add_u32 s{sB1}, s{sB1}, s{sT0}\ns_add_u32 s{sB1}, s{sB1}, {WS_QP}')
    a('v_lshrrev_b32 v3, 5, v0\nv_and_b32 v2, 31, v0\nv_lshlrev_b32 v2, 4, v2\nv_lshl_add_u32 v2, v3, 11, v2\nv_add_u32 v59, 4096, v2')
    a(f'v_bfe_u32 v56, v0, 2, 2\nv_lshl_add_u32 v56, v7, 3, v56\nv_mul_u32_u24 v56, {OPS}, v56\nv_and_b32 v57, 3, v0\nv_lshl_add_u32 v56, v57, 4, v56')
    a(f's_mul_i32 s{sB4}, s{sG}, {32*OPS}\ns_add_u32 s{sB4}, s{sB4}, {WS_OP}\ns_mov_b32 s{sMK}, s{sMASK}')
    a(f'v_and_b32 v11, 1, v7\nv_mul_u32_u24 v3, 320, v3\nv_lshl_add_u32 v3, v11, 7, v3\nv_lshl_add_u32 v3, v9, 4, v3\nv_lshl_add_u32 v3, v10, 3, v3\nv_add_u32 v11, {L_Q}, v3')
    if not kfirst: a(f's_cmp_ge_u32 s{sR}, 16\ns_cbranch_scc1 L_T23_nok')
    kread()
    a.lab('L_T23_nok')
    a(f's_and_b32 s{sT0}, s{sW}, 1\ns_lshl_b32 s{sT0}, s{sT0}, 3\nv_add_u32 v60, s{sT0}, v13')
    l, d = U('L_g'), U('L_gd')
    a(f's_mov_b32 s{sCNT}, 0')
    a.lab(l)
    a(f'ds_read_b32 v3, v60 offset:{F_G2}\nds_read_b32 v4, v13 offset:{F_Q}\ns_waitcnt lgkmcnt(0)\nv_readfirstlane_b32 s{sT0}, v3\nv_readfirstlane_b32 s{sT1}, v4')
    a(f's_cmp_ge_u32 s{sT1}, 1\ns_cbranch_scc1 L_T23_q\ns_cmp_ge_u32 s{sT0}, 2\ns_cbranch_scc1 {d}')
    a(f's_add_u32 s{sCNT}, s{sCNT}, 1\ns_cmp_lt_u32 s{sCNT}, {SPIN_LIM}\ns_cbranch_scc1 {l}\ns_endpgm')
    a.lab(d)
    stamp(2)
    def l3():
        a(f'buffer_load_dword v57, v56, {sr(rWS,4)}, s{sB4} offen offset:{2048+64} sc1')
        for hp in range(2):
            for e in range(4): a(f'buffer_load_dwordx4 {vr(W0 + 16*hp + 4*e, 4)}, v{59 if hp else 2}, {sr(rWS,4)}, s{sB1} offen offset:{512*e} sc1')
    if '2' not in abl: poll(l3, [57] + [W0 + 4*k for k in range(8)], 3, local=(sB1, 4, 5), cnt=12, setslow=True, marker=57)
    stamp(3)
    tree(W0, 4); tree(W0 + 16, 4)
    for hp in range(2):
        R = W0 + 16*hp
        a(f'v_cvt_pk_bf16_f32 v{R}, v{R}, v{R+1}\nv_cvt_pk_bf16_f32 v{R+1}, v{R+2}, v{R+3}\nds_write_b64 v11, {vr(R,2)} offset:{640*hp}')
    sig(F_Q)
    stamp(4)
    a.lab('L_T23_q')
    if not kfirst:
        a(f's_cmp_lt_u32 s{sR}, 16\ns_cbranch_scc1 L_T_qk')
        kread()
    a.lab('L_T_qk')
    spin(16, F_Q, 1, extra=f'ds_read_b32 v17, v13 offset:{F_S}')
    a.lab('L_T_qk2')
    stamp(5)
    for j in range(4): a(f'ds_read_b128 {vr(QF + 4*j, 4)}, v52 offset:{64*j}')
    a(f'v_readfirstlane_b32 s{sSLOW}, v17\ns_mov_b32 s{sT2}, {f32(SC)}\ns_lshl_b32 s{sT1}, s{sW}, 9\ns_add_u32 s{sB3}, s{sB3}, s{sT1}')
    for j in range(4):
        a(f's_waitcnt lgkmcnt({3-j})')
        for t in range(4):
            c = '0' if j == 0 else vr(DD + 4*t, 4)
            a(f'v_mfma_f32_16x16x32_bf16 {vr(DD + 4*t, 4)}, {vr(KF + 16*t + 4*j, 4)}, {vr(QF + 4*j, 4)}, {c}')
    for t in range(1, 4):
        for r in range(4):
            a(f'v_mov_b32_dpp v{DD+r}, v{DD+4*t+r} quad_perm:[0,1,2,3] row_mask:0xf bank_mask:{1<<t:#x}')
    a(f'v_max3_f32 v16, v{DD}, v{DD+1}, v{DD+2}\nv_max_f32 v16, v16, v{DD+3}')
    a('v_max_f32_dpp v16, v16, v16 row_ror:4 row_mask:0xf bank_mask:0xf')
    a('v_max_f32_dpp v16, v16, v16 row_ror:8 row_mask:0xf bank_mask:0xf')
    a(f's_mov_b32 exec_lo, 0x000f000f\ns_mov_b32 exec_hi, 0x000f000f\nds_max_f32 v53, v16 offset:{F_MX}')
    sig(F_M)
    spin(16, F_M, 4, extra=f'ds_read_b32 v17, v53 offset:{F_MX}')
    a(f'v_mul_f32 v17, s{sT2}, v17')
    for r in range(4): a(f'v_fma_f32 v{DD+r}, v{DD+r}, s{sT2}, -v17')
    for r in range(4): a(f'v_exp_f32 v{DD+r}, v{DD+r}')
    a(f'v_cvt_pk_bf16_f32 v18, v{DD}, v{DD+1}\nv_cvt_pk_bf16_f32 v19, v{DD+2}, v{DD+3}\nds_write_b64 v54, v[18:19]')
    sig(F_PR)
    stamp(6)
    WGT, WUP, WDN = 64, 128, 192
    srd(rA, pWG, 512*3584); srd(rB, pWU, 512*3584); srd(rC, pWD, 1792*1024)
    a(f's_lshl_b32 s{sT1}, s{sG}, 2\ns_add_u32 s{sT1}, s{sT1}, s{sS}\ns_sub_u32 s{sT1}, s{sT1}, 4')
    a(f's_mul_i32 s{sB1}, s{sW}, {128*3584}\ns_lshl_b32 s{sT0}, s{sT1}, 7\ns_add_u32 s{sB1}, s{sB1}, s{sT0}')
    a(f's_lshl_b32 s{sMK}, s{sT1}, 16\ns_lshl_b32 s{sT0}, s{sW}, 8\ns_add_u32 s{sMK}, s{sMK}, s{sT0}')
    a('v_lshrrev_b32 v2, 3, v0\nv_mul_u32_u24 v2, 3584, v2\nv_lshl_add_u32 v2, v9, 4, v2')
    a('v_lshlrev_b32 v61, 10, v7\nv_lshl_add_u32 v61, v8, 4, v61')
    fl_ = []
    def gu(grp):
        pre = (f's_xor_b32 s{sT0}, s{sB}, {grp}\ns_mul_i32 s{sT0}, s{sT0}, {32*3584}\ns_add_u32 s{sB4}, s{sB1}, s{sT0}' if rot else f's_add_u32 s{sB4}, s{sB1}, {grp*32*3584}')
        for k in range(4):
            i = 4*grp + k
            fl_.append((pre, WGT + 4*i, 2, rA)); fl_.append(('', WUP + 4*i, 2, rB))
            pre = f's_add_u32 s{sB4}, s{sB4}, {8*3584}'
    def dn(grp):
        pre = (f's_xor_b32 s{sT0}, s{sB}, {grp}\ns_lshl_b32 s{sT0}, s{sT0}, 14\ns_add_u32 s{sB4}, s{sMK}, s{sT0}' if rot else f's_add_u32 s{sB4}, s{sMK}, {grp*16384}')
        for k in range(4):
            fl_.append((pre, WDN + 4*(4*grp + k), 61, rC))
            pre = f's_add_u32 s{sB4}, s{sB4}, 4096'
    gu(0); dn(0); gu(1); gu(2); gu(3); dn(1); dn(2); dn(3)
    def fld(lo, hi, thr=True):
        for n in range(lo, hi):
            pre, dst, va, rs = fl_[n]
            if thr and n >= NTT and n % 2 == 0: a(f's_waitcnt vmcnt({NTT-2})')
            a(pre)
            a(f'buffer_load_dwordx4 {vr(dst,4)}, v{va}, {sr(rs,4)}, s{sB4} offen {wfl}')
    if ne:
        a(f's_cmp_lt_u32 s{sR}, 16\ns_cbranch_scc1 L_T_noe\ns_cmp_eq_u32 s{sG}, 7\ns_cbranch_scc1 L_T_noe')
        spin(16, F_VI, 4)
        fld(0, ne)
        a.lab('L_T_noe')
    a('s_mov_b32 exec_hi, 0\ns_barrier')
    sum4(32, 55, 2048)
    tagit(32, VTA)
    a(f'buffer_store_dwordx4 v[32:35], v6, {sr(rWS,4)}, s{sB3} offen')
    pubdup(32, 6, sB3)
    a('s_mov_b32 exec_hi, -1')
    stamp(7)
    if abl: a('s_branch L_fin')
    a(f's_cmp_ge_u32 s{sR}, 16\ns_cbranch_scc1 L_T_notO\ns_barrier\ns_branch L_fin')
    a.lab('L_T_notO')
    a(f's_cmp_eq_u32 s{sG}, 7\ns_cbranch_scc1 L_fin')
    fld(ne, 36 if dnlate else 48)
    GA, SB, CB, XX = 16, 18, 20, 22
    imgbase()
    srd(rB, pX, 4096)
    a(f'v_lshl_add_u32 v4, v9, 3, v7\nv_lshl_add_u32 v4, v10, 2, v4\nv_lshlrev_b32 v5, 1, v4')
    a(f's_lshl_b32 s{sT0}, s{sB}, 10\ns_lshl_b32 s{sT2}, s{sW}, 8\ns_add_u32 s{sT0}, s{sT0}, s{sT2}')
    a(f'buffer_load_ushort v{XX}, v5, {sr(rB,4)}, s{sT0} offen\nbuffer_load_ushort v{XX+1}, v5, {sr(rB,4)}, s{sT0} offen offset:128')
    par_addr(11, 5)
    for i in range(8): a(f'v_mov_b32 v{AC+i}, 0')
    a(f's_lshl_b32 s{sT2}, s{sB}, 1' if rot else f's_mov_b32 s{sT2}, 0')
    a(f'v_and_b32 v3, 1, v0\nv_lshlrev_b32 v32, 6, v3\nv_lshl_add_u32 v32, v10, 5, v32\nv_and_b32 v3, 1, v7\nv_lshl_add_u32 v32, v3, 4, v32\nv_lshrrev_b32 v3, 1, v7\nv_lshl_add_u32 v32, v3, 3, v32\nv_add_u32 v32, s{sT3}, v32')
    a(f'v_lshrrev_b32 v2, 1, v9\nv_xor_b32 v2, s{sT2}, v2\nv_xor_b32 v3, 4, v2\nv_mov_b32 v33, {SIG}\nv_mad_u32_u24 v2, v2, v33, v32\nv_mad_u32_u24 v3, v3, v33, v32')
    a(f'v_xor_b32 v62, s{sT2}, v9\nv_mul_u32_u24 v62, {SIG}, v62\nv_lshl_add_u32 v62, v7, 5, v62\nv_lshl_add_u32 v62, v10, 3, v62\nv_add_u32 v62, s{sT3}, v62')
    a(f's_lshl_b32 s{sT0}, s{sW}, 9\ns_add_u32 s{sT2}, s{sT0}, {L_X1}\nv_lshl_add_u32 v4, v4, 2, s{sT2}')
    a(f's_add_u32 s{sT2}, s{sT0}, {L_RS}\nv_lshlrev_b32 v32, 4, v8\nv_lshl_add_u32 v32, v7, 2, v32\nv_add_u32 v32, s{sT2}, v32')
    a(f's_lshl_b32 s{sB1}, s{sB}, 14\ns_lshl_b32 s{sT2}, s{sW}, 12\ns_add_u32 s{sB1}, s{sB1}, s{sT2}\ns_add_u32 s{sB1}, s{sB1}, {WS_YP}')
    a(f's_lshl_b32 s{sB2}, s{sB}, 16\ns_lshl_b32 s{sT2}, s{sW}, 14\ns_add_u32 s{sB2}, s{sB2}, s{sT2}\ns_lshl_b32 s{sT2}, s{sT1}, 7\ns_add_u32 s{sB2}, s{sB2}, s{sT2}\ns_add_u32 s{sB2}, s{sB2}, {WS_FP}')
    a('s_barrier')
    a(f'ds_read2st64_b32 {vr(GA,2)}, v32 offset0:0 offset1:1\nds_read2st64_b32 {vr(SB,2)}, v32 offset0:8 offset1:9\nds_read2st64_b32 {vr(CB,2)}, v32 offset0:16 offset1:17')
    stamp(15)
    AR2 = 32
    def l5():
        for k in range(4): a(f'buffer_load_dwordx4 {vr(AR + 4*k, 4)}, v6, {sr(rWS,4)}, s{sB1} offen offset:{1024*k} sc1')
    a('s_waitcnt lgkmcnt(0)')
    a(f'v_add_f32 v{CB}, 1.0, v{CB}\nv_add_f32 v{CB+1}, 1.0, v{CB+1}')
    poll(l5, [AR + 4*k for k in range(4)], 48, cnt=14, first=((lambda: fld(36, 48, False), 12) if dnlate else None))
    stamp(8)
    red8(AR, 48); red8(AR + 8, 49)
    a(f'v_lshlrev_b32 v{XX}, 16, v{XX}\nv_lshlrev_b32 v{XX+1}, 16, v{XX+1}')
    a(f'v_fmac_f32 v{XX}, v48, v{GA}\nv_fmac_f32 v{XX+1}, v49, v{GA+1}')
    a(f'ds_write2_b32 v4, v{XX}, v{XX+1} offset0:0 offset1:64')
    a(f'v_add_f32 v48, v{XX}, v{XX+1}\nv_mul_f32 v49, v{XX}, v{XX}\nv_fmac_f32 v49, v{XX+1}, v{XX+1}')
    for k in (1, 2, 4, 8):
        a(f'v_add_f32_dpp v48, v48, v48 row_ror:{k} row_mask:0xf bank_mask:0xf\nv_add_f32_dpp v49, v49, v49 row_ror:{k} row_mask:0xf bank_mask:0xf')
    a('v_add_f32_dpp v48, v48, v48 row_bcast:15 row_mask:0xa bank_mask:0xf\nv_add_f32_dpp v49, v49, v49 row_bcast:15 row_mask:0xa bank_mask:0xf')
    a('v_add_f32_dpp v48, v48, v48 row_bcast:31 row_mask:0xc bank_mask:0xf\nv_add_f32_dpp v49, v49, v49 row_bcast:31 row_mask:0xc bank_mask:0xf')
    a(f's_lshl_b32 s{sT0}, s{sW}, 3\ns_add_u32 s{sT0}, s{sT0}, {L_ST}\nv_mov_b32 v50, s{sT0}\nv_mov_b32 v51, {L_ST}')
    a('s_mov_b32 exec_lo, 0\ns_mov_b32 exec_hi, 0x80000000\nds_write_b64 v50, v[48:49]\ns_mov_b64 exec, -1')
    a('s_waitcnt lgkmcnt(0)\ns_barrier')
    a('ds_read_b128 v[32:35], v51\nds_read_b128 v[36:39], v51 offset:16')
    a('s_waitcnt lgkmcnt(0)\nv_pk_add_f32 v[32:33], v[32:33], v[34:35]\nv_pk_add_f32 v[36:37], v[36:37], v[38:39]\nv_pk_add_f32 v[32:33], v[32:33], v[36:37]')
    a(f'v_mul_f32 v32, {f32(1.0/512)}, v32\nv_mul_f32 v33, {f32(1.0/512)}, v33\nv_fma_f32 v33, -v32, v32, v33\nv_max_f32 v33, 0, v33\nv_add_f32 v33, {f32(1e-5)}, v33\nv_rsq_f32 v33, v33')
    a(f'v_sub_f32 v34, v{XX}, v32\nv_sub_f32 v35, v{XX+1}, v32\nv_mul_f32 v34, v34, v33\nv_mul_f32 v35, v35, v33')
    a(f'v_fma_f32 v34, v34, v{CB}, v{SB}\nv_fma_f32 v35, v35, v{CB+1}, v{SB+1}\nv_cvt_pk_bf16_f32 v60, v34, 0\nv_cvt_pk_bf16_f32 v61, v35, 0')
    a('ds_write2_b32 v2, v60, v60 offset0:0 offset1:33\nds_write2_b32 v3, v61, v61 offset0:0 offset1:33')
    AO = [32 + 4*s for s in range(7)] + [16]
    for s in range(8): a(f'ds_read_b128 {vr(AO[s], 4)}, v11 offset:{s*SIG}')
    a(f's_lshl_b32 s{sT0}, s{sW}, 9\ns_add_u32 s{sT0}, s{sT0}, {L_RED}\nv_lshl_add_u32 v2, v0, 3, s{sT0}\nv_lshlrev_b32 v3, 3, v0\nv_add_u32 v3, {L_RED}, v3')
    a('v_lshlrev_b32 v4, 13, v10\nv_lshl_add_u32 v4, v7, 12, v4\nv_lshl_add_u32 v4, v9, 4, v4')
    for s in range(8):
        a(f's_waitcnt lgkmcnt({7-s})')
        a(f'v_smfmac_f32_16x16x64_bf16 {vr(AC,4)}, {vr(AO[s],4)}, {vr(WGT+8*s,8)}, v5')
        a(f'v_smfmac_f32_16x16x64_bf16 {vr(AC+4,4)}, {vr(AO[s],4)}, {vr(WUP+8*s,8)}, v5')
    parity(20, AC); parity(21, AC+4)
    a('ds_write_b64 v2, v[20:21]')
    for i in range(4): a(f'v_mov_b32 v{AC+i}, 0')
    a(f's_mov_b32 s{sT0}, {f32(-math.log2(math.e))}')
    a('s_waitcnt lgkmcnt(0)\ns_barrier')
    stamp(9)
    for w in range(4): a(f'ds_read_b64 {vr(32 + 2*w, 2)}, v3 offset:{512*w}')
    a('s_waitcnt lgkmcnt(2)\nv_pk_add_f32 v[32:33], v[32:33], v[34:35]\ns_waitcnt lgkmcnt(0)\nv_pk_add_f32 v[36:37], v[36:37], v[38:39]\nv_pk_add_f32 v[32:33], v[32:33], v[36:37]')
    a(f'v_mul_f32 v32, s{sT0}, v32\nv_exp_f32 v32, v32\nv_add_f32 v32, 1.0, v32\nv_rcp_f32 v32, v32\nv_mul_f32 v32, v32, v33\nv_cvt_pk_bf16_f32 v20, v32, 0')
    a('ds_write2_b32 v62, v20, v20 offset0:0 offset1:33\ns_waitcnt vmcnt(0)')
    for s in range(8): a(f'ds_read_b128 {vr(AO[s], 4)}, v12 offset:{s*SIG}')
    for s in range(8):
        a(f's_waitcnt lgkmcnt({7-s})')
        a(f'v_smfmac_f32_16x16x64_bf16 {vr(AC,4)}, {vr(AO[s],4)}, {vr(WDN+8*s,8)}, v{VI}')
    a('s_mov_b32 exec_hi, 0')
    tagit(AC)
    a(f'buffer_store_dwordx4 {vr(AC,4)}, v4, {sr(rWS,4)}, s{sB2} offen sc1')
    stamp(10)
    a('s_branch L_fin')

    VR, PX, PV_, WO, ACL, ONE = 32, 96, 160, 192, 20, 16
    a.lab('L_A')
    a(f's_lshl_b32 s{sB1}, s{sB}, 24\ns_lshl_b32 s{sT0}, s{sG}, 21\ns_or_b32 s{sB1}, s{sB1}, s{sT0}')
    a(f's_lshl_b32 s{sT0}, s{sS}, 16\ns_or_b32 s{sB1}, s{sB1}, s{sT0}\ns_lshl_b32 s{sT1}, s3, 14\ns_or_b32 s{sB1}, s{sB1}, s{sT1}')
    a(f's_and_b32 s{sT0}, s{sR}, 15\ns_lshl_b32 s{sT0}, s{sT0}, 10\ns_or_b32 s{sB1}, s{sB1}, s{sT0}\ns_or_b32 s{sB1}, s{sB1}, 0x180000')
    a(f's_mov_b32 m0, s{sT1}')
    a('v_lshlrev_b32 v2, 6, v7\nv_xor_b32 v2, v6, v2\nv_xor_b32 v3, 16, v2\nv_xor_b32 v4, 32, v2\nv_xor_b32 v5, 48, v2')
    a(f's_mov_b32 s{sLO}, 0x05040100\ns_mov_b32 s{sHI}, 0x07060302')
    a('s_waitcnt lgkmcnt(0)')
    stamp(1)
    a(f's_load_dword s{sE}, s[32:33], 0')
    srd(rA, pK, 0x4000000); srd(rB, pV, 0x4000000)
    def setup_A():
        zero_ts()
        a(f's_getreg_b32 s{sXC}, hwreg(HW_REG_XCC_ID, 0, 3)')
        if forceslow: a(f's_cmp_eq_u32 s{sR}, {forceslow}\ns_cselect_b32 s{sXC}, 1, 0')
        a(f's_lshl_b32 s{sXC}, s{sXC}, 9\ns_waitcnt lgkmcnt(0)')
        mktag()
        sig(F_E)
    def perm_pair(k):
        blk, p = k >> 2, k & 3
        r0 = VR + 32*blk + 8*p
        for c in range(4):
            a(f'v_perm_b32 v{PX + 32*blk + 8*c + p}, v{r0+4+c}, v{r0+c}, s{sLO}')
            a(f'v_perm_b32 v{PX + 32*blk + 8*c + 4 + p}, v{r0+4+c}, v{r0+c}, s{sHI}')
    NMAX = max(math.ceil(x) for x in (NF, NO))
    PAIRS_IN_LOOP = (16 - NMAX) // 2
    def stream(N, with_wo, sigs, pauses):
        seq = [('K', i) for i in range(16)] + [('V', i) for i in range(16)]
        if with_wo and 'w' not in abl: seq = seq[:wopos] + [('O', i) for i in range(16)] + seq[wopos:]
        kl = max(n for n, x in enumerate(seq) if x[0] == 'K')
        done_pairs = 0; ksig = False
        for n, (t, i) in enumerate(seq):
            if with_wo and NO2 is not None and n >= nsw: N = NO2
            w = int(N*(n+1)) - int(N*n)
            if n in pauses: pauses[n]()
            if n >= w: a(f's_waitcnt vmcnt({w-1})')
            for (gn, fo) in sigs:
                if n == gn: sig(fo)
            landed = n - w + 1
            if prog:
                step = 5 if len(seq) > 32 else 3
                slots = [7, 8, 9, 10, 12, 13, 14, 15]
                if landed > 0 and landed % step == 0 and landed // step <= 8: stamp(slots[landed // step - 1])
            if t == 'O':
                a(f'buffer_load_dwordx4 {vr(WO + 4*i, 4)}, v11, {sr(rC,4)}, s{sB2} offen {ofl}')
                if i < 15:
                    cur = ((i >> 2) * 128 + (i & 3) * 8) * 1024; nxt = (((i+1) >> 2) * 128 + ((i+1) & 3) * 8) * 1024
                    a(f's_xor_b32 s{sB2}, s{sB2}, {cur ^ nxt:#x}')
            else:
                if i: a(f's_xor_b32 s{sOFF}, s{sB1}, {i << 10}')
                so = sOFF if i else sB1
                if t == 'K':
                    a(f'buffer_load_dwordx4 v{2 + (i & 3)}, {sr(rA,4)}, s{so} offen {kvfl} lds')
                    if i < 15: a('s_add_u32 m0, m0, 0x400')
                else:
                    a(f'buffer_load_dwordx4 {vr(VR + 4*i, 4)}, v6, {sr(rB,4)}, s{so} offen {kvfl}')
            if not ksig and landed > kl: sig(F_K); ksig = True
            vl = sum(1 for x in seq[:max(landed, 0)] if x[0] == 'V')
            while done_pairs < PAIRS_IN_LOOP and vl >= 2*done_pairs + 2:
                perm_pair(done_pairs); done_pairs += 1
        assert ksig and done_pairs == PAIRS_IN_LOOP, (ksig, done_pairs)
        assert seq[-(16 - 2*PAIRS_IN_LOOP):] == [('V', i) for i in range(2*PAIRS_IN_LOOP, 16)]
    a(f's_cmp_lt_u32 s{sR}, 16\ns_cbranch_scc1 L_A_O')
    a('s_barrier')
    def p1():
        setup_A()
        a(f's_waitcnt vmcnt({n1w})'); sig(F_G); spin(16, F_GI, 2)
    def p2(): spin(16, F_P, 2)
    def p12(): p1(); p2()
    stream(NF, False, [(g2f[0], F_G2), (g2f[1], F_G3)], {n1: p1, n1 + n2: p2} if n2 else {n1: p12})
    a('s_branch L_A_pv')
    a.lab('L_A_O')
    srd(rC, pWO, 4096*1024)
    a('v_lshlrev_b32 v11, 10, v7\nv_lshl_add_u32 v11, v10, 15, v11\nv_lshl_add_u32 v11, v9, 4, v11')
    if 'l' in abl: a(f's_lshr_b32 s{sT0}, s{sR}, 1\ns_and_b32 s{sT1}, s{sT0}, 3\ns_lshl_b32 s{sT1}, s{sT1}, 10\ns_lshr_b32 s{sT2}, s{sT0}, 2\ns_lshl_b32 s{sT2}, s{sT2}, 15\ns_add_u32 s{sT1}, s{sT1}, s{sT2}\ns_xor_b32 s{sT0}, s{sT0}, 4\ns_lshl_b32 s{sT0}, s{sT0}, 7\ns_sub_u32 s{sT1}, s{sT1}, s{sT0}\ns_add_u32 s{sT1}, s{sT1}, 1024\nv_add_u32 v11, s{sT1}, v6')
    a(f's_lshl_b32 s{sB2}, s{sG}, 19\ns_lshr_b32 s{sT0}, s{sR}, 1\ns_xor_b32 s{sT0}, s{sT0}, 4\ns_lshl_b32 s{sT0}, s{sT0}, 7\ns_add_u32 s{sB2}, s{sB2}, s{sT0}')
    a(f's_and_b32 s{sT0}, s{sW}, 1\ns_lshl_b32 s{sT0}, s{sT0}, 16\ns_add_u32 s{sB2}, s{sB2}, s{sT0}\ns_lshr_b32 s{sT0}, s{sW}, 1\ns_lshl_b32 s{sT0}, s{sT0}, 12\ns_add_u32 s{sB2}, s{sB2}, s{sT0}')
    a(f's_and_b32 s{sT0}, s{sR}, 1\ns_lshl_b32 s{sT0}, s{sT0}, 18\ns_add_u32 s{sB2}, s{sB2}, s{sT0}')
    a('s_barrier')
    a(f's_cmp_lt_u32 s{sR}, 8\ns_cbranch_scc0 L_A_go')
    spin(16, F_H, 1)
    a.lab('L_A_go')
    stream(NO, True, [(gr, F_G), (g2o[0], F_G2), (g2o[1], F_G3)], {int(NO): setup_A})
    a.lab('L_A_pv')
    sig(F_VI)
    stamp(2)
    a(f's_lshl_b32 s{sT1}, s{sW}, 9\ns_add_u32 s{sT1}, s{sT1}, {L_P}\nv_and_b32 v11, 3, v0\nv_lshlrev_b32 v11, 4, v11\nv_lshl_add_u32 v11, v7, 6, v11\nv_add_u32 v11, s{sT1}, v11')
    for u in range(4): a(f'v_mov_b32 v{2+u}, {L_Z}')
    for u in range(4): a(f'v_mov_b32_dpp v{2+u}, v11 quad_perm:[0,1,2,3] row_mask:0xf bank_mask:{1<<u:#x}')
    for i in range(4): a(f'v_mov_b32 v{ONE+i}, 0x3f803f80')
    a(f's_lshl_b32 s{sT0}, s3, 11\ns_add_u32 s{sT0}, s{sT0}, {L_ORED}\nv_add_u32 v11, s{sT0}, v6')
    a(f's_lshl_b32 s{sT0}, s3, 2\ns_add_u32 s{sT0}, s{sT0}, {L_LS}\nv_add_u32 v12, s{sT0}, v6')
    assert PAIRS_IN_LOOP >= 4
    spin(20, F_PR, 4, extra=f'ds_read_b32 v21, v13 offset:{F_S}')
    stamp(3)
    for blk in range(2):
        for u in range(4): a(f'ds_read_b128 {vr(PV_ + 16*blk + 4*u, 4)}, v{2+u} offset:{256*blk}')
    a(f'v_readfirstlane_b32 s{sSLOW}, v21')
    def pv(blk, j):
        x, u = j >> 2, j & 3
        c = '0' if (blk == 0 and u == 0) else vr(AC + 4*x, 4)
        a(f'v_mfma_f32_16x16x32_bf16 {vr(AC + 4*x, 4)}, {vr(PX + 32*blk + 4*j, 4)}, {vr(PV_ + 16*blk + 4*u, 4)}, {c}')
    for u in range(4):
        a(f's_waitcnt lgkmcnt({7-u})')
        pv(0, u); pv(0, 4 + u)
    a('s_waitcnt lgkmcnt(0)')
    a(f'v_mfma_f32_16x16x32_bf16 {vr(ACL,4)}, {vr(ONE,4)}, {vr(PV_,4)}, 0')
    a(f'v_mfma_f32_16x16x32_bf16 {vr(ACL,4)}, {vr(ONE,4)}, {vr(PV_+16,4)}, {vr(ACL,4)}')
    stamp(4)
    for k in range(PAIRS_IN_LOOP, 8):
        a(f's_waitcnt vmcnt({14 - 2*k})')
        if k == 7: stamp(5)
        perm_pair(k)
        if k == 6: a(f's_mov_b64 exec, 15\nds_write_b32 v12, v{ACL}\ns_mov_b64 exec, -1')
    for j in range(8): pv(1, j)
    a(f'ds_write_b128 v11, {vr(AC,4)}\nds_write_b128 v11, {vr(AC+4,4)} offset:1024')
    a('s_waitcnt lgkmcnt(0)\ns_barrier')
    stamp(6)
    a('s_cmp_eq_u32 s3, 0\ns_cbranch_scc0 L_A_done')
    a(f'v_add_u32 v12, {L_LS}, v6\nv_lshl_add_u32 v11, v0, 2, v13\ns_mov_b64 exec, 15\nds_read_b128 v[36:39], v12\nds_read_b32 v33, v11 offset:{F_MX}')
    oprec(sB1)
    a(f's_add_u32 s{sB1}, s{sB1}, 2048\nv_mov_b32 v32, v{VTA}\nv_mov_b32 v35, 0')
    a(f's_waitcnt lgkmcnt(0)\nv_add_f32 v36, v36, v37\nv_add_f32 v38, v38, v39\nv_mul_f32 v33, {f32(SC)}, v33\nv_add_f32 v34, v36, v38')
    a(f'buffer_store_dwordx4 v[32:35], v6, {sr(rWS,4)}, s{sB1} offen')
    pubdup(32, 6, sB1)
    a('s_mov_b64 exec, -1')
    a.lab('L_A_done')
    if abl: a('s_branch L_fin')
    a(f's_cmp_ge_u32 s{sR}, 16\ns_cbranch_scc1 L_A_notO')
    imgbase()
    par_addr(11, 5)
    for i in range(8): a(f'v_mov_b32 v{AC+i}, 0')
    a(f'v_lshrrev_b32 v16, 5, v0\nv_and_b32 v17, 31, v0\nv_mul_u32_u24 v3, {OPS}, v16\nv_lshl_add_u32 v3, v17, 4, v3\ns_lshl_b32 s{sT0}, s{sW}, 9\nv_add_u32 v3, s{sT0}, v3')
    a(f'v_lshrrev_b32 v18, 2, v0\nv_mul_u32_u24 v4, {OPS}, v18\nv_and_b32 v19, 3, v0\nv_lshl_add_u32 v4, v19, 4, v4')
    a(f's_and_b32 s{sT0}, s{sR}, 1\ns_lshl_b32 s{sT1}, s{sG}, 1\ns_add_u32 s{sT0}, s{sT0}, s{sT1}\ns_mul_i32 s{sB2}, s{sT0}, {16*OPS}\ns_add_u32 s{sB2}, s{sB2}, {WS_OP}')
    a(f's_lshl_b32 s{sT0}, s{sW}, 8\ns_add_u32 s{sT0}, s{sT0}, {L_WT}')
    a(f'v_and_b32 v20, 1, v18\nv_lshlrev_b32 v20, 5, v20\nv_lshl_add_u32 v20, v19, 6, v20\nv_lshl_add_u32 v20, v16, 4, v20\nv_bfe_u32 v21, v0, 3, 2\nv_lshl_add_u32 v20, v21, 2, v20\nv_add_u32 v20, s{sT0}, v20')
    a(f'v_lshlrev_b32 v21, 6, v19\nv_lshl_add_u32 v21, v16, 5, v21\nv_add_u32 v21, s{sT0}, v21')
    a(f's_and_b32 s{sT0}, s{sR}, 1\ns_lshl_b32 s{sT0}, s{sT0}, 1\nv_xor_b32 v23, s{sT0}, v19')
    a(f'v_mul_u32_u24 v22, {PASS}, v16\nv_mul_u32_u24 v23, {2*SIG}, v23\nv_add3_u32 v22, v22, v23, s{sT3}')
    a('v_lshl_add_u32 v22, v10, 5, v22\nv_and_b32 v23, 1, v18\nv_lshl_add_u32 v22, v23, 3, v22\nv_and_b32 v23, 1, v7\nv_lshl_add_u32 v22, v23, 4, v22')
    a(f'v_lshlrev_b32 v23, 3, v23\nv_lshl_add_u32 v23, v16, 7, v23\nv_lshl_add_u32 v23, v9, 4, v23\nv_lshl_add_u32 v23, v10, 2, v23\ns_lshl_b32 s{sT0}, s{sW}, 9\ns_add_u32 s{sT0}, s{sT0}, {L_RED}\nv_add_u32 v23, s{sT0}, v23')
    G = 40; ST = 72
    def l4():
        a(f'buffer_load_dwordx4 {vr(ST,4)}, v4, {sr(rWS,4)}, s{sB2} offen offset:2048 sc1')
        for bb in range(2):
            for jj in range(4):
                o = (bb*8 + 2*jj) * OPS
                if o: a(f's_add_u32 s{sOFF}, s{sB2}, {o}')
                a(f'buffer_load_dwordx4 {vr(G + 16*bb + 4*jj, 4)}, v3, {sr(rWS,4)}, s{sOFF if o else sB2} offen sc1')
    if osleep: a(f's_sleep {osleep}')
    stamp(7)
    poll(l4, [ST] + [G + 4*k for k in range(8)], 17, local=(sB2, 2, 12), cnt=14)
    stamp(8)
    a(f'v_max_f32_dpp v17, v{ST+1}, v{ST+1} row_ror:4 row_mask:0xf bank_mask:0xf')
    a('v_max_f32_dpp v17, v17, v17 row_ror:8 row_mask:0xf bank_mask:0xf')
    a('v_mov_b32 v18, v17\nv_permlane16_swap_b32 v17, v18\nv_max_f32 v17, v17, v18')
    a(f'v_sub_f32 v17, v{ST+1}, v17\nv_exp_f32 v17, v17\nv_mul_f32 v18, v17, v{ST+2}')
    a('v_add_f32_dpp v18, v18, v18 row_ror:4 row_mask:0xf bank_mask:0xf')
    a('v_add_f32_dpp v18, v18, v18 row_ror:8 row_mask:0xf bank_mask:0xf')
    a('v_mov_b32 v19, v18\nv_permlane16_swap_b32 v18, v19\nv_add_f32 v18, v18, v19\nv_rcp_f32 v18, v18\nv_mul_f32 v17, v17, v18')
    a(f'ds_write_b32 v20, v17\nds_read_b128 {vr(ST,4)}, v21\nds_read_b128 {vr(ST+4,4)}, v21 offset:16')
    for bb in range(2):
        a(f's_waitcnt lgkmcnt({1-bb})')
        for r in range(4): a(f'v_mul_f32 v{G+16*bb+r}, v{G+16*bb+r}, v{ST+4*bb}')
        for jj in range(1, 4):
            for r in range(4): a(f'v_fmac_f32 v{G+16*bb+r}, v{G+16*bb+4*jj+r}, v{ST+4*bb+jj}')
    for r in range(4): a(f'v_permlane32_swap_b32 v{G+r}, v{G+16+r}')
    for r in range(4): a(f'v_add_f32 v{G+r}, v{G+r}, v{G+16+r}')
    for r in range(4): a(f'v_cvt_pk_bf16_f32 v{G+r}, v{G+r}, 0')
    a(f'ds_write2_b32 v22, v{G}, v{G+1} offset0:0 offset1:16\nds_write2_b32 v22, v{G}, v{G+1} offset0:33 offset1:49')
    a(f'ds_write2_b32 v22, v{G+2}, v{G+3} offset0:72 offset1:88\nds_write2_b32 v22, v{G+2}, v{G+3} offset0:105 offset1:121')
    two_pass(11, 5, 96, WO)
    parity(16, AC); parity(17, AC+4)
    a('ds_write2_b32 v23, v16, v17 offset0:0 offset1:64')
    a(f's_and_b32 s{sT0}, s{sR}, 1\ns_lshl_b32 s{sB1}, s{sT0}, 15\ns_lshr_b32 s{sT0}, s{sR}, 1\ns_xor_b32 s{sT0}, s{sT0}, 4\ns_lshl_b32 s{sT0}, s{sT0}, 11\ns_add_u32 s{sB1}, s{sB1}, s{sT0}\ns_lshl_b32 s{sT0}, s{sG}, 8\ns_add_u32 s{sB1}, s{sB1}, s{sT0}\ns_add_u32 s{sB1}, s{sB1}, {WS_YP}')
    a(f'v_lshlrev_b32 v2, 14, v7\nv_lshl_add_u32 v2, v8, 4, v2\nv_add_u32 v3, {L_RED}, v6')
    a('s_waitcnt lgkmcnt(0)\ns_barrier')
    stamp(9)
    a(f's_cmp_eq_u32 s{sW}, 0\ns_cbranch_scc0 L_fin')
    a('s_mov_b32 exec_hi, 0')
    sum4(32, 3, 512)
    tagit(32)
    a(f'buffer_store_dwordx4 v[32:35], v2, {sr(rWS,4)}, s{sB1} offen sc1')
    stamp(10)
    a('s_branch L_fin')
    a.lab('L_A_notO')
    a(f's_cmp_eq_u32 s{sG}, 7\ns_cbranch_scc1 L_fin')
    a(f's_lshl_b32 s{sB1}, s{sB}, 13\ns_lshl_b32 s{sT1}, s{sW}, 11\ns_add_u32 s{sB1}, s{sB1}, s{sT1}\ns_add_u32 s{sB1}, s{sB1}, {WS_RD}\ns_add_u32 s{sT1}, s{sT1}, {L_RS}\nv_add_u32 v2, s{sT1}, v6')
    if osleep: a(f's_sleep {osleep}')
    def l6():
        for j in range(2): a(f'buffer_load_dwordx4 {vr(40+4*j,4)}, v6, {sr(rWS,4)}, s{sB1} offen offset:{1024*j} sc1')
    poll(l6, [40, 44], 19, cnt=13)
    a('ds_write_b128 v2, v[40:43]\nds_write_b128 v2, v[44:47] offset:1024\ns_waitcnt lgkmcnt(0)\ns_barrier')
    a(f's_cmp_lt_u32 s{sG}, 4\ns_cselect_b32 s{sT0}, s3, 0\ns_cmp_eq_u32 s{sT0}, 3\ns_cbranch_scc1 L_final')
    a('s_barrier\ns_barrier\ns_branch L_fin')
    a.lab('L_final')
    a(f's_lshl_b32 s{sT1}, s{sG}, 2\ns_add_u32 s{sT1}, s{sT1}, s{sS}\ns_sub_u32 s{sT1}, s{sT1}, 4')
    a(f's_lshr_b32 s{sT2}, s{sT1}, 1\ns_and_b32 s{sT3}, s{sT1}, 1')
    a(f's_lshl_b32 s{sT0}, s{sT1}, 7\ns_add_u32 s{sT0}, s{sT0}, {L_RS + 6144}\nv_lshlrev_b32 v18, 4, v9\nv_lshl_add_u32 v18, v7, 2, v18\nv_add_u32 v18, s{sT0}, v18\nds_read_b32 v20, v18')
    a(f's_lshl_b32 s{sT0}, s{sT2}, 6\ns_lshl_b32 s{sT3}, s{sT3}, 2\ns_add_u32 s{sT0}, s{sT0}, s{sT3}')
    a(f'v_lshl_add_u32 v21, v9, 3, v7\nv_add_u32 v21, s{sT0}, v21')
    a(f'v_lshlrev_b32 v22, 2, v21\nv_lshlrev_b32 v21, 1, v21\nv_add_u32 v22, {L_X1}, v22')
    a(f's_lshl_b32 s{sB1}, s{sB}, 4\ns_add_u32 s{sB1}, s{sB1}, s{sT1}\ns_lshl_b32 s{sB1}, s{sB1}, 12\ns_add_u32 s{sB1}, s{sB1}, {WS_FP}')
    srd(rA, pOUT, 4096)
    a(f's_lshl_b32 s{sB2}, s{sB}, 10')
    for i in range(4): a(f'v_mov_b32 v{44+i}, 0')
    a('s_barrier\nds_read_b32 v23, v22\ns_barrier')
    stamp(7)
    if fsleep: a(f's_sleep {fsleep}')
    def fl():
        for j in range(3): a(f'buffer_load_dwordx4 {vr(32+4*j,4)}, v6, {sr(rWS,4)}, s{sB1} offen offset:{1024*j} sc1')
        a(f's_mov_b32 exec_hi, 0\nbuffer_load_dwordx4 v[44:47], v6, {sr(rWS,4)}, s{sB1} offen offset:3072 sc1')
    def fchk():
        a(f'v_xor_b32 v44, v44, v{VT}\ns_mov_b32 exec_hi, -1')
        for j in range(3): a(f'v_xor_b32 v{32+4*j}, v{32+4*j}, v{VT}')
    poll(fl, [32, 36, 40, 44], 19, pre_check=fchk, cnt=14)
    stamp(8)
    a('v_pk_add_f32 v[32:33], v[32:33], v[40:41]\nv_pk_add_f32 v[34:35], v[34:35], v[42:43]')
    a('v_pk_add_f32 v[36:37], v[36:37], v[44:45]\nv_pk_add_f32 v[38:39], v[38:39], v[46:47]')
    red8(32, 24)
    a('v_add_f32_dpp v24, v24, v24 row_ror:8 row_mask:0xf bank_mask:0xf')
    a('s_waitcnt lgkmcnt(0)\nv_fma_f32 v24, v24, v20, v23\nv_cvt_pk_bf16_f32 v24, v24, v24')
    a('s_mov_b32 exec_lo, 0x00ff00ff\ns_mov_b32 exec_hi, 0x00ff00ff')
    a(f'buffer_store_short v24, v21, {sr(rA,4)}, s{sB2} offen')
    a(f's_cmp_eq_u32 s2, 128\ns_cbranch_scc0 L_fin')
    a(f's_mov_b64 exec, 1\nv_mov_b32 v24, s{sE}\nbuffer_store_dword v24, v6, {sr(rWS,4)}, 0 offen')
    a.lab('L_fin')
    stamp(11)
    if leak:
        W, w, ka, kb = leak
        a(f's_cmp_eq_u32 s2, {W}\ns_cbranch_scc0 L_end\ns_cmp_eq_u32 s3, {w}\ns_cbranch_scc0 L_end')
        a(f's_waitcnt lgkmcnt(0)\ns_sub_u32 s{sT0}, s{TS0+2*ka}, s{TS0+2*kb}\ns_min_u32 s{sT0}, s{sT0}, 5000\ns_mul_i32 s{sT0}, s{sT0}, 40')
        a.lab('L_leak')
        a(f's_memrealtime s[56:57]\ns_waitcnt lgkmcnt(0)\ns_sub_u32 s{sT1}, s56, s{TS0+22}\ns_cmp_lt_u32 s{sT1}, s{sT0}\ns_cbranch_scc1 L_leak')
    elif ts: dump_ts(16)
    a.lab('L_end')
    a('s_endpgm')
    a.lab('L_codeend')

    k = a.L.index('L_T_qk:'); k2 = a.L.index('L_T23_job:'); k1_ = a.L.index('L_TF_job:')
    for ch, lo, hi in (('s', 0, k), ('m', 0, k1_), ('q', k1_, k2), ('p', k2, k)):
        if ch in abl: a.L = [('s_nop 0' if (lo <= n < hi and l.startswith('buffer_store')) else l) for n, l in enumerate(a.L)]
    body, added = hazard_pass(a.L)
    out = [HEADER + f'; @launch grid=(256,1,1) block=(512,1,1) lds={L_END}',
           '.amdgcn_target "amdgcn-amd-amdhsa--gfx950"', '.text', f'.globl {NAME}_kernel', '.p2align 8', f'.type {NAME}_kernel,@function']
    out += [l if l.endswith(':') else '    ' + l for l in body]
    out += ['.section .rodata,"a"', '.p2align 6', f'.amdhsa_kernel {NAME}_kernel',
            '  .amdhsa_next_free_vgpr 256', '  .amdhsa_next_free_sgpr 102', '  .amdhsa_accum_offset 256',
            '  .amdhsa_group_segment_fixed_size 0', '  .amdhsa_kernarg_size 112', '  .amdhsa_user_sgpr_count 2',
            '  .amdhsa_user_sgpr_kernarg_segment_ptr 1', '  .amdhsa_system_sgpr_workgroup_id_x 1',
            '  .amdhsa_float_denorm_mode_32 3', '.end_amdhsa_kernel']
    return '\n'.join(out) + '\n'

if __name__ == '__main__':
    kw = {}
    for arg in sys.argv[2:]:
        k, v = arg.split('=')
        try: v = eval(v)
        except Exception: pass
        kw[k] = v
    open(sys.argv[1], 'w').write(gen(**kw))
```

```python
import sys, struct, math
from asmlib import Asm, hazard_pass, vr, sr
from gen_v1 import HEADER
NAME = 'adaLN_cond__sliding_block_cached__glu_gated_glu__decode'
def f32(x): return '0x%08x' % struct.unpack('<I', struct.pack('<f', x))[0]

WS_MOD = 0x10000
WS_RD  = 0x70000
WS_QP  = 0x80000
WS_OP  = 0x100000
OPS    = 2176
WS_YP  = 0x200000
WS_FP  = 0x220000
WS_B   = 0x400000
WS_TS  = 0x8000000
SIG = 288; PASS = 8 * SIG; IMG = 2 * PASS
L_IMG = 65536
L_Q   = L_IMG + 4 * IMG
L_P   = L_Q + 1536
L_Z   = L_P + 2048
L_ORED = L_Z + 512
L_LS  = L_ORED + 8192
L_WT  = L_LS + 64
L_RED = L_WT + 1024
L_ST  = L_RED + 2048
L_X1  = L_ST + 64
L_RS  = L_X1 + 2048
L_FL  = L_RS + 8192
F_Q, F_S, F_P, F_M = 0, 4, 8, 12
F_MX = 16
F_H, F_E, F_K, F_PR, F_G, F_GI, F_G2, F_I = 32, 36, 40, 44, 48, 52, 56, 60
F_L, F_VI, F_RS, F_YI, F_CS, F_ST = 64, 68, 72, 76, 80, 84
L_SCR = L_FL + 128
L_END = L_SCR + 256
TAGMASK = 0xFFF
SPIN_LIM = 1 << 20
POLL_LIM = 1 << 18

sG, sR, sB, sS = 4, 5, 6, 7
pX, pK, pV, pWQ, pWO, pWG, pWU, pWD, pC, pWM, pOUT, pWS = 8, 10, 12, 14, 16, 20, 22, 24, 26, 28, 30, 32
rWS, rA, rB, rC = 32, 36, 40, 44
sE, sMASK, sOFF, sB1, sB2, sCNT, sW, sSLOW, sX, sLO, sHI, sT0, sT1, sT2, sT3 = 48, 49, 50, 51, 52, 53, 54, 55, 56, 58, 59, 60, 61, 62, 63
sXC = 18
sB3 = 19
sB4, sMK = 56, 57
sMR, sKP = 96, 97
TS0 = 64
VT, VTA = 1, 15
SC = math.log2(math.e) / math.sqrt(128.0)

def gen(NM=8, NM2=None, nswm=28, NQ=8, n1=4, n1w=0, n2=2, n2o=16, NR=24, k1=8, gr=16, g2m=30, g2q=27, npw=8, dw=0, wpos=0, wopos=16, NTT=8,
        kvfl='nt', wfl='', hfl='nt', ofl='', ts=False, fb=64, fsleep=14, fst=3, NP=1, leak=None, forceslow=0, abl='', kfirst=False, prog=False,
        xmap=False, ysleep=0, psleep=0, dbgF=False, dn0=True, fdelay=0, dnstep=True, ofirst=True, o3fl='sc1', ptfl='', npre=0, vgate=True, outfl='', wb=0):
    assert npre == 0
    if leak: ts = True
    a = Asm()
    uid = [0]
    def U(p): uid[0] += 1; return f'{p}_{uid[0]}'
    def stamp(k):
        if ts: a(f's_memrealtime {sr(TS0 + 2*k, 2)}')
    def srd(r, p, size):
        a(f's_mov_b32 s{r}, s{p}\ns_mov_b32 s{r+1}, s{p+1}\ns_mov_b32 s{r+2}, {size}\ns_mov_b32 s{r+3}, 0x20000')
    def sig(off, n=1): a(f's_mov_b64 exec, {(1<<n)-1}\nds_add_u32 v13, v14 offset:{off}\ns_mov_b64 exec, -1')
    def spin(vt, off, n, sleep=0, extra=None):
        l, d = U('L_spin'), U('L_spun')
        a(f's_mov_b32 s{sCNT}, 0')
        a.lab(l)
        a(f'ds_read_b32 v{vt}, v13 offset:{off}')
        if extra: a(extra)
        a('s_waitcnt lgkmcnt(0)')
        a(f'v_readfirstlane_b32 s{sT0}, v{vt}')
        a(f's_cmp_ge_u32 s{sT0}, {n}\ns_cbranch_scc1 {d}')
        if sleep: a(f's_sleep {sleep}')
        a(f's_add_u32 s{sCNT}, s{sCNT}, 1\ns_cmp_lt_u32 s{sCNT}, {SPIN_LIM}\ns_cbranch_scc1 {l}\ns_endpgm')
        a.lab(d)
    def poll(loads, firsts, vacc, local=None, pre_check=None, cnt=None, setslow=False, after_issue=None, marker=None, first=None, sleep=0, noload=False):
        l, d = U('L_poll'), U('L_got')
        vt = VT
        if local:
            sb, vt, vd = local
            a(f'v_mov_b32 v{vt}, v{VTA}\nv_xor_b32 v{vd}, v{VT}, v{VTA}')
            if setslow: a(f's_mov_b32 s{sCNT}, 0')
            else: a(f's_cmp_eq_u32 s{sSLOW}, 0\ns_cselect_b32 s{sCNT}, 0, {fb}')
        else: a(f's_mov_b32 s{sCNT}, 0')
        if first:
            c = U('L_chk')
            if not noload: loads()
            first[0]()
            a(f's_waitcnt vmcnt({first[1]})\ns_branch {c}')
        a.lab(l)
        loads()
        if after_issue: after_issue()
        a('s_waitcnt vmcnt(0)')
        if first: a.lab(c)
        if pre_check: pre_check()
        else:
            for f in firsts: a(f'v_xor_b32 v{f}, v{f}, v{vt}')
        if marker is not None: a(f'v_and_b32 v{marker}, s{sMK}, v{marker}')
        fs = list(firsts)
        if len(fs) == 1: a(f'v_and_b32 v{vacc}, s{sMASK}, v{fs[0]}')
        else:
            if len(fs) % 2: a(f'v_or3_b32 v{vacc}, v{fs[0]}, v{fs[1]}, v{fs[2]}'); fs = fs[3:]
            else: a(f'v_or_b32 v{vacc}, v{fs[0]}, v{fs[1]}'); fs = fs[2:]
            while fs: a(f'v_or3_b32 v{vacc}, v{vacc}, v{fs[0]}, v{fs[1]}'); fs = fs[2:]
            a(f'v_and_b32 v{vacc}, s{sMASK}, v{vacc}')
        a(f'v_cmp_ne_u32 vcc, 0, v{vacc}\ns_cbranch_vccz {d}')
        if sleep: a(f's_sleep {sleep}')
        a(f's_add_u32 s{sCNT}, s{sCNT}, 1')
        if local:
            a(f's_cmp_lt_u32 s{sCNT}, {fb}\ns_cbranch_scc1 {l}')
            if setslow: sig(F_S)
            a(f's_xor_b32 s{sb}, s{sb}, {WS_B}\nv_xor_b32 v{vt}, v{vt}, v{vd}')
            if marker is not None: a(f's_xor_b32 s{sMK}, s{sMK}, s{sMASK}')
        a(f's_cmp_lt_u32 s{sCNT}, {POLL_LIM}\ns_cbranch_scc1 {l}\ns_endpgm')
        a.lab(d)
        if ts and cnt is not None: a(f's_add_u32 s{TS0+2*cnt}, s{sCNT}, 1')
    def tagit(v, vt=VT): a(f'v_bfi_b32 v{v}, s{sMASK}, v{vt}, v{v}')
    def mktag():
        a(f'v_and_b32 v{VT}, 3, v0\nv_mul_u32_u24 v{VT}, 0x2d5, v{VT}\ns_add_u32 s{sE}, s{sE}, 1\nv_add_u32 v{VT}, s{sE}, v{VT}')
        a(f'v_add_u32 v{VTA}, s{sXC}, v{VT}\nv_and_b32 v{VT}, s{sMASK}, v{VT}\nv_and_b32 v{VTA}, s{sMASK}, v{VTA}')
    def red8(R, dst):
        a(f'v_pk_add_f32 {vr(R,2)}, {vr(R,2)}, {vr(R+4,2)}\nv_pk_add_f32 {vr(R+2,2)}, {vr(R+2,2)}, {vr(R+6,2)}')
        red4(R, dst)
    def red4(R, dst):
        a(f'v_permlane32_swap_b32 v{R}, v{R+2}\nv_permlane32_swap_b32 v{R+1}, v{R+3}')
        a(f'v_pk_add_f32 {vr(R,2)}, {vr(R,2)}, {vr(R+2,2)}')
        a(f'v_permlane16_swap_b32 v{R}, v{R+1}\nv_add_f32 v{dst}, v{R}, v{R+1}')
    def tree(R, n):
        st = 4
        while n > 1:
            for k in range(0, n, 2):
                for h in (0, 2): a(f'v_pk_add_f32 {vr(R + st*k + h, 2)}, {vr(R + st*k + h, 2)}, {vr(R + st*(k+1) + h, 2)}')
            st *= 2; n //= 2
    def sum4(R, vaddr, stride):
        for w in range(4): a(f'ds_read_b128 {vr(R + 4*w, 4)}, v{vaddr} offset:{stride*w}')
        a(f's_waitcnt lgkmcnt(2)\nv_pk_add_f32 {vr(R,2)}, {vr(R,2)}, {vr(R+4,2)}\nv_pk_add_f32 {vr(R+2,2)}, {vr(R+2,2)}, {vr(R+6,2)}')
        a(f's_waitcnt lgkmcnt(1)\nv_pk_add_f32 {vr(R,2)}, {vr(R,2)}, {vr(R+8,2)}\nv_pk_add_f32 {vr(R+2,2)}, {vr(R+2,2)}, {vr(R+10,2)}')
        a(f's_waitcnt lgkmcnt(0)\nv_pk_add_f32 {vr(R,2)}, {vr(R,2)}, {vr(R+12,2)}\nv_pk_add_f32 {vr(R+2,2)}, {vr(R+2,2)}, {vr(R+14,2)}')
    def imgw4(vaddr, V):
        a(f'ds_write2_b32 v{vaddr}, v{V}, v{V+1} offset0:0 offset1:2\nds_write2_b32 v{vaddr}, v{V+2}, v{V+3} offset0:8 offset1:10')
        a(f'ds_write2_b32 v{vaddr}, v{V}, v{V+1} offset0:33 offset1:35\nds_write2_b32 v{vaddr}, v{V+2}, v{V+3} offset0:41 offset1:43')
    AC = 24
    def two_pass(vrd, vidx, A2, W, waitw=None, AC=24):
        for p in range(2):
            for s in range(8): a(f'ds_read_b128 {vr(A2 + 32*p + 4*s, 4)}, v{vrd} offset:{p*PASS + s*SIG}')
        if waitw: a(waitw)
        for p in range(2):
            for s in range(8):
                a(f's_waitcnt lgkmcnt({15 - (8*p + s)})')
                a(f'v_smfmac_f32_16x16x64_bf16 {vr(AC+4*p,4)}, {vr(A2 + 32*p + 4*s, 4)}, {vr(W + 8*s, 8)}, v{vidx}')
    def hilo(dsts, srcs, tmps):
        for t, x in zip(tmps, srcs): a(f'v_and_b32 v{t}, 0xffff0000, v{x}')
        for t, x in zip(tmps, srcs): a(f'v_sub_f32 v{t}, v{x}, v{t}')
        for d_, t, x in zip(dsts, tmps, srcs): a(f'v_perm_b32 v{d_}, v{x}, v{t}, s{sHI}')
    def parity(dst, D):
        a(f'v_add_f32_dpp v{dst}, v{D+1}, v{D} row_ror:8 row_mask:0xf bank_mask:0x3')
        a(f'v_add_f32_dpp v{dst}, v{D+2}, v{D+3} row_ror:8 row_mask:0xf bank_mask:0xc')
    def oprec(dst):
        a(f's_lshl_b32 s{sT0}, s{sG}, 2\ns_add_u32 s{sT0}, s{sT0}, s{sB}\ns_lshl_b32 s{sT0}, s{sT0}, 3\ns_add_u32 s{sT0}, s{sT0}, s{sS}')
        a(f's_mul_i32 s{dst}, s{sT0}, {OPS}\ns_add_u32 s{dst}, s{dst}, {WS_OP}')
    def qprec(dst):
        a(f's_lshl_b32 s{dst}, s{sG}, 15\ns_and_b32 s{sT0}, s{sR}, 15\ns_lshl_b32 s{sT0}, s{sT0}, 9\ns_add_u32 s{dst}, s{dst}, s{sT0}\ns_add_u32 s{dst}, s{dst}, {WS_QP}')
    def qpaddr(v):
        a(f'v_lshrrev_b32 v16, 1, v7\nv_lshlrev_b32 v16, 13, v16\nv_lshl_add_u32 v16, v10, 8, v16\nv_and_b32 v17, 1, v7\nv_lshl_add_u32 v16, v17, 7, v16\nv_lshl_add_u32 v{v}, v9, 4, v16')
    def par_addr(vrd, vidx):
        a(f'v_and_b32 v{vrd}, 1, v0\nv_lshlrev_b32 v{vrd}, 4, v{vrd}\nv_lshl_add_u32 v{vrd}, v7, 5, v{vrd}\nv_lshl_add_u32 v{vrd}, v10, 7, v{vrd}\nv_add_u32 v{vrd}, s{sT3}, v{vrd}')
        a(f'v_bfe_u32 v{vidx}, v0, 1, 2\nv_mul_u32_u24 v{vidx}, 0x5555, v{vidx}')
    def imgbase(): a(f's_mul_i32 s{sT3}, s{sW}, {IMG}\ns_add_u32 s{sT3}, s{sT3}, {L_IMG}')
    def rdslow(vt):
        a(f'ds_read_b32 v{vt}, v13 offset:{F_S}\ns_waitcnt lgkmcnt(0)\nv_readfirstlane_b32 s{sSLOW}, v{vt}')
    def pubdup(V, vaddr, sbase):
        l = U('L_nodup')
        a(f's_cmp_eq_u32 s{sSLOW}, 0\ns_cbranch_scc1 {l}')
        a(f's_add_u32 s{sOFF}, s{sbase}, {WS_B}\ns_nop 1')
        tagit(V)
        a(f'buffer_store_dwordx4 {vr(V,4)}, v{vaddr}, {sr(rWS,4)}, s{sOFF} offen sc1')
        a.lab(l)
    def dump_ts(nstamps):
        a('s_waitcnt lgkmcnt(0)')
        a(f's_lshl_b32 s{sOFF}, s2, 3\ns_add_u32 s{sOFF}, s{sOFF}, s3\ns_lshl_b32 s{sOFF}, s{sOFF}, 6\ns_add_u32 s{sOFF}, s{sOFF}, {WS_TS}')
        a('s_mov_b64 exec, 1\nv_mov_b32 v2, 0')
        for k in range(nstamps):
            a(f'v_mov_b32 v3, s{TS0+2*k}\nbuffer_store_dword v3, v2, {sr(rWS,4)}, s{sOFF} offen offset:{4*k}')
    def zero_ts():
        if ts:
            for k in range(2, 16): a(f's_mov_b32 s{TS0+2*k}, 0')

    a.lab(f'{NAME}_kernel')
    stamp(0)
    a('s_cmp_ge_u32 s2, 256\ns_cbranch_scc1 L_end')
    a('s_load_dwordx16 s[8:23], s[0:1], 0\ns_load_dwordx8 s[24:31], s[0:1], 64\ns_load_dwordx2 s[32:33], s[0:1], 104')
    a(f's_cmp_lt_u32 s2, 8\ns_cbranch_scc0 L_nopf\ns_getpc_b64 {sr(sX,2)}')
    a.lab('L_pc')
    a(f'v_lshlrev_b32 v2, 7, v0\nv_cmp_gt_u32 vcc, L_codeend-L_pc, v2\ns_and_saveexec_b64 {sr(sT0,2)}, vcc\ns_cbranch_execz L_pfx')
    a(f'global_load_dword v63, v2, {sr(sX,2)}')
    a.lab('L_pfx')
    a('s_mov_b64 exec, -1')
    a.lab('L_nopf')
    a(f'v_lshrrev_b32 v1, 6, v0\nv_and_b32 v0, 63, v0\nv_readfirstlane_b32 s3, v1\nv_mov_b32 v13, {L_FL}\nv_and_b32 v8, 15, v0')
    a(f's_and_b32 s{sG}, s2, 7\ns_lshr_b32 s{sR}, s2, 3\ns_and_b32 s{sB}, s{sR}, 3')
    a(f's_lshr_b32 s{sS}, s{sR}, 2\ns_mov_b32 s34, 0x10000000\ns_mov_b32 s35, 0x20000\ns_movk_i32 s{sMASK}, {TAGMASK}\ns_and_b32 s{sW}, s3, 3')
    a('v_lshlrev_b32 v6, 4, v0\nv_lshrrev_b32 v7, 4, v0\nv_and_b32 v9, 7, v0\nv_bfe_u32 v10, v0, 3, 1\nv_mov_b32 v14, 1')
    if xmap:
        a(f's_and_b32 s{sMR}, s{sG}, 4\ns_lshl_b32 s{sMR}, s{sMR}, 1\ns_and_b32 s{sT0}, s{sR}, 0x17\ns_or_b32 s{sMR}, s{sMR}, s{sT0}')
        a(f's_and_b32 s{sKP}, s{sG}, 3\ns_lshl_b32 s{sKP}, s{sKP}, 1\ns_bfe_u32 s{sT0}, s{sR}, 0x10003\ns_or_b32 s{sKP}, s{sKP}, s{sT0}')
    else: a(f's_mov_b32 s{sMR}, s{sR}\ns_mov_b32 s{sKP}, s{sG}')
    a('s_cmp_lt_u32 s3, 4\ns_cbranch_scc1 L_A')

    W0, AR = 64, 32
    VI = 63
    a(f's_cmp_gt_u32 s{sW}, 1\ns_cbranch_scc1 L_T23_issue')
    sSTEP, sSEG = sLO, sHI
    a(f's_and_b32 s{sT1}, s{sR}, 7')
    a(f'v_lshlrev_b32 v3, 10, v7\nv_lshl_add_u32 v11, v8, 4, v3\nv_lshl_add_u32 v3, v9, 4, v3\nv_lshl_add_u32 v3, v10, 3, v3')
    a(f's_mov_b32 s{rA+3}, 0x20000\ns_movk_i32 s{rB+2}, 4096\ns_mov_b32 s{rB+3}, 0x20000')
    a(f's_cmp_ge_u32 s{sR}, 16\ns_cbranch_scc1 L_TF_par')
    a(f's_movk_i32 s{sSTEP}, 6144')
    a(f's_lshl_b32 s{sB1}, s{sT1}, 8\ns_mul_i32 s{sT1}, s{sKP}, {64*6144}\ns_add_u32 s{sB1}, s{sB1}, s{sT1}\ns_lshl_b32 s{sB2}, s{sKP}, 7')
    a('s_waitcnt lgkmcnt(0)')
    a(f's_mov_b32 s{rA}, s{pWM}\ns_mov_b32 s{rA+1}, s{pWM+1}\ns_mov_b32 s{rA+2}, {512*6144}\ns_mov_b32 s{rB}, s{pC}\ns_mov_b32 s{rB+1}, s{pC+1}')
    a(f's_load_dword s{sE}, s[32:33], 0')
    a(f's_cmp_eq_u32 s{sW}, 1\ns_cbranch_scc1 L_T_setup')
    a(f'buffer_load_dwordx2 v[4:5], v3, {sr(rB,4)}, s{sB2} offen')
    a(f's_cmp_ge_u32 s{sMR}, 8\ns_cbranch_scc0 L_T01_go\ns_branch L_T0_rest')
    a.lab('L_TF_par')
    a(f's_movk_i32 s{sSTEP}, 8192\ns_lshl_b32 s{sT1}, s{sB}, 1\ns_add_u32 s{sT1}, s{sT1}, s{sW}\ns_and_b32 s{sT0}, s{sS}, 3\ns_lshl_b32 s{sT0}, s{sT0}, 8')
    a(f's_lshl_b32 s{sB1}, s{sT1}, 19\ns_lshl_b32 s{sT2}, s{sG}, 10\ns_add_u32 s{sB1}, s{sB1}, s{sT2}\ns_add_u32 s{sB1}, s{sB1}, s{sT0}\ns_lshl_b32 s{sB2}, s{sT1}, 7')
    a('s_waitcnt lgkmcnt(0)')
    a(f's_mov_b32 s{rA}, s{pWQ}\ns_mov_b32 s{rA+1}, s{pWQ+1}\ns_mov_b32 s{rA+2}, {512*8192}\ns_mov_b32 s{rB}, s{pX}\ns_mov_b32 s{rB+1}, s{pX+1}')
    a(f's_load_dword s{sE}, s[32:33], 0')
    a.lab('L_T01_go')
    stamp(1)
    a(f'v_mul_u32_u24 v2, s{sSTEP}, v7\nv_lshl_add_u32 v2, v8, 4, v2\ns_lshl_b32 s{sSTEP}, s{sSTEP}, 2')
    for i in range(16):
        a(f'buffer_load_dwordx4 {vr(W0+4*i,4)}, v2, {sr(rA,4)}, s{sB1} offen {hfl}')
        if i < 15: a(f's_add_u32 s{sB1}, s{sB1}, s{sSTEP}')
    a(f's_cmp_lt_u32 s{sR}, 16\ns_cbranch_scc1 L_T_setup')
    a(f'buffer_load_dwordx2 v[4:5], v3, {sr(rB,4)}, s{sB2} offen')
    for j in range(4): a(f'buffer_load_dwordx4 {vr(AR+4*j,4)}, v11, {sr(rB,4)}, 0 offen offset:{256*j}')
    a('s_branch L_T_setup')
    a.lab('L_T0_rest')
    stamp(1)
    a(f'v_mul_u32_u24 v21, 6144, v7\nv_lshl_add_u32 v21, v8, 4, v21\ns_and_b32 s{sT1}, s{sR}, 7\ns_lshl_b32 s{sT1}, s{sT1}, 8\ns_add_u32 s{sB1}, s{sB1}, s{sT1}')
    def restld(i):
        a(f'buffer_load_dwordx4 {vr(W0 + 64*(i&1) + 4*(i>>1), 4)}, v21, {sr(rA,4)}, s{sB1} offen offset:{2304 if i&1 else 2048} {hfl}')
        if i & 1 and i < 31: a(f's_add_u32 s{sB1}, s{sB1}, {4*6144}')
    for i in range(32): restld(i)
    a('s_branch L_T_setup')
    a.lab('L_T23_issue')
    a(f'v_and_b32 v4, 31, v0\nv_lshrrev_b32 v2, 2, v4\nv_cmp_eq_u32 vcc, 1, v2\nv_mov_b32 v3, 0xff800000\nv_lshl_add_u32 v4, v4, 2, v13\nv_cndmask_b32 v3, 0, v3, vcc\nds_write_b32 v4, v3')
    a('s_waitcnt lgkmcnt(0)')
    stamp(1)
    a(f's_load_dword s{sE}, s[32:33], 0')
    a.lab('L_T_setup')
    zero_ts()
    imgbase()
    a(f's_getreg_b32 s{sXC}, hwreg(HW_REG_XCC_ID, 0, 3)')
    if forceslow: a(f's_cmp_eq_u32 s{sR}, {forceslow}\ns_cselect_b32 s{sXC}, 1, 0')
    a(f's_lshl_b32 s{sXC}, s{sXC}, 9')
    a(f'v_mov_b32 v16, 0\nv_mov_b32 v17, 0\nv_mov_b32 v18, 0\nv_mov_b32 v19, 0\nv_add_u32 v20, s{sT3}, v6')
    for k in range(4): a(f'ds_write_b128 v20, v[16:19] offset:{1024*k}')
    a(f's_mov_b32 exec_hi, 0\nds_write_b128 v20, v[16:19] offset:4096\nv_add_u32 v20, {L_Z}, v6\nds_write_b128 v20, v[16:19]\ns_mov_b32 exec_hi, -1')
    a(f'v_bfe_u32 v16, v0, 2, 1\nv_lshlrev_b32 v16, 7, v16\nv_lshl_add_u32 v16, v7, 5, v16\nv_lshl_add_u32 v16, v10, 4, v16\nv_add_u32 v12, s{sT3}, v16')
    a(f'v_and_b32 v{VI}, 3, v0\nv_mul_u32_u24 v{VI}, 0x5555, v{VI}')
    a(f's_cmp_eq_u32 s{sW}, 0\ns_cbranch_scc0 L_T_gate\ns_cmp_lt_u32 s{sMR}, 8\ns_cbranch_scc1 L_T_gate\ns_waitcnt vmcnt({NR})')
    a(f's_cmp_lt_u32 s{sR}, 16\ns_cbranch_scc1 L_T_gate\ns_waitcnt vmcnt({k1+5})')
    a.lab('L_T_gate')
    a('s_barrier\ns_waitcnt lgkmcnt(0)')
    mktag()
    def qk_setup():
        a(f's_lshl_b32 s{sT1}, s{sW}, 14\nv_and_b32 v17, 3, v0\nv_lshrrev_b32 v18, 2, v8\nv_lshl_add_u32 v19, v17, 2, v18')
        a(f'v_xor_b32 v16, v7, v8\nv_lshlrev_b32 v16, 4, v16\nv_lshl_add_u32 v16, v19, 8, v16\nv_add_u32 v48, s{sT1}, v16')
        a('v_xor_b32 v49, 64, v48\nv_xor_b32 v50, 0x80, v48\nv_xor_b32 v51, 0xc0, v48')
        a(f'v_mul_u32_u24 v52, 320, v17\nv_lshl_add_u32 v52, v7, 4, v52\nv_add_u32 v52, {L_Q}, v52\nv_lshl_add_u32 v53, v17, 2, v13')
        a(f's_lshl_b32 s{sT1}, s{sW}, 9\ns_add_u32 s{sT2}, s{sT1}, {L_P}\nv_and_b32 v18, 1, v18\nv_lshlrev_b32 v54, 3, v18\nv_lshl_add_u32 v54, v17, 4, v54\nv_lshl_add_u32 v54, v7, 6, v54\nv_lshl_add_u32 v54, v10, 8, v54\nv_add_u32 v54, s{sT2}, v54')
        a(f's_add_u32 s{sT2}, s{sT1}, {L_ORED}\nv_add_u32 v55, s{sT2}, v6')
        oprec(sB3)
    a(f's_mov_b32 s{sHI}, 0x07060302')
    KF, QF, DD = 128, 192, 208
    sFB = 98
    def WG_(sg): return 64 + 16*sg
    def WU_(sg): return 72 + 16*sg
    def f_setup():
        srd(rA, pWG, 512*3584); srd(rB, pWU, 512*3584)
        a(f's_lshl_b32 s{sT0}, s{sG}, 2\ns_add_u32 s{sT0}, s{sT0}, s{sS}\ns_lshl_b32 s{sT0}, s{sT0}, 7')
        a(f's_mul_i32 s{sFB}, s{sW}, {128*3584}\ns_add_u32 s{sFB}, s{sFB}, s{sT0}')
        a('v_lshrrev_b32 v12, 3, v0\nv_mul_u32_u24 v12, 3584, v12\nv_lshl_add_u32 v12, v9, 4, v12')
    def fslot(i):
        a(f's_xor_b32 s{sT0}, s{sB}, {i}\ns_mul_i32 s{sT0}, s{sT0}, {8*3584}\ns_add_u32 s{sOFF}, s{sFB}, s{sT0}')
        a(f'buffer_load_dwordx4 {vr(WG_(i >> 1) + 4*(i & 1), 4)}, v12, {sr(rA,4)}, s{sOFF} offen {wfl}')
        a(f'buffer_load_dwordx4 {vr(WU_(i >> 1) + 4*(i & 1), 4)}, v12, {sr(rB,4)}, s{sOFF} offen {wfl}')
    def f_early(wait):
        if not npre: return
        l = U('L_fe')
        a(f's_cmp_lt_u32 s{sR}, 16\ns_cbranch_scc1 {l}\ns_cmp_eq_u32 s{sG}, 7\ns_cbranch_scc1 {l}')
        f_setup()
        if wait: spin(16, F_P, 2, sleep=1)
        for k in range(npre): fslot(4*k)
        a.lab(l)
    def kread():
        spin(16, F_K, 4, sleep=1)
        for t in range(4):
            for j in range(4):
                a(f'ds_read_b128 {vr(KF + 16*t + 4*j, 4)}, v{48+j} offset:{4096*t}')
    a(f's_cmp_gt_u32 s{sW}, 1\ns_cbranch_scc1 L_T23_job')
    sig(F_E)
    a(f'v_lshrrev_b32 v16, 5, v0\nv_mul_u32_u24 v16, {PASS}, v16\nv_mul_u32_u24 v17, {SIG}, v9\nv_add3_u32 v16, v16, v17, s{sT3}')
    a('v_and_b32 v17, 1, v7\nv_lshlrev_b32 v17, 4, v17\nv_lshl_add_u32 v17, v10, 6, v17\nv_add_u32 v11, v16, v17')
    for i in range(8): a(f'v_mov_b32 v{AC+i}, 0')
    a(f's_cmp_ge_u32 s{sR}, 16\ns_cbranch_scc1 L_TF_job')
    a(f's_cmp_eq_u32 s{sW}, 1\ns_cbranch_scc1 L_T1_red')
    a('v_lshrrev_b32 v16, 1, v7\nv_lshlrev_b32 v16, 11, v16\nv_lshl_add_u32 v16, v10, 13, v16\nv_and_b32 v17, 1, v7\nv_lshl_add_u32 v16, v17, 7, v16\nv_lshl_add_u32 v2, v9, 4, v16')
    a(f's_lshl_b32 s{sT0}, s{sMR}, 1\ns_sub_u32 s{sT0}, s{sT0}, 8\ns_cmp_lt_u32 s{sMR}, 8\ns_cselect_b32 s{sB1}, s{sMR}, s{sT0}')
    a(f's_lshl_b32 s{sB1}, s{sB1}, 14\ns_lshl_b32 s{sT0}, s{sKP}, 8\ns_add_u32 s{sB1}, s{sB1}, s{sT0}\ns_add_u32 s{sB1}, s{sB1}, {WS_MOD}\ns_add_u32 s{sB2}, s{sB1}, 4096')
    a(f's_mov_b32 s{sT0}, {f32(-math.log2(math.e))}')
    a('s_waitcnt vmcnt(16)')
    a('v_lshlrev_b32 v16, 16, v4\nv_and_b32 v17, 0xffff0000, v4\nv_lshlrev_b32 v18, 16, v5\nv_and_b32 v19, 0xffff0000, v5')
    for r in range(4): a(f'v_mul_f32 v{20+r}, s{sT0}, v{16+r}')
    for r in range(4): a(f'v_exp_f32 v{20+r}, v{20+r}')
    for r in range(4): a(f'v_add_f32 v{20+r}, 1.0, v{20+r}')
    for r in range(4): a(f'v_rcp_f32 v{20+r}, v{20+r}')
    for r in range(4): a(f'v_mul_f32 v{16+r}, v{16+r}, v{20+r}')
    hilo(range(16, 20), range(16, 20), range(20, 24))
    imgw4(11, 16)
    for sg in range(8):
        for p in range(2): a(f'ds_read_b128 {vr(192 + 32*p + 4*sg, 4)}, v12 offset:{p*PASS + sg*SIG}')
    a(f's_cmp_lt_u32 s{sMR}, 8\ns_cbranch_scc1 L_T0_mm\ns_waitcnt vmcnt(0)')
    a.lab('L_T0_mm')
    for sg in range(8):
        a(f's_waitcnt vmcnt({14 - 2*sg}) lgkmcnt({14 - 2*sg})')
        for p in range(2): a(f'v_smfmac_f32_16x16x64_bf16 {vr(AC+4*p,4)}, {vr(192 + 32*p + 4*sg, 4)}, {vr(W0 + 8*sg, 8)}, v{VI}')
    tagit(AC); tagit(AC+4)
    a(f'buffer_store_dwordx4 {vr(AC,4)}, v2, {sr(rWS,4)}, s{sB1} offen sc1\nbuffer_store_dwordx4 {vr(AC+4,4)}, v2, {sr(rWS,4)}, s{sB2} offen sc1')
    sig(F_H)
    stamp(2)
    a(f's_cmp_lt_u32 s{sMR}, 8\ns_cbranch_scc1 L_T_k')
    for i in range(8): a(f'v_mov_b32 v{32+i}, 0')
    a(f's_add_u32 s{sB1}, s{sB1}, 16384\ns_add_u32 s{sB2}, s{sB2}, 16384')
    for p in range(2):
        for sg in range(8): a(f'v_smfmac_f32_16x16x64_bf16 {vr(32+4*p,4)}, {vr(192 + 32*p + 4*sg, 4)}, {vr(128 + 8*sg, 8)}, v{VI}')
    tagit(32); tagit(36)
    a(f'buffer_store_dwordx4 v[32:35], v2, {sr(rWS,4)}, s{sB1} offen sc1\nbuffer_store_dwordx4 v[36:39], v2, {sr(rWS,4)}, s{sB2} offen sc1')
    a('s_branch L_T_k')
    a.lab('L_T1_red')
    a(f's_cmp_ge_u32 s{sMR}, 8\ns_cbranch_scc1 L_T_k')
    a(f's_and_b32 s{sT1}, s{sS}, 1\ns_lshl_b32 s{sT1}, s{sT1}, 3\ns_add_u32 s{sT1}, s{sT1}, s{sKP}\ns_lshl_b32 s{sB1}, s{sT1}, 14\ns_lshl_b32 s{sT0}, s{sB}, 11\ns_add_u32 s{sB1}, s{sB1}, s{sT0}')
    a(f's_add_u32 s{sB1}, s{sB1}, {WS_MOD + 8*16384}\ns_add_u32 s{sB2}, s{sB1}, 8192')
    a(f's_lshl_b32 s{sB4}, s{sB}, 13\ns_lshl_b32 s{sT0}, s{sT1}, 9\ns_add_u32 s{sB4}, s{sB4}, s{sT0}\ns_add_u32 s{sB4}, s{sB4}, {WS_RD}')
    a(f'v_lshlrev_b32 v2, 4, v8\nv_lshl_add_u32 v3, v7, 2, v2\nv_add_u32 v3, {L_RED}, v3\nv_mov_b32 v2, v6\nv_add_u32 v4, {L_RED}, v6')
    spin(16, F_G, 2, sleep=1)
    def lr():
        for sg in range(2):
            for j in range(2): a(f'buffer_load_dwordx4 {vr(W0 + 8*sg + 4*j, 4)}, v6, {sr(rWS,4)}, s{sB2 if sg else sB1} offen offset:{1024*j} sc1')
    if 'r' not in abl: poll(lr, [W0 + 4*k for k in range(4)], 16, cnt=13)
    red8(W0, 16); red8(W0 + 8, 17)
    a('ds_write2_b32 v3, v16, v17 offset0:0 offset1:64\ns_mov_b32 exec_hi, 0\nds_read_b128 v[16:19], v4\ns_waitcnt lgkmcnt(0)')
    tagit(16)
    a(f'buffer_store_dwordx4 v[16:19], v2, {sr(rWS,4)}, s{sB4} offen sc1\ns_mov_b32 exec_hi, -1\ns_nop 0')
    stamp(2)
    a.lab('L_T_k')
    qk_setup()
    a.lab('L_T_k2')
    kread()
    a('s_branch L_T_qk')
    a.lab('L_TF_job')
    qk_setup()
    qpaddr(2)
    qprec(sB1)
    a(f's_lshl_b32 s{sT0}, s{sW}, 14\ns_add_u32 s{sB1}, s{sB1}, s{sT0}')
    a(f's_lshl_b32 s{sT0}, s{sW}, 10\ns_add_u32 s{sT1}, s{sT0}, {L_RED}\nv_add_u32 v56, s{sT1}, v6\ns_sub_u32 s{sT1}, {L_RED + 1024}, s{sT0}\nv_add_u32 v57, s{sT1}, v6')
    a('s_waitcnt vmcnt(0)')
    X = 128
    for i in range(16):
        a(f'v_lshlrev_b32 v{X+2*i}, 16, v{AR+i}\nv_and_b32 v{X+2*i+1}, 0xffff0000, v{AR+i}')
    a(f'v_pk_add_f32 v[16:17], {vr(X,2)}, {vr(X+2,2)}')
    for i in range(2, 16): a(f'v_pk_add_f32 v[16:17], v[16:17], {vr(X+2*i,2)}')
    a('v_add_f32 v16, v16, v17')
    def rowsum(v):
        for k in (1, 2, 4, 8): a(f'v_add_f32_dpp v{v}, v{v}, v{v} row_ror:{k} row_mask:0xf bank_mask:0xf')
    rowsum(16)
    a(f'v_mul_f32 v16, {f32(-1.0/512)}, v16\nv_mov_b32 v17, v16\nv_mov_b32 v18, 0\nv_mov_b32 v19, 0')
    for i in range(16):
        a(f'v_pk_add_f32 {vr(X+2*i,2)}, {vr(X+2*i,2)}, v[16:17]\nv_pk_fma_f32 v[18:19], {vr(X+2*i,2)}, {vr(X+2*i,2)}, v[18:19]')
    a('v_add_f32 v18, v18, v19')
    rowsum(18)
    a(f'v_mov_b32 v19, {f32(1e-5)}\nv_fmac_f32 v19, {f32(1.0/512)}, v18\nv_rsq_f32 v19, v19')
    a('v_lshlrev_b32 v20, 16, v4\nv_and_b32 v21, 0xffff0000, v4\nv_lshlrev_b32 v22, 16, v5\nv_and_b32 v23, 0xffff0000, v5')
    for r in range(4): a(f'v_add_f32 v{20+r}, v{20+r}, v16')
    for r in range(4): a(f'v_mul_f32 v{20+r}, v{20+r}, v19')
    a(f'v_lshlrev_b32 v3, 11, v7\nv_lshl_add_u32 v3, v8, 4, v3\ns_lshl_b32 s{sT1}, s{sB}, 1\ns_add_u32 s{sT1}, s{sT1}, s{sW}\ns_lshl_b32 s{sT1}, s{sT1}, 13\ns_add_u32 s{sT1}, s{sT1}, {WS_MOD}\ns_add_u32 s{sT2}, s{sT1}, 65536')
    spin(16, F_E, 8)
    spin(16, F_G, 4)
    stamp(2)
    def l1():
        for sg in range(2):
            for kp in range(8): a(f'buffer_load_dwordx4 {vr(X + 32*sg + 4*kp, 4)}, v3, {sr(rWS,4)}, s{sT2 if sg else sT1} offen offset:{256*kp} sc1')
    if '1' not in abl: poll(l1, [X + 4*k for k in range(16)], 16, cnt=12, after_issue=lambda: sig(F_GI))
    else: sig(F_GI)
    stamp(3)
    tree(X, 8); tree(X + 32, 8)
    for r in range(4): a(f'v_add_f32 v{X+r}, v{X+r}, v{20+r}')
    for r in range(4): a(f'v_fmac_f32 v{X+r}, v{X+32+r}, v{20+r}')
    hilo(range(16, 20), range(X, X+4), range(16, 20))
    imgw4(11, 16)
    a(f's_xor_b32 s{sT0}, s{sW}, 1\ns_mul_i32 s{sT0}, s{sT0}, {PASS}\nv_add_u32 v3, s{sT0}, v12\ns_mul_i32 s{sT0}, s{sW}, {PASS}\nv_add_u32 v4, s{sT0}, v12')
    for p in range(2):
        for sg in range(8): a(f'ds_read_b128 {vr(128 + 32*p + 4*sg, 4)}, v{3+p} offset:{sg*SIG}')
    for p in range(2):
        for sg in range(8):
            if p == 0 or sg <= 3: a(f's_waitcnt lgkmcnt({(15 - sg) if p == 0 else (7 - sg if sg < 3 else 0)})')
            a(f'v_smfmac_f32_16x16x64_bf16 {vr(AC+4*p,4)}, {vr(128 + 32*p + 4*sg, 4)}, {vr(W0 + 8*sg, 8)}, v{VI}')
            if p == 1 and sg == 3:
                a(f'ds_write_b128 v57, {vr(AC,4)}')
                sig(F_I)
    spin(16, F_I, 2, extra='ds_read_b128 v[20:23], v56')
    a(f'v_pk_add_f32 {vr(AC+4,2)}, {vr(AC+4,2)}, v[20:21]\nv_pk_add_f32 {vr(AC+6,2)}, {vr(AC+6,2)}, v[22:23]')
    tagit(AC+4, VTA)
    a(f'buffer_store_dwordx4 {vr(AC+4,4)}, v2, {sr(rWS,4)}, s{sB1} offen')
    sig(F_P)
    stamp(4)
    f_early(True)
    kread()
    l, d = U('L_qs'), U('L_qsd')
    a(f's_mov_b32 s{sCNT}, 0')
    a.lab(l)
    a(f'ds_read_b64 v[16:17], v13 offset:{F_Q}\ns_waitcnt lgkmcnt(0)\nv_readfirstlane_b32 s{sT0}, v16\nv_readfirstlane_b32 s{sSLOW}, v17')
    a(f's_cmp_lg_u32 s{sSLOW}, 0\ns_cbranch_scc1 {d}\ns_cmp_ge_u32 s{sT0}, 1\ns_cbranch_scc1 L_T_qk2')
    a(f's_add_u32 s{sCNT}, s{sCNT}, 1\ns_cmp_lt_u32 s{sCNT}, {SPIN_LIM}\ns_cbranch_scc1 {l}\ns_endpgm')
    a.lab(d)
    pubdup(AC+4, 2, sB1)
    a('s_branch L_T_qk')
    a.lab('L_T23_job')
    qk_setup()
    a(f's_cmp_eq_u32 s{sW}, 2\ns_cbranch_scc1 L_T2_pre\ns_cmp_lt_u32 s{sR}, 16\ns_cbranch_scc1 L_T23_pre')
    qprec(sB1)
    a(f'v_and_b32 v2, 3, v0\nv_lshlrev_b32 v2, 7, v2\nv_lshl_add_u32 v2, v7, 13, v2\nbuffer_load_dword v58, v2, {sr(rWS,4)}, s{sB1} offen {ptfl}')
    a('s_branch L_T23_pre')
    a.lab('L_T2_pre')
    a(f'v_min_u32 v2, 16, v0\nv_lshlrev_b32 v2, 7, v2')
    a(f's_cmp_ge_u32 s{sR}, 16\ns_cbranch_scc1 L_T2_pre2')
    spin(16, F_E, 7, sleep=1)
    a(f'buffer_load_dword v58, v2, {sr(rWS,4)}, s{sB3} offen {ptfl}')
    a(f'v_mov_b32 v20, v{VTA}\nv_mov_b32 v21, 0\nv_mov_b32 v22, 0\nv_mov_b32 v23, 0')
    a(f's_mov_b64 exec, 0xf0\nbuffer_store_dwordx4 v[20:23], v6, {sr(rWS,4)}, s{sB3} offen offset:2048\ns_mov_b64 exec, -1')
    a('s_branch L_T23_pre')
    a.lab('L_T2_pre2')
    a(f'buffer_load_dword v58, v2, {sr(rWS,4)}, s{sB3} offen {ptfl}')
    a.lab('L_T23_pre')
    sig(F_E)
    f_early(True)
    a(f's_cmp_eq_u32 s{sW}, 3\ns_cbranch_scc1 L_T_k2')
    a(f's_lshl_b32 s{sB1}, s{sG}, 15\ns_lshl_b32 s{sT0}, s{sB}, 13\ns_add_u32 s{sB1}, s{sB1}, s{sT0}\ns_add_u32 s{sB1}, s{sB1}, {WS_QP}')
    a('v_lshrrev_b32 v3, 5, v0\nv_and_b32 v2, 31, v0\nv_lshlrev_b32 v2, 4, v2\nv_lshl_add_u32 v2, v3, 11, v2\nv_add_u32 v59, 4096, v2')
    a(f'v_bfe_u32 v56, v0, 2, 2\nv_lshl_add_u32 v56, v7, 3, v56\nv_mul_u32_u24 v56, {OPS}, v56\nv_and_b32 v57, 3, v0\nv_lshl_add_u32 v56, v57, 4, v56')
    a(f's_mul_i32 s{sB4}, s{sG}, {32*OPS}\ns_add_u32 s{sB4}, s{sB4}, {WS_OP}\ns_mov_b32 s{sMK}, s{sMASK}')
    a(f'v_and_b32 v11, 1, v7\nv_mul_u32_u24 v3, 320, v3\nv_lshl_add_u32 v3, v11, 7, v3\nv_lshl_add_u32 v3, v9, 4, v3\nv_lshl_add_u32 v3, v10, 3, v3\nv_add_u32 v11, {L_Q}, v3')
    if not kfirst: a(f's_cmp_ge_u32 s{sR}, 16\ns_cbranch_scc1 L_T23_nok')
    kread()
    a.lab('L_T23_nok')
    spin(3, F_G2, 2, sleep=1)
    stamp(2)
    def l3():
        a(f'buffer_load_dword v57, v56, {sr(rWS,4)}, s{sB4} offen offset:{2048+64} sc1')
        for hp in range(2):
            for e in range(4): a(f'buffer_load_dwordx4 {vr(224 + 16*hp + 4*e, 4)}, v{59 if hp else 2}, {sr(rWS,4)}, s{sB1} offen offset:{512*e} sc1')
    if '2' not in abl: poll(l3, [57] + [224 + 4*k for k in range(8)], 3, local=(sB1, 4, 5), cnt=12, setslow=True, marker=57)
    stamp(3)
    tree(224, 4); tree(240, 4)
    for hp in range(2):
        R = 224 + 16*hp
        a(f'v_cvt_pk_bf16_f32 v{R}, v{R}, v{R+1}\nv_cvt_pk_bf16_f32 v{R+1}, v{R+2}, v{R+3}\nds_write_b64 v11, {vr(R,2)} offset:{640*hp}')
    sig(F_Q)
    stamp(4)
    if not kfirst:
        a(f's_cmp_lt_u32 s{sR}, 16\ns_cbranch_scc1 L_T_qk')
        kread()
    a.lab('L_T_qk')
    spin(16, F_Q, 1, extra=f'ds_read_b32 v17, v13 offset:{F_S}')
    a.lab('L_T_qk2')
    stamp(5)
    for j in range(4): a(f'ds_read_b128 {vr(QF + 4*j, 4)}, v52 offset:{64*j}')
    a(f'v_readfirstlane_b32 s{sSLOW}, v17\ns_mov_b32 s{sT2}, {f32(SC)}\ns_lshl_b32 s{sT1}, s{sW}, 9\ns_add_u32 s{sB3}, s{sB3}, s{sT1}')
    for j in range(4):
        a(f's_waitcnt lgkmcnt({3-j})')
        for t in range(4):
            c = '0' if j == 0 else vr(DD + 4*t, 4)
            a(f'v_mfma_f32_16x16x32_bf16 {vr(DD + 4*t, 4)}, {vr(KF + 16*t + 4*j, 4)}, {vr(QF + 4*j, 4)}, {c}')
    for t in range(1, 4):
        for r in range(4):
            a(f'v_mov_b32_dpp v{DD+r}, v{DD+4*t+r} quad_perm:[0,1,2,3] row_mask:0xf bank_mask:{1<<t:#x}')
    a(f'v_max3_f32 v16, v{DD}, v{DD+1}, v{DD+2}\nv_max_f32 v16, v16, v{DD+3}')
    a('v_max_f32_dpp v16, v16, v16 row_ror:4 row_mask:0xf bank_mask:0xf')
    a('v_max_f32_dpp v16, v16, v16 row_ror:8 row_mask:0xf bank_mask:0xf')
    a(f's_mov_b32 exec_lo, 0x000f000f\ns_mov_b32 exec_hi, 0x000f000f\nds_max_f32 v53, v16 offset:{F_MX}')
    sig(F_M)
    spin(16, F_M, 4, extra=f'ds_read_b32 v17, v53 offset:{F_MX}')
    a(f'v_mul_f32 v17, s{sT2}, v17')
    for r in range(4): a(f'v_fma_f32 v{DD+r}, v{DD+r}, s{sT2}, -v17')
    for r in range(4): a(f'v_exp_f32 v{DD+r}, v{DD+r}')
    a(f'v_cvt_pk_bf16_f32 v18, v{DD}, v{DD+1}\nv_cvt_pk_bf16_f32 v19, v{DD+2}, v{DD+3}\nds_write_b64 v54, v[18:19]')
    sig(F_PR)
    stamp(6)
    CSA = 192
    f_setup()
    srd(rC, pX, 4096)
    a(f's_lshl_b32 s{sT1}, s{sG}, 2\ns_add_u32 s{sT1}, s{sT1}, s{sS}')
    a(f'v_lshl_add_u32 v4, v9, 3, v7\nv_lshl_add_u32 v4, v10, 2, v4\nv_lshlrev_b32 v21, 1, v4')
    a(f's_lshl_b32 s{sMK}, s{sB}, 10\ns_lshl_b32 s{sT2}, s{sW}, 8\ns_add_u32 s{sMK}, s{sMK}, s{sT2}')
    imgbase()
    par_addr(11, 5)
    for i in range(8): a(f'v_mov_b32 v{AC+i}, 0')
    a(f'v_xor_b32 v2, s{sB}, v9\nv_and_b32 v3, 1, v2\nv_lshlrev_b32 v60, 6, v3\nv_lshl_add_u32 v60, v10, 5, v60\nv_and_b32 v3, 1, v7\nv_lshl_add_u32 v60, v3, 4, v60\nv_lshrrev_b32 v3, 1, v7\nv_lshl_add_u32 v60, v3, 3, v60')
    a(f'v_lshrrev_b32 v2, 1, v2\nv_mul_u32_u24 v2, {SIG}, v2\nv_add3_u32 v2, v2, v60, s{sT3}\nv_add_u32 v3, {4*SIG}, v2')
    a(f'v_add_u32 v62, {PASS}, v2\nv_add_u32 v63, {PASS}, v3')
    a(f's_lshl_b32 s{sT2}, s{sW}, 9\ns_add_u32 s{sT3}, s{sT2}, {L_X1}\nv_lshl_add_u32 v4, v4, 2, s{sT3}')
    a(f's_add_u32 s{sT3}, s{sT2}, {L_RS}\nv_lshlrev_b32 v60, 4, v8\nv_lshl_add_u32 v60, v7, 2, v60\nv_add_u32 v60, s{sT3}, v60')
    a(f's_lshl_b32 s{sB2}, s{sB}, 14\ns_lshl_b32 s{sT3}, s{sW}, 12\ns_add_u32 s{sB2}, s{sB2}, s{sT3}\ns_add_u32 s{sB2}, s{sB2}, {WS_YP}')
    a(f's_cmp_eq_u32 s{sW}, 0\ns_cbranch_scc0 L_T_nost')
    a(f'v_add_u32 v18, {L_LS}, v6\nv_mov_b32 v32, v{VTA}\nv_mov_b32 v33, v17\nv_mov_b32 v35, 0\ns_add_u32 s{sB4}, s{sB3}, 2048\ns_mov_b64 exec, 15')
    spin(16, F_L, 4, extra='ds_read_b128 v[36:39], v18')
    a('v_add_f32 v36, v36, v37\nv_add_f32 v38, v38, v39\nv_add_f32 v34, v36, v38')
    a(f'buffer_store_dwordx4 v[32:35], v6, {sr(rWS,4)}, s{sB4} offen')
    pubdup(32, 6, sB4)
    a('s_mov_b64 exec, -1')
    a.lab('L_T_nost')
    if npre:
        a(f's_cmp_lt_u32 s{sR}, 16\ns_cbranch_scc1 L_T_noe\ns_cmp_eq_u32 s{sG}, 7\ns_cbranch_scc1 L_T_noe')
        if vgate: spin(16, F_VI, 4)
        for i in range(4*npre):
            if i & 3: fslot(i)
        a.lab('L_T_noe')
    post = [i for i in range(4*npre, 16) if i & 3 == 0] + [i for i in range(4*npre, 16) if i & 3]
    def fld(lo, hi, hook=None):
        for n in range(lo, hi):
            if 2*n >= NTT: a(f's_waitcnt vmcnt({NTT-2})')
            fslot(post[n])
            if hook: hook(n)
    a('s_mov_b32 exec_hi, 0\ns_barrier')
    sum4(36, 55, 2048)
    tagit(36, VTA)
    a(f'buffer_store_dwordx4 v[36:39], v6, {sr(rWS,4)}, s{sB3} offen')
    pubdup(36, 6, sB3)
    a('s_mov_b32 exec_hi, -1\ns_barrier')
    stamp(7)
    if abl: a('s_branch L_fin')
    a(f's_cmp_lt_u32 s{sR}, 16\ns_cbranch_scc1 L_T_notO\ns_barrier\ns_branch L_fin')
    a.lab('L_T_notO')
    a(f's_cmp_eq_u32 s{sG}, 7\ns_cbranch_scc1 L_fin')
    GA, GC, XC, XX, EA, Y = 16, 18, 20, 22, 32, 48
    if fdelay: a(f's_sleep {fdelay}')
    a(f'buffer_load_ushort v{XX}, v21, {sr(rC,4)}, s{sMK} offen\nbuffer_load_ushort v{XX+1}, v21, {sr(rC,4)}, s{sMK} offen offset:128')
    fld(0, NTT // 2)
    if dbgF: stamp(2)
    for i in range(16): a(f'v_mov_b32 v{EA+i}, 0')
    spin(49, F_RS, 4, extra=f'ds_read2st64_b32 {vr(GA,2)}, v60 offset0:0 offset1:1\nds_read2st64_b32 v[52:53], v60 offset0:8 offset1:9\nds_read2st64_b32 v[54:55], v60 offset0:16 offset1:17')
    a(f's_waitcnt vmcnt({NTT})')
    if dbgF: stamp(3)
    a(f'v_add_f32 v54, 1.0, v54\nv_add_f32 v55, 1.0, v55\nv_lshlrev_b32 v{XX}, 16, v{XX}\nv_lshlrev_b32 v{XX+1}, 16, v{XX+1}')
    a(f'v_pk_mul_f32 {vr(GC,2)}, {vr(GA,2)}, v[54:55]\nv_pk_mul_f32 {vr(XC,2)}, {vr(XX,2)}, v[54:55]')
    hilo(range(52, 56), range(52, 56), range(56, 60))
    a('ds_write2_b32 v2, v54, v54 offset0:0 offset1:33\nds_write2_b32 v3, v55, v55 offset0:0 offset1:33')
    a('ds_write2_b32 v62, v52, v52 offset0:0 offset1:33\nds_write2_b32 v63, v53, v53 offset0:0 offset1:33')
    for p in range(2):
        for sg in range(8): a(f'ds_read_b128 {vr(CSA + 32*p + 4*sg, 4)}, v11 offset:{p*PASS + sg*SIG}')
    def cs(sg):
        for p in range(2):
            a(f'v_smfmac_f32_16x16x64_bf16 {vr(EA+8*p,4)}, {vr(CSA + 32*p + 4*sg, 4)}, {vr(WG_(sg),8)}, v5')
            a(f'v_smfmac_f32_16x16x64_bf16 {vr(EA+8*p+4,4)}, {vr(CSA + 32*p + 4*sg, 4)}, {vr(WU_(sg),8)}, v5')
    need = lambda sg: max([post.index(i) + 1 for i in (2*sg, 2*sg + 1) if i in post] + [0])
    done = [0]
    a('s_waitcnt lgkmcnt(0)')
    def hook(n):
        landed = n - (NTT - 2) // 2
        while done[0] < 8 and need(done[0]) <= landed: cs(done[0]); done[0] += 1
        if dbgF and n == len(post) - 5: stamp(4)
    fld(NTT // 2, len(post), hook)
    stamp(15)
    def l5():
        for k in range(4): a(f'buffer_load_dwordx4 {vr(Y + 4*k, 4)}, v6, {sr(rWS,4)}, s{sB2} offen offset:{1024*k} sc1')
    def rest_cs():
        sig(F_YI)
        a(f's_lshl_b32 s{sT0}, s{sW}, 10\ns_add_u32 s{sT0}, s{sT0}, {L_ORED}\nv_add_u32 v12, s{sT0}, v6')
        for sg in range(done[0], 8):
            a(f's_waitcnt vmcnt({4 + 2*(len(post) - need(sg))})')
            cs(sg)
        if dbgF: stamp(5)
        for k in range(4): parity(CSA + k, EA + 4*k)
        a(f'ds_write_b128 v12, {vr(CSA,4)}')
        sig(F_CS)
        a(f's_add_u32 s{sT0}, s{sT2}, {L_RED}\nv_lshl_add_u32 v12, v0, 3, s{sT0}\ns_lshl_b32 s{sT0}, s{sW}, 3\ns_add_u32 s{sT0}, s{sT0}, {L_ST}\nv_mov_b32 v40, s{sT0}')
    poll(l5, [Y + 4*k for k in range(4)], 32, cnt=14, first=(rest_cs, 0), sleep=ysleep, after_issue=((lambda: sig(F_YI)) if dnstep else None))
    if dnstep: sig(F_YI, 8)
    stamp(8)
    for R in (Y, Y + 8): a(f'v_pk_add_f32 {vr(R,2)}, {vr(R,2)}, {vr(R+4,2)}\nv_pk_add_f32 {vr(R+2,2)}, {vr(R+2,2)}, {vr(R+6,2)}')
    for R in (Y, Y + 8): a(f'v_permlane32_swap_b32 v{R}, v{R+2}\nv_permlane32_swap_b32 v{R+1}, v{R+3}')
    for R in (Y, Y + 8): a(f'v_pk_add_f32 {vr(R,2)}, {vr(R,2)}, {vr(R+2,2)}')
    for R in (Y, Y + 8): a(f'v_permlane16_swap_b32 v{R}, v{R+1}')
    a(f'v_add_f32 v32, v{Y}, v{Y+1}\nv_add_f32 v33, v{Y+8}, v{Y+9}')
    a(f'v_pk_fma_f32 v[34:35], v[32:33], {vr(GC,2)}, {vr(XC,2)}')
    hilo((34, 35), (34, 35), (36, 37))
    a('ds_write2_b32 v2, v34, v34 offset0:0 offset1:33\nds_write2_b32 v3, v35, v35 offset0:0 offset1:33')
    for sg in range(8): a(f'ds_read_b128 {vr(CSA + 4*sg, 4)}, v11 offset:{sg*SIG}')
    a(f'v_pk_fma_f32 {vr(XX,2)}, v[32:33], {vr(GA,2)}, {vr(XX,2)}')
    a(f'ds_write2_b32 v4, v{XX}, v{XX+1} offset0:0 offset1:64\nv_readfirstlane_b32 s{sT0}, v{XX}')
    a(f'v_subrev_f32 v36, s{sT0}, v{XX}\nv_subrev_f32 v37, s{sT0}, v{XX+1}\nv_add_f32 v38, v36, v37\nv_mul_f32 v39, v36, v36\nv_fmac_f32 v39, v37, v37')
    dpp = [f'row_ror:{k} row_mask:0xf' for k in (1, 2, 4, 8)] + ['row_bcast:15 row_mask:0xa', 'row_bcast:31 row_mask:0xc']
    for k in range(3): a(f'v_add_f32_dpp v38, v38, v38 {dpp[k]} bank_mask:0xf\nv_add_f32_dpp v39, v39, v39 {dpp[k]} bank_mask:0xf')
    fill = []
    for k in range(3, 6): fill += [f'v_add_f32_dpp v38, v38, v38 {dpp[k]} bank_mask:0xf', f'v_add_f32_dpp v39, v39, v39 {dpp[k]} bank_mask:0xf']
    fill += [f'v_mul_f32 v36, {f32(1.0/128)}, v38', f'v_fma_f32 v39, -v36, v38, v39\nv_add_f32 v38, s{sT0}, v36']
    extra = 1
    for sg in range(8):
        a(f's_waitcnt lgkmcnt({7 - sg + extra})')
        a(f'v_smfmac_f32_16x16x64_bf16 {vr(AC,4)}, {vr(CSA+4*sg,4)}, {vr(WG_(sg),8)}, v5')
        if fill: a(fill.pop(0))
        a(f'v_smfmac_f32_16x16x64_bf16 {vr(AC+4,4)}, {vr(CSA+4*sg,4)}, {vr(WU_(sg),8)}, v5')
        if fill:
            a(fill.pop(0))
            if not fill:
                a(f's_mov_b32 exec_lo, 0\ns_mov_b32 exec_hi, 0x80000000\nds_write_b64 v40, v[38:39]\nds_add_u32 v13, v14 offset:{F_ST}\ns_mov_b64 exec, -1')
                extra += 2
    parity(20, AC); parity(21, AC+4)
    a('ds_write_b64 v12, v[20:21]')
    a('s_waitcnt lgkmcnt(0)\ns_barrier')
    stamp(9)
    a(f's_cmp_lt_u32 s{sG}, 4\ns_cbranch_scc0 L_fin\ns_cmp_lt_u32 s{sW}, {NP}\ns_cbranch_scc0 L_fin')
    a(f's_lshr_b32 s{sT2}, s{sT1}, 1\ns_and_b32 s{sT3}, s{sT1}, 1')
    a(f's_lshl_b32 s{sT0}, s{sT1}, 7\ns_add_u32 s{sT0}, s{sT0}, {L_RS + 6144}\nv_lshlrev_b32 v18, 4, v9\nv_lshl_add_u32 v18, v7, 2, v18\nv_add_u32 v18, s{sT0}, v18\nds_read_b32 v20, v18')
    a(f's_lshl_b32 s{sT0}, s{sT2}, 6\ns_lshl_b32 s{sT3}, s{sT3}, 2\ns_add_u32 s{sT0}, s{sT0}, s{sT3}')
    a(f'v_lshl_add_u32 v21, v9, 3, v7\nv_add_u32 v21, s{sT0}, v21')
    a(f'v_lshlrev_b32 v22, 2, v21\nv_lshlrev_b32 v21, 1, v21\nv_add_u32 v22, {L_X1}, v22\nds_read_b32 v23, v22')
    a(f's_lshl_b32 s{sB1}, s{sB}, 4\ns_add_u32 s{sB1}, s{sB1}, s{sT1}\ns_lshl_b32 s{sB1}, s{sB1}, 12\ns_add_u32 s{sB1}, s{sB1}, {WS_FP}')
    srd(rA, pOUT, 4096)
    a(f's_lshl_b32 s{sB2}, s{sB}, 10')
    for i in range(4): a(f'v_mov_b32 v{44+i}, 0')
    if fsleep: a(f's_sleep {fsleep}')
    for k in range(1, NP):
        l = U('L_st'); a(f's_cmp_lt_u32 s{sW}, {k}\ns_cbranch_scc1 {l}\ns_sleep {fst}'); a.lab(l)
    stamp(10)
    def fl():
        for j in range(3): a(f'buffer_load_dwordx4 {vr(32+4*j,4)}, v6, {sr(rWS,4)}, s{sB1} offen offset:{1024*j} sc1')
        a(f's_mov_b32 exec_hi, 0\nbuffer_load_dwordx4 v[44:47], v6, {sr(rWS,4)}, s{sB1} offen offset:3072 sc1')
    def fchk():
        a(f'v_xor_b32 v44, v44, v{VT}\ns_mov_b32 exec_hi, -1')
        for j in range(3): a(f'v_xor_b32 v{32+4*j}, v{32+4*j}, v{VT}')
    poll(fl, [32, 36, 40, 44], 19, pre_check=fchk, cnt=1, sleep=psleep)
    stamp(13)
    a('v_pk_add_f32 v[32:33], v[32:33], v[40:41]\nv_pk_add_f32 v[34:35], v[34:35], v[42:43]')
    a('v_pk_add_f32 v[36:37], v[36:37], v[44:45]\nv_pk_add_f32 v[38:39], v[38:39], v[46:47]')
    red8(32, 24)
    a('v_add_f32_dpp v24, v24, v24 row_ror:8 row_mask:0xf bank_mask:0xf')
    a('s_waitcnt lgkmcnt(0)\nv_fma_f32 v24, v24, v20, v23\nv_cvt_pk_bf16_f32 v24, v24, v24')
    a('s_mov_b32 exec_lo, 0x00ff00ff\ns_mov_b32 exec_hi, 0x00ff00ff')
    a(f'buffer_store_short v24, v21, {sr(rA,4)}, s{sB2} offen {outfl}')
    a(f's_cmp_eq_u32 s2, 0\ns_cbranch_scc0 L_fin')
    a(f's_mov_b64 exec, 1\nv_mov_b32 v24, s{sE}\nbuffer_store_dword v24, v6, {sr(rWS,4)}, 0 offen {outfl}')
    a('s_branch L_fin')

    VR, PX, PV_, WO, ACL, ONE = 32, 96, 160, 192, 20, 16
    a.lab('L_A')
    a(f's_lshl_b32 s{sB1}, s{sB}, 24\ns_lshl_b32 s{sT0}, s{sG}, 21\ns_or_b32 s{sB1}, s{sB1}, s{sT0}')
    a(f's_lshl_b32 s{sT0}, s{sS}, 16\ns_or_b32 s{sB1}, s{sB1}, s{sT0}\ns_lshl_b32 s{sT1}, s3, 14\ns_or_b32 s{sB1}, s{sB1}, s{sT1}')
    a(f's_and_b32 s{sT0}, s{sR}, 15\ns_lshl_b32 s{sT0}, s{sT0}, 10\ns_or_b32 s{sB1}, s{sB1}, s{sT0}\ns_or_b32 s{sB1}, s{sB1}, 0x180000')
    a(f's_mov_b32 m0, s{sT1}')
    a('v_lshlrev_b32 v2, 6, v7\nv_xor_b32 v2, v6, v2\nv_xor_b32 v3, 16, v2\nv_xor_b32 v4, 32, v2\nv_xor_b32 v5, 48, v2')
    a(f's_mov_b32 s{sLO}, 0x05040100\ns_mov_b32 s{sHI}, 0x07060302')
    a('s_waitcnt lgkmcnt(0)')
    stamp(1)
    a(f's_load_dword s{sE}, s[32:33], 0')
    srd(rA, pK, 0x4000000); srd(rB, pV, 0x4000000)
    def setup_A():
        zero_ts()
        a(f's_getreg_b32 s{sXC}, hwreg(HW_REG_XCC_ID, 0, 3)')
        if forceslow: a(f's_cmp_eq_u32 s{sR}, {forceslow}\ns_cselect_b32 s{sXC}, 1, 0')
        a(f's_lshl_b32 s{sXC}, s{sXC}, 9\ns_waitcnt lgkmcnt(0)')
        mktag()
        sig(F_E)
    def perm_pair(k):
        blk, p = k >> 2, k & 3
        r0 = VR + 32*blk + 8*p
        for c in range(4):
            a(f'v_perm_b32 v{PX + 32*blk + 8*c + p}, v{r0+4+c}, v{r0+c}, s{sLO}')
            a(f'v_perm_b32 v{PX + 32*blk + 8*c + 4 + p}, v{r0+4+c}, v{r0+c}, s{sHI}')
    NMAX = max(math.ceil(x) for x in (NM, NQ, NM2 or 0))
    AFTER = []
    PAIRS_IN_LOOP = (16 - NMAX) // 2
    def stream(seq, win, sigs, pauses):
        kl = max(n for n, x in enumerate(seq) if x[0] == 'K')
        done_pairs = 0; ksig = False
        for n, (t, i) in enumerate(seq):
            N = win(n)
            w = int(N*(n+1)) - int(N*n)
            if n in pauses: pauses[n]()
            if n >= w: a(f's_waitcnt vmcnt({w-1})')
            for (gn, fo) in sigs:
                if n == gn: sig(fo)
            landed = n - w + 1
            if prog:
                step = 5 if len(seq) > 40 else 4
                slots = [7, 8, 9, 10, 12, 13, 14, 15]
                if landed > 0 and landed % step == 0 and landed // step <= 8: stamp(slots[landed // step - 1])
            if t == 'W':
                a(f'buffer_load_dwordx4 v[192:195], v6, {sr(rC,4)}, s{sB2} offen\ns_add_u32 s{sB2}, s{sB2}, 1024')
            elif t == 'O':
                a(f'buffer_load_dwordx4 {vr(WO + 4*i, 4)}, v11, {sr(rC,4)}, s{sB2} offen {ofl}')
                if i < 15:
                    cur = ((i >> 2) * 128 + (i & 3) * 8) * 1024; nxt = (((i+1) >> 2) * 128 + ((i+1) & 3) * 8) * 1024
                    a(f's_xor_b32 s{sB2}, s{sB2}, {cur ^ nxt:#x}')
            else:
                if i: a(f's_xor_b32 s{sOFF}, s{sB1}, {i << 10}')
                so = sOFF if i else sB1
                if t == 'K':
                    a(f'buffer_load_dwordx4 v{2 + (i & 3)}, {sr(rA,4)}, s{so} offen {kvfl} lds')
                    if i < 15: a('s_add_u32 m0, m0, 0x400')
                else:
                    a(f'buffer_load_dwordx4 {vr(VR + 4*i, 4)}, v6, {sr(rB,4)}, s{so} offen {kvfl}')
            if not ksig and landed > kl: sig(F_K); ksig = True
            vl = sum(1 for x in seq[:max(landed, 0)] if x[0] == 'V')
            while done_pairs < PAIRS_IN_LOOP and vl >= 2*done_pairs + 2:
                perm_pair(done_pairs); done_pairs += 1
        assert ksig and done_pairs == PAIRS_IN_LOOP, (ksig, done_pairs)
        after = [len(seq) - 1 - seq.index(('V', 2*k + 1)) for k in range(8)]
        if AFTER: assert AFTER[PAIRS_IN_LOOP:] == after[PAIRS_IN_LOOP:]
        AFTER[:] = after
    KV = [('K', i) for i in range(16)] + [('V', i) for i in range(16)]
    srd(rC, pWO, 4096*1024)
    a(f's_cmp_ge_u32 s{sR}, 16\ns_cbranch_scc1 L_A_O')
    if dw:
        assert not xmap and npw == 8 and wpos == 0
        a(f's_lshl_b32 s{sB2}, s{sG}, 19\ns_and_b32 s{sT0}, s{sR}, 7\ns_lshl_b32 s{sT0}, s{sT0}, 16\ns_add_u32 s{sB2}, s{sB2}, s{sT0}\ns_lshl_b32 s{sT0}, s{sW}, 14\ns_add_u32 s{sB2}, s{sB2}, s{sT0}')
        a(f's_cmp_lt_u32 s{sR}, 8\ns_cselect_b32 s{sT0}, {(8+dw)*1024}, 0\ns_add_u32 s{sB2}, s{sB2}, s{sT0}')
    else:
        a(f's_lshl_b32 s{sB2}, s{sG}, 19\ns_lshl_b32 s{sT0}, s{sR}, 15\ns_add_u32 s{sB2}, s{sB2}, s{sT0}\ns_lshl_b32 s{sT0}, s{sW}, 13\ns_add_u32 s{sB2}, s{sB2}, s{sT0}')
    a('s_barrier')
    a(f's_cmp_lt_u32 s{sMR}, 8\ns_cbranch_scc0 L_A_go')
    spin(16, F_H, 1)
    if dw: a('s_branch L_A_go2')
    a.lab('L_A_go')
    pz = {int(NM): setup_A}
    if dw:
        assert 2*dw < NM
        pz[2*dw] = lambda: a.lab('L_A_go2')
    stream(KV[:wpos] + [('W', i) for i in range(npw + dw)] + KV[wpos:], lambda n: NM2 if (NM2 and n >= nswm) else NM, [(gr, F_G), (g2m, F_G2)], pz)
    sig(F_VI)
    stamp(2)
    imgbase()
    srd(rC, pWD, 1792*1024)
    a(f's_lshl_b32 s{sT1}, s{sG}, 2\ns_add_u32 s{sT1}, s{sT1}, s{sS}')
    a(f's_lshl_b32 s{sB3}, s{sT1}, 16\ns_lshl_b32 s{sT0}, s{sW}, 8\ns_add_u32 s{sB3}, s{sB3}, s{sT0}')
    a('v_lshlrev_b32 v32, 10, v7\nv_lshl_add_u32 v32, v8, 4, v32')
    a(f's_lshl_b32 s{sB1}, s{sB}, 13\ns_lshl_b32 s{sT0}, s{sW}, 11\ns_add_u32 s{sB1}, s{sB1}, s{sT0}\ns_add_u32 s{sB1}, s{sB1}, {WS_RD}\ns_add_u32 s{sT0}, s{sT0}, {L_RS}\nv_add_u32 v33, s{sT0}, v6')
    a(f'v_add_u32 v34, {L_ORED}, v6\nv_mov_b32 v35, {L_ST}\nv_lshlrev_b32 v36, 3, v0\nv_add_u32 v36, {L_RED}, v36')
    a(f's_lshl_b32 s{sT0}, s{sB}, 1\nv_xor_b32 v37, s{sT0}, v9\nv_mul_u32_u24 v37, {SIG}, v37\nv_lshl_add_u32 v37, v7, 5, v37\nv_lshl_add_u32 v37, v10, 3, v37\nv_add_u32 v37, s{sT3}, v37')
    a(f'v_bfe_u32 v38, v0, 2, 1\nv_lshlrev_b32 v38, 7, v38\nv_lshl_add_u32 v38, v7, 5, v38\nv_add_u32 v38, s{sT3}, v38')
    a('v_and_b32 v39, 3, v0\nv_mul_u32_u24 v39, 0x5555, v39')
    a('v_lshlrev_b32 v40, 13, v10\nv_lshl_add_u32 v40, v7, 12, v40\nv_lshl_add_u32 v40, v9, 4, v40')
    a(f's_lshl_b32 s{sB2}, s{sB}, 16\ns_lshl_b32 s{sT2}, s{sW}, 14\ns_add_u32 s{sB2}, s{sB2}, s{sT2}\ns_lshl_b32 s{sT2}, s{sT1}, 7\ns_add_u32 s{sB2}, s{sB2}, s{sT2}\ns_add_u32 s{sB2}, s{sB2}, {WS_FP}')
    a('s_branch L_A_pv')
    a.lab('L_A_O')
    a('v_lshlrev_b32 v11, 10, v7\nv_lshl_add_u32 v11, v10, 15, v11\nv_lshl_add_u32 v11, v9, 4, v11')
    a(f's_lshl_b32 s{sB2}, s{sG}, 19\ns_bfe_u32 s{sT0}, s{sR}, 0x30001\ns_lshl_b32 s{sT0}, s{sT0}, 7\ns_add_u32 s{sB2}, s{sB2}, s{sT0}')
    a(f's_and_b32 s{sT0}, s{sW}, 1\ns_lshl_b32 s{sT0}, s{sT0}, 16\ns_add_u32 s{sB2}, s{sB2}, s{sT0}\ns_lshr_b32 s{sT0}, s{sW}, 1\ns_lshl_b32 s{sT0}, s{sT0}, 12\ns_add_u32 s{sB2}, s{sB2}, s{sT0}')
    a(f's_and_b32 s{sT0}, s{sR}, 1\ns_lshl_b32 s{sT0}, s{sT0}, 18\ns_add_u32 s{sB2}, s{sB2}, s{sT0}')
    a('s_barrier')
    def p1():
        setup_A()
        a(f's_waitcnt vmcnt({n1w})'); sig(F_G); spin(16, F_GI, 2)
    def p2(): spin(16, F_P, 2)
    def p12(): p1(); p2()
    OO = [('O', i) for i in range(16)]
    seq = KV[:n1+n2] + OO[:n2o] + KV[n1+n2:wopos] + OO[n2o:] + KV[wopos:]
    stream(seq, lambda n: NQ, [(g2q, F_G2)], {n1: p1, n1 + n2 + n2o: p2} if n2 + n2o else {n1: p12})
    stamp(2)
    imgbase()
    par_addr(38, 39)
    a(f'v_lshrrev_b32 v16, 5, v0\nv_and_b32 v17, 31, v0\nv_mul_u32_u24 v32, {OPS}, v16\nv_lshl_add_u32 v32, v17, 4, v32\ns_lshl_b32 s{sT0}, s{sW}, 9\nv_add_u32 v32, s{sT0}, v32')
    a(f'v_lshrrev_b32 v18, 2, v0\nv_mul_u32_u24 v33, {OPS}, v18\nv_and_b32 v19, 3, v0\nv_lshl_add_u32 v33, v19, 4, v33')
    a(f's_and_b32 s{sT0}, s{sR}, 1\ns_lshl_b32 s{sT1}, s{sG}, 1\ns_add_u32 s{sT0}, s{sT0}, s{sT1}\ns_mul_i32 s{sB2}, s{sT0}, {16*OPS}\ns_add_u32 s{sB2}, s{sB2}, {WS_OP}')
    a(f's_lshl_b32 s{sT0}, s{sW}, 8\ns_add_u32 s{sT0}, s{sT0}, {L_WT}')
    a(f'v_and_b32 v34, 1, v18\nv_lshlrev_b32 v34, 5, v34\nv_lshl_add_u32 v34, v19, 6, v34\nv_lshl_add_u32 v34, v16, 4, v34\nv_bfe_u32 v35, v0, 3, 2\nv_lshl_add_u32 v34, v35, 2, v34\nv_add_u32 v34, s{sT0}, v34')
    a(f'v_lshlrev_b32 v35, 6, v19\nv_lshl_add_u32 v35, v16, 5, v35\nv_add_u32 v35, s{sT0}, v35')
    a(f's_and_b32 s{sT0}, s{sR}, 1\ns_lshl_b32 s{sT0}, s{sT0}, 1\nv_xor_b32 v37, s{sT0}, v19')
    a(f'v_mul_u32_u24 v36, {PASS}, v16\nv_mul_u32_u24 v37, {2*SIG}, v37\nv_add3_u32 v36, v36, v37, s{sT3}')
    a('v_lshl_add_u32 v36, v10, 5, v36\nv_and_b32 v37, 1, v18\nv_lshl_add_u32 v36, v37, 3, v36\nv_and_b32 v37, 1, v7\nv_lshl_add_u32 v36, v37, 4, v36')
    a(f'v_lshlrev_b32 v37, 3, v37\nv_lshl_add_u32 v37, v16, 7, v37\nv_lshl_add_u32 v37, v9, 4, v37\nv_lshl_add_u32 v37, v10, 2, v37\ns_lshl_b32 s{sT0}, s{sW}, 9\ns_add_u32 s{sT0}, s{sT0}, {L_RED}\nv_add_u32 v37, s{sT0}, v37')
    a(f's_and_b32 s{sT0}, s{sR}, 1\ns_lshl_b32 s{sB1}, s{sT0}, 15\ns_bfe_u32 s{sT0}, s{sR}, 0x30001\ns_lshl_b32 s{sT0}, s{sT0}, 11\ns_add_u32 s{sB1}, s{sB1}, s{sT0}\ns_lshl_b32 s{sT0}, s{sG}, 8\ns_add_u32 s{sB1}, s{sB1}, s{sT0}\ns_add_u32 s{sB1}, s{sB1}, {WS_YP}')
    a(f'v_lshlrev_b32 v40, 14, v7\nv_lshl_add_u32 v40, v8, 4, v40\nv_add_u32 v41, {L_RED}, v6')
    a(f'v_mov_b32 v42, v{VTA}\nv_xor_b32 v43, v{VT}, v{VTA}')
    a.lab('L_A_pv')
    for i in range(8): a(f'v_mov_b32 v{56+i}, 0')
    a(f's_lshl_b32 s{sT1}, s{sW}, 9\ns_add_u32 s{sT1}, s{sT1}, {L_P}\nv_and_b32 v11, 3, v0\nv_lshlrev_b32 v11, 4, v11\nv_lshl_add_u32 v11, v7, 6, v11\nv_add_u32 v11, s{sT1}, v11')
    for u in range(4): a(f'v_mov_b32 v{2+u}, {L_Z}')
    for u in range(4): a(f'v_mov_b32_dpp v{2+u}, v11 quad_perm:[0,1,2,3] row_mask:0xf bank_mask:{1<<u:#x}')
    for i in range(4): a(f'v_mov_b32 v{ONE+i}, 0x3f803f80')
    a(f's_lshl_b32 s{sT0}, s3, 11\ns_add_u32 s{sT0}, s{sT0}, {L_ORED}\nv_add_u32 v11, s{sT0}, v6')
    a(f's_lshl_b32 s{sT0}, s3, 2\ns_add_u32 s{sT0}, s{sT0}, {L_LS}\nv_add_u32 v12, s{sT0}, v6')
    assert PAIRS_IN_LOOP >= 4
    spin(20, F_PR, 4, extra=f'ds_read_b32 v21, v13 offset:{F_S}')
    stamp(3)
    order = [(0, 0), (1, 0), (0, 1), (0, 2), (0, 3), (1, 1), (1, 2), (1, 3)]
    for blk, u in order: a(f'ds_read_b128 {vr(PV_ + 16*blk + 4*u, 4)}, v{2+u} offset:{256*blk}')
    a(f'v_readfirstlane_b32 s{sSLOW}, v21')
    def pv(blk, j):
        x, u = j >> 2, j & 3
        c = '0' if (blk == 0 and u == 0) else vr(AC + 4*x, 4)
        a(f'v_mfma_f32_16x16x32_bf16 {vr(AC + 4*x, 4)}, {vr(PX + 32*blk + 4*j, 4)}, {vr(PV_ + 16*blk + 4*u, 4)}, {c}')
    a('s_waitcnt lgkmcnt(6)')
    a(f'v_mfma_f32_16x16x32_bf16 {vr(ACL,4)}, {vr(ONE,4)}, {vr(PV_,4)}, 0')
    a(f'v_mfma_f32_16x16x32_bf16 {vr(ACL,4)}, {vr(ONE,4)}, {vr(PV_+16,4)}, {vr(ACL,4)}')
    for u in range(4):
        if u: a(f's_waitcnt lgkmcnt({6-u})')
        pv(0, u); pv(0, 4 + u)
    a(f's_mov_b64 exec, 15\nds_write_b32 v12, v{ACL}')
    sig(F_L)
    stamp(4)
    for k in range(PAIRS_IN_LOOP, 8):
        a(f's_waitcnt vmcnt({AFTER[k]})' + (' lgkmcnt(0)' if k == 6 else ''))
        if k == 7: stamp(5)
        if k < 7: perm_pair(k)
    r0 = VR + 32 + 24
    def lp(c):
        a(f'v_perm_b32 v{PX + 32 + 8*c + 3}, v{r0+4+c}, v{r0+c}, s{sLO}\nv_perm_b32 v{PX + 32 + 8*c + 7}, v{r0+4+c}, v{r0+c}, s{sHI}')
    lp(0); lp(1); pv(1, 0); lp(2); pv(1, 1); lp(3)
    for j in range(2, 8): pv(1, j)
    a(f'ds_write_b128 v11, {vr(AC,4)}\nds_write_b128 v11, {vr(AC+4,4)} offset:1024')
    a('s_waitcnt lgkmcnt(0)\ns_barrier')
    stamp(6)
    a(f's_cmp_lt_u32 s{sR}, 16\ns_cbranch_scc1 L_A_notO')
    G, ST, WT = 64, 44, 48
    def ls(): a(f'buffer_load_dwordx4 {vr(ST,4)}, v33, {sr(rWS,4)}, s{sB2} offen offset:2048 sc1')
    def ld():
        for bb in range(2):
            for jj in range(4):
                o = (bb*8 + 2*jj) * OPS
                if o: a(f's_add_u32 s{sOFF}, s{sB2}, {o}')
                a(f'buffer_load_dwordx4 {vr(G + 16*bb + 4*jj, 4)}, v32, {sr(rWS,4)}, s{sOFF if o else sB2} offen {o3fl}')
    a(f's_cmp_eq_u32 s{sSLOW}, 0\ns_cselect_b32 s{sCNT}, 0, {fb}\ns_barrier')
    if abl: a('s_branch L_fin')
    stamp(7)
    if ofirst:
        ls(); ld()
        a(f's_waitcnt vmcnt(8)')
        stamp(15)
        a(f'v_cmp_ne_u32 vcc, v{ST}, v42\ns_cbranch_vccz L_O_w')
    a.lab('L_O_s')
    a(f's_add_u32 s{sCNT}, s{sCNT}, 1\ns_cmp_lt_u32 s{sCNT}, {fb}\ns_cbranch_scc1 L_O_s2')
    a(f's_xor_b32 s{sB2}, s{sB2}, {WS_B}\nv_xor_b32 v42, v42, v43\ns_cmp_lt_u32 s{sCNT}, {POLL_LIM}\ns_cbranch_scc1 L_O_s2\ns_endpgm')
    a.lab('L_O_s2')
    ls()
    a(f's_waitcnt vmcnt(0)\nv_cmp_ne_u32 vcc, v{ST}, v42\ns_cbranch_vccnz L_O_s')
    ld()
    a.lab('L_O_w')
    stamp(12)
    if ts: a(f's_add_u32 s{TS0+26}, s{sCNT}, 1')
    def weights():
        a(f'v_max_f32_dpp v17, v{ST+1}, v{ST+1} row_ror:4 row_mask:0xf bank_mask:0xf')
        a('v_max_f32_dpp v17, v17, v17 row_ror:8 row_mask:0xf bank_mask:0xf')
        a('v_mov_b32 v18, v17\nv_permlane16_swap_b32 v17, v18\nv_max_f32 v17, v17, v18')
        a(f'v_sub_f32 v17, v{ST+1}, v17\nv_exp_f32 v17, v17\nv_mul_f32 v18, v17, v{ST+2}')
        a('v_add_f32_dpp v18, v18, v18 row_ror:4 row_mask:0xf bank_mask:0xf')
        a('v_add_f32_dpp v18, v18, v18 row_ror:8 row_mask:0xf bank_mask:0xf')
        a('v_mov_b32 v19, v18\nv_permlane16_swap_b32 v18, v19\nv_add_f32 v18, v18, v19\nv_rcp_f32 v18, v18\nv_mul_f32 v17, v17, v18')
        a(f'ds_write_b32 v34, v17\nds_read_b128 {vr(WT,4)}, v35\nds_read_b128 {vr(WT+4,4)}, v35 offset:16')
    def dchk():
        for k in range(8): a(f'v_xor_b32 v{G+4*k}, v{G+4*k}, v42')
    poll(ld, [G + 4*k for k in range(8)], 17, cnt=14, pre_check=dchk, first=(weights, 0), noload=True)
    stamp(8)
    a('s_waitcnt lgkmcnt(0)')
    for jj in range(4):
        for bb in range(2):
            for hf in (0, 2):
                D_, X_, W_ = vr(G+16*bb+hf, 2), vr(G+16*bb+4*jj+hf, 2), vr(WT+4*bb+(jj & 2), 2)
                k = jj & 1
                if jj == 0: a(f'v_pk_mul_f32 {D_}, {X_}, {W_} op_sel:[0,0] op_sel_hi:[1,0]')
                else: a(f'v_pk_fma_f32 {D_}, {X_}, {W_}, {D_} op_sel:[0,{k},0] op_sel_hi:[1,{k},1]')
    for r in range(4): a(f'v_permlane32_swap_b32 v{G+r}, v{G+16+r}')
    for hf in (0, 2): a(f'v_pk_add_f32 {vr(G+hf,2)}, {vr(G+hf,2)}, {vr(G+16+hf,2)}')
    for r in range(2): a(f'v_cvt_pk_bf16_f32 v{G+r}, v{G+r}, 0')
    a(f'ds_write2_b32 v36, v{G}, v{G+1} offset0:0 offset1:16\nds_write2_b32 v36, v{G}, v{G+1} offset0:33 offset1:49')
    for r in range(2, 4): a(f'v_cvt_pk_bf16_f32 v{G+r}, v{G+r}, 0')
    a(f'ds_write2_b32 v36, v{G+2}, v{G+3} offset0:72 offset1:88\nds_write2_b32 v36, v{G+2}, v{G+3} offset0:105 offset1:121')
    two_pass(38, 39, 96, WO, AC=56)
    parity(16, 56); parity(17, 60)
    a('ds_write2_b32 v37, v16, v17 offset0:0 offset1:64')
    a('s_mov_b32 exec_hi, 0\ns_waitcnt lgkmcnt(0)\ns_barrier')
    stamp(9)
    a(f's_cmp_eq_u32 s{sW}, 0\ns_cbranch_scc0 L_fin')
    sum4(64, 41, 512)
    tagit(64)
    a(f'buffer_store_dwordx4 v[64:67], v40, {sr(rWS,4)}, s{sB1} offen sc1')
    stamp(10)
    if wb:
        a(f's_cmp_lt_u32 s{sR}, {16 + wb}\ns_cbranch_scc0 L_fin\ns_waitcnt vmcnt(0)\nbuffer_wbl2 sc1\ns_waitcnt vmcnt(0)')
    a('s_branch L_fin')
    a.lab('L_A_notO')
    a('s_barrier')
    if abl: a('s_branch L_fin')
    a(f's_cmp_eq_u32 s{sG}, 7\ns_cbranch_scc1 L_fin')
    WDN = 192
    if fdelay: a(f's_sleep {fdelay}')
    def dn(grp):
        a(f's_xor_b32 s{sT0}, s{sB}, {grp}\ns_lshl_b32 s{sT0}, s{sT0}, 14\ns_add_u32 s{sOFF}, s{sB3}, s{sT0}')
        for k in range(4):
            if k: a(f's_add_u32 s{sOFF}, s{sOFF}, 4096')
            a(f'buffer_load_dwordx4 {vr(WDN + 16*grp + 4*k, 4)}, v32, {sr(rC,4)}, s{sOFF} offen {wfl}')
    def l6():
        for j in range(2): a(f'buffer_load_dwordx4 {vr(64+4*j,4)}, v6, {sr(rWS,4)}, s{sB1} offen offset:{1024*j} sc1')
    poll(l6, [64, 68], 19, cnt=13, first=((lambda: dn(0), 4) if dn0 else None))
    if dbgF: stamp(7)
    a('ds_write_b128 v33, v[64:67]\nds_write_b128 v33, v[68:71] offset:1024')
    sig(F_RS)
    spin(16, F_YI, 4, sleep=1)
    if not dn0: dn(0)
    if dnstep:
        dn(1); spin(16, F_YI, 8); dn(2); spin(16, F_YI, 12); dn(3)
    else:
        dn(1); dn(2); dn(3)
    spin(16, F_CS, 4, sleep=1)
    sum4(64, 34, 1024)
    L2E = -math.log2(math.e)
    a(f'v_mul_f32 v64, {f32(L2E)}, v64\nv_mul_f32 v66, {f32(L2E)}, v66')
    spin(16, F_ST, 4, extra='ds_read_b128 v[68:71], v35\nds_read_b128 v[72:75], v35 offset:16')
    a('v_add_f32 v76, v68, v70\nv_add_f32 v77, v72, v74\nv_add_f32 v69, v69, v71\nv_add_f32 v76, v76, v77\nv_add_f32 v73, v73, v75\nv_mul_f32 v76, 0.25, v76'.replace('0.25', f32(0.25)))
    a('v_add_f32 v69, v69, v73\nv_sub_f32 v68, v68, v76\nv_sub_f32 v70, v70, v76\nv_sub_f32 v72, v72, v76\nv_sub_f32 v74, v74, v76')
    a(f'v_mul_f32 v68, v68, v68\nv_fmac_f32 v68, v70, v70\nv_fmac_f32 v68, v72, v72\nv_fmac_f32 v68, v74, v74\nv_max_f32 v69, 0, v69\nv_mov_b32 v71, {f32(1e-5)}')
    a(f'v_fmac_f32 v71, {f32(0.25)}, v68\nv_fmac_f32 v71, {f32(1.0/512)}, v69\nv_rsq_f32 v71, v71')
    a(f'v_mul_f32 v70, {f32(L2E)}, v71\nv_mul_f32 v76, v76, v71\nv_fma_f32 v66, -v76, v64, v66\nv_fma_f32 v67, -v76, v65, v67')
    a('s_barrier')
    stamp(9)
    for w in range(4): a(f'ds_read_b64 {vr(72 + 2*w, 2)}, v36 offset:{512*w}')
    a('s_waitcnt lgkmcnt(2)\nv_pk_add_f32 v[72:73], v[72:73], v[74:75]\ns_waitcnt lgkmcnt(0)\nv_pk_add_f32 v[76:77], v[76:77], v[78:79]\nv_pk_add_f32 v[72:73], v[72:73], v[76:77]')
    a('v_pk_fma_f32 v[72:73], v[72:73], v[70:71], v[66:67]')
    a('v_exp_f32 v72, v72\nv_add_f32 v72, 1.0, v72\nv_rcp_f32 v72, v72\nv_mul_f32 v72, v72, v73\nv_cvt_pk_bf16_f32 v72, v72, 0')
    a('ds_write2_b32 v37, v72, v72 offset0:0 offset1:33')
    for sg in range(8): a(f'ds_read_b128 {vr(96 + 4*sg, 4)}, v38 offset:{sg*SIG}')
    a('s_waitcnt vmcnt(0)')
    for sg in range(8):
        a(f's_waitcnt lgkmcnt({7-sg})')
        a(f'v_smfmac_f32_16x16x64_bf16 v[56:59], {vr(96+4*sg,4)}, {vr(WDN+8*sg,8)}, v39')
    a('s_mov_b32 exec_hi, 0')
    tagit(56)
    a(f'buffer_store_dwordx4 v[56:59], v40, {sr(rWS,4)}, s{sB2} offen sc1')
    stamp(10)
    a.lab('L_fin')
    stamp(11)
    if leak:
        W, w, ka, kb = leak
        a(f's_cmp_eq_u32 s2, {W}\ns_cbranch_scc0 L_end\ns_cmp_eq_u32 s3, {w}\ns_cbranch_scc0 L_end')
        a(f's_waitcnt lgkmcnt(0)\ns_sub_u32 s{sT0}, s{TS0+2*ka}, s{TS0+2*kb}\ns_min_u32 s{sT0}, s{sT0}, 5000\ns_mul_i32 s{sT0}, s{sT0}, 40')
        a.lab('L_leak')
        a(f's_memrealtime s[56:57]\ns_waitcnt lgkmcnt(0)\ns_sub_u32 s{sT1}, s56, s{TS0+22}\ns_cmp_lt_u32 s{sT1}, s{sT0}\ns_cbranch_scc1 L_leak')
    elif ts: dump_ts(16)
    a.lab('L_end')
    a('s_endpgm')
    a.lab('L_codeend')

    k = a.L.index('L_T_qk:'); k2 = a.L.index('L_T23_job:'); k1_ = a.L.index('L_TF_job:')
    for ch, lo, hi in (('s', 0, k), ('m', 0, k1_), ('q', k1_, k2), ('p', k2, k)):
        if ch in abl: a.L = [('s_nop 0' if (lo <= n < hi and l.startswith('buffer_store')) else l) for n, l in enumerate(a.L)]
    body, added = hazard_pass(a.L)
    out = [HEADER + f'; @launch grid=(256,1,1) block=(512,1,1) lds={L_END}',
           '.amdgcn_target "amdgcn-amd-amdhsa--gfx950"', '.text', f'.globl {NAME}_kernel', '.p2align 8', f'.type {NAME}_kernel,@function']
    out += [l if l.endswith(':') else '    ' + l for l in body]
    out += ['.section .rodata,"a"', '.p2align 6', f'.amdhsa_kernel {NAME}_kernel',
            '  .amdhsa_next_free_vgpr 256', '  .amdhsa_next_free_sgpr 102', '  .amdhsa_accum_offset 256',
            '  .amdhsa_group_segment_fixed_size 0', '  .amdhsa_kernarg_size 112', '  .amdhsa_user_sgpr_count 2',
            '  .amdhsa_user_sgpr_kernarg_segment_ptr 1', '  .amdhsa_system_sgpr_workgroup_id_x 1',
            '  .amdhsa_float_denorm_mode_32 3', '.end_amdhsa_kernel']
    return '\n'.join(out) + '\n'

if __name__ == '__main__':
    kw = {}
    for arg in sys.argv[2:]:
        k, v = arg.split('=')
        try: v = eval(v)
        except Exception: pass
        kw[k] = v
    open(sys.argv[1], 'w').write(gen(**kw))
```

```python
import sys, struct, math
from asmlib import Asm, hazard_pass, vr, sr
from gen_v1 import HEADER
NAME = 'adaLN_cond__sliding_block_cached__glu_gated_glu__decode'
def f32(x): return '0x%08x' % struct.unpack('<I', struct.pack('<f', x))[0]

WS_MOD = 0x10000
WS_RD  = 0x70000
WS_QP  = 0x80000
WS_OP  = 0x100000
OPS    = 1152
WS_YP  = 0x200000
WS_FP  = 0x280000
WS_FL  = 0x300000
WS_B   = 0x400000
WS_TS  = 0x8000000
SIG = 288; PASS = 8 * SIG; IMG = 2 * PASS
HS = 544; SR = 4 * HS
L_IMG = 65536
L_Q   = L_IMG + 4 * IMG
L_P   = L_Q + 1536
L_Z   = L_P + 2048
L_ORED = L_Z + 512
L_LS  = L_ORED + 4 * SR
L_MW  = L_LS + 64
L_DI  = L_MW + 64
L_RED = L_DI + 2048
L_ST  = L_RED + 2048
L_X1  = L_ST + 64
L_RS  = L_X1 + 2048
L_FL  = L_RS + 8192
F_Q, F_S, F_S2, F_P, F_M, F_H, F_E, F_G, F_GI, F_G2, F_I, F_L, F_RS, F_YI, F_CS, F_ST = [4*k for k in range(16)]
F_YR = 96
F_K, F_PR = 64, 80
L_END = L_FL + 128
TAGMASK = 0xFFF
BUDGET = 1 << 21

sG, sR, sB, sS = 4, 5, 6, 7
pX, pK, pV, pWQ, pWO, pWG, pWU, pWD, pC, pWM, pOUT, pWS = 8, 10, 12, 14, 16, 20, 22, 24, 26, 28, 30, 32
rWS, rA, rB, rC = 32, 36, 40, 44
sE, sMASK, sOFF, sB1, sB2, sCNT, sW, sSLOW, sB4, sMK, sLO, sHI, sT0, sT1, sT2, sT3 = range(48, 64)
sXC, sB3 = 18, 19
sBUD, sFB, sRB = 96, 97, 98
TS0 = 64
VT, VTA = 1, 15
SC = math.log2(math.e) / math.sqrt(128.0)
L2E = -math.log2(math.e)

def gen(NM=8, NM2=8, nswm=28, NQ=8, n1=4, n1w=0, n2=2, kr=12, k1=12, gr=16, g2m=24, g2q=27, NTT=8,
        kvfl='nt', hfl='nt', ts=False, fb=64, fsleep=20, leak=None, forceslow=0, NPRE=2, ne=4, dnall=True, dne=0, yrep=False, ypt=True, ysl=0, hint=0, ydel=3, hsl=1, hskip=False, a3now=True, hat='', p2at=0, n3=0):
    if leak: ts = True
    a = Asm()
    cold = Asm()
    uid = [0]
    def U(p): uid[0] += 1; return f'{p}_{uid[0]}'
    def stamp(k):
        if ts: a(f's_memrealtime {sr(TS0 + 2*k, 2)}')
    def srd(r, p, size):
        a(f's_mov_b64 {sr(r,2)}, {sr(p,2)}\ns_mov_b32 s{r+2}, {size}\ns_mov_b32 s{r+3}, 0x20000')
    def sig(off, n=1, va=13): a(f's_mov_b64 exec, {(1<<n)-1}\nds_add_u32 v{va}, v14 offset:{off}\ns_mov_b64 exec, -1')
    def budget(): a(f's_sub_u32 s{sBUD}, s{sBUD}, 1\ns_cbranch_scc1 L_end')
    def spin(vt, off, n, sleep=0, extra=None, va=13):
        l = U('L_spin')
        if sleep:
            l2 = U('L_spin')
            cold.lab(l2); cold(f's_sleep {sleep}\ns_branch {l}')
        a.lab(l)
        a(f'ds_read_b32 v{vt}, v{va} offset:{off}')
        if extra: a(extra)
        budget()
        a(f's_waitcnt lgkmcnt(0)\nv_cmp_gt_u32 vcc, {n}, v{vt}\ns_cbranch_vccnz {l2 if sleep else l}')
    def orall(fs, vacc):
        fs = list(fs)
        if len(fs) % 2: a(f'v_or3_b32 v{vacc}, v{fs[0]}, v{fs[1]}, v{fs[2]}'); fs = fs[3:]
        else: a(f'v_or_b32 v{vacc}, v{fs[0]}, v{fs[1]}'); fs = fs[2:]
        while fs: a(f'v_or3_b32 v{vacc}, v{vacc}, v{fs[0]}, v{fs[1]}'); fs = fs[2:]
        a(f'v_and_b32 v{vacc}, s{sMASK}, v{vacc}\nv_cmp_ne_u32 vcc, 0, v{vacc}')
    def poll(loads, firsts, vacc, vt=VT, check=None, cnt=None, after_issue=None, first=None, noload=False, retry=None):
        nonlocal a
        c, l = U('L_chk'), U('L_poll')
        if ts and cnt is not None: a(f's_mov_b32 s{TS0+2*cnt}, 1')
        if not noload: loads()
        if first: first[0]()
        elif after_issue: after_issue()
        a(f's_waitcnt vmcnt({first[1] if first else 0})')
        a.lab(c)
        if check: check()
        else:
            for f in firsts: a(f'v_xor_b32 v{f}, v{f}, v{vt}')
            orall(firsts, vacc)
        a(f's_cbranch_vccnz {l}')
        hot, a = a, Asm()
        a.lab(l)
        if retry: retry()
        loads()
        if after_issue: after_issue()
        if ts and cnt is not None: a(f's_add_u32 s{TS0+2*cnt}, s{TS0+2*cnt}, 1')
        budget()
        a(f's_waitcnt vmcnt(0)\ns_branch {c}')
        cold.L += a.L
        a = hot
    def tagit(v, vt=VT): a(f'v_bfi_b32 v{v}, s{sMASK}, v{vt}, v{v}')
    def mktag():
        a(f's_getreg_b32 s{sXC}, hwreg(HW_REG_XCC_ID, 0, 3)')
        if forceslow: a(f's_cmp_eq_u32 s{sR}, {forceslow}\ns_cselect_b32 s{sXC}, 1, 0')
        a(f's_lshl_b32 s{sXC}, s{sXC}, 9\nv_and_b32 v{VT}, 3, v0\nv_mul_u32_u24 v{VT}, 0x2d5, v{VT}\ns_waitcnt lgkmcnt(0)\ns_add_u32 s{sE}, s{sE}, 1\nv_add_u32 v{VT}, s{sE}, v{VT}')
        a(f'v_add_u32 v{VTA}, s{sXC}, v{VT}\nv_and_b32 v{VT}, s{sMASK}, v{VT}\nv_and_b32 v{VTA}, s{sMASK}, v{VTA}')
    def red4(Rs, dsts):
        for R in Rs: a(f'v_permlane32_swap_b32 v{R}, v{R+2}\nv_permlane32_swap_b32 v{R+1}, v{R+3}')
        for R in Rs: a(f'v_pk_add_f32 {vr(R,2)}, {vr(R,2)}, {vr(R+2,2)}')
        for R in Rs: a(f'v_permlane16_swap_b32 v{R}, v{R+1}')
        for R, d_ in zip(Rs, dsts): a(f'v_add_f32 v{d_}, v{R}, v{R+1}')
    def add4(D, X): a(f'v_pk_add_f32 {vr(D,2)}, {vr(D,2)}, {vr(X,2)}\nv_pk_add_f32 {vr(D+2,2)}, {vr(D+2,2)}, {vr(X+2,2)}')
    def tree(R, n):
        st = 4
        while n > 1:
            for k in range(0, n, 2): add4(R + st*k, R + st*(k+1))
            st *= 2; n //= 2
    def sum4(R, vaddr, stride):
        for w in range(4): a(f'ds_read_b128 {vr(R + 4*w, 4)}, v{vaddr} offset:{stride*w}')
        for w in range(1, 4):
            a(f's_waitcnt lgkmcnt({3-w})'); add4(R, R + 4*w)
    def hilo(dsts, srcs, tmps):
        for t, x in zip(tmps, srcs): a(f'v_and_b32 v{t}, 0xffff0000, v{x}')
        for t, x in zip(tmps, srcs): a(f'v_sub_f32 v{t}, v{x}, v{t}')
        for d_, t, x in zip(dsts, tmps, srcs): a(f'v_perm_b32 v{d_}, v{x}, v{t}, s{sHI}')
    def parity(dst, D):
        a(f'v_add_f32_dpp v{dst}, v{D+1}, v{D} row_ror:8 row_mask:0xf bank_mask:0x3')
        a(f'v_add_f32_dpp v{dst}, v{D+2}, v{D+3} row_ror:8 row_mask:0xf bank_mask:0xc')
    def smf(D, A_, B_, vi): a(f'v_smfmac_f32_16x16x64_bf16 {vr(D,4)}, {vr(A_,4)}, {vr(B_,8)}, v{vi}')
    def sadd(dst, *terms):
        first = True
        for t in terms:
            if isinstance(t, tuple):
                r, sh = t
                if first: a(f's_lshl_b32 s{dst}, s{r}, {sh}')
                elif 1 <= sh <= 4: a(f's_lshl{sh}_add_u32 s{dst}, s{r}, s{dst}')
                elif sh == 0: a(f's_add_u32 s{dst}, s{dst}, s{r}')
                else: a(f's_lshl_b32 s{sT0}, s{r}, {sh}\ns_add_u32 s{dst}, s{dst}, s{sT0}')
            else: a(f's_add_u32 s{dst}, s{dst}, {t}')
            first = False
    def vadd(dst, *terms):
        first = True
        for t in terms:
            if isinstance(t, tuple):
                r, sh = t
                if first: a(f'v_lshlrev_b32 v{dst}, {sh}, v{r}')
                else: a(f'v_lshl_add_u32 v{dst}, v{r}, {sh}, v{dst}')
            else: a(f'v_add_u32 v{dst}, {t}, v{dst}')
            first = False
    def oprec(dst):
        sadd(dst, (sG, 5), (sB, 3), (sS, 0))
        a(f's_mul_i32 s{dst}, s{dst}, {OPS}\ns_add_u32 s{dst}, s{dst}, {WS_OP}')
    def qprec(dst): sadd(dst, (sG, 15), (sR, 9), WS_QP - 16*512)
    def yprec(dst):
        a(f's_and_b32 s{sT1}, s{sR}, 1\ns_bfe_u32 s{sT2}, s{sR}, 0x30001')
        sadd(dst, (sT1, 15), (sT2, 11), (sG, 8), WS_YP)
    def imgbase(): a(f's_mul_i32 s{sT3}, s{sW}, {IMG}\ns_add_u32 s{sT3}, s{sT3}, {L_IMG}')
    def pubdup(V, n, vaddr, sbase, tag=True):
        l, b = U('L_dup'), U('L_dupb')
        a(f's_cmp_lg_u32 s{sSLOW}, 0\ns_cbranch_scc1 {l}')
        a.lab(b)
        cold.lab(l)
        cold(f's_add_u32 s{sOFF}, s{sbase}, {WS_B}\ns_nop 1')
        if tag: cold(f'v_bfi_b32 v{V}, s{sMASK}, v{VT}, v{V}')
        cold(f'buffer_store_dwordx{n} {vr(V,n)}, v{vaddr}, {sr(rWS,4)}, s{sOFF} offen sc1\ns_nop 1\ns_branch {b}')
    def zero_ts():
        if ts:
            for k in range(2, 16): a(f's_mov_b32 s{TS0+2*k}, 0')
    def common():
        a(f's_load_dword s{sE}, s[32:33], 0\ns_mov_b32 s34, 0x10000000\ns_mov_b32 s35, 0x20000\ns_movk_i32 s{sMASK}, {TAGMASK}\ns_mov_b32 s{sBUD}, {BUDGET}')
        a(f'v_mov_b32 v13, {L_FL}\nv_mov_b32 v14, 1\nv_lshlrev_b32 v6, 4, v0\ns_mov_b32 s{sHI}, 0x07060302')

    W0, AR, AC, VI = 64, 32, 24, 63
    a.lab(f'{NAME}_kernel')
    a('s_load_dwordx16 s[8:23], s[0:1], 0\ns_load_dwordx8 s[24:31], s[0:1], 64\ns_load_dwordx2 s[32:33], s[0:1], 104')
    stamp(0)
    a('s_cmpk_ge_u32 s2, 256\ns_cbranch_scc1 L_end')
    a(f'v_lshrrev_b32 v1, 6, v0\ns_and_b32 s{sG}, s2, 7\nv_readfirstlane_b32 s3, v1\ns_lshr_b32 s{sR}, s2, 3\ns_and_b32 s{sB}, s{sR}, 3\ns_lshr_b32 s{sS}, s{sR}, 2')
    a('v_bfe_u32 v7, v0, 4, 2\nv_and_b32 v8, 15, v0\nv_and_b32 v9, 7, v0\nv_bfe_u32 v10, v0, 3, 1')
    a(f's_and_b32 s{sW}, s3, 3\ns_cmp_gt_u32 s3, 1\ns_cbranch_scc1 L_other')
    sSTEP = sLO
    a(f's_and_b32 s{sRB}, s{sG}, 6\ns_add_u32 s{sRB}, s{sRB}, s{sW}\ns_and_b32 s{sFB}, s{sG}, 1\ns_lshl1_add_u32 s{sFB}, s{sR}, s{sFB}\ns_sub_u32 s{sFB}, s{sFB}, 8')
    a(f's_cmp_lt_u32 s{sR}, 8\ns_cselect_b32 s{sRB}, s{sG}, s{sRB}\ns_cselect_b32 s{sFB}, s{sR}, s{sFB}\ns_cselect_b32 s{sT3}, s{sW}, 0')
    a(f's_lshl1_add_u32 s{sT0}, s{sB}, s{sW}\ns_lshl2_add_u32 s{sT1}, s{sG}, s{sS}\ns_sub_u32 s{sT1}, s{sT1}, 4\ns_movk_i32 s{sSTEP}, 6144')
    a(f's_cmp_ge_u32 s{sR}, 16\ns_cselect_b32 s{sRB}, s{sT0}, s{sRB}\ns_cselect_b32 s{sFB}, s{sT1}, s{sFB}\ns_cselect_b32 s{sSTEP}, 0x2000, s{sSTEP}')
    a(f's_mul_i32 s{rA+2}, s{sSTEP}, 512\ns_mul_i32 s{sB1}, s{sRB}, s{sSTEP}\ns_mul_i32 s{sB2}, s{sRB}, 128')
    a(f'v_mul_u32_u24 v2, s{sSTEP}, v7\nv_lshl_add_u32 v2, v8, 4, v2')
    vadd(3, (7, 10), (9, 4), (10, 3))
    a(f's_mov_b32 s{rA+3}, 0x20000\ns_movk_i32 s{rB+2}, 4096\ns_mov_b32 s{rB+3}, s{rA+3}')
    a('s_waitcnt lgkmcnt(0)')
    a(f's_cselect_b64 {sr(rA,2)}, {sr(pWQ,2)}, {sr(pWM,2)}\ns_cselect_b64 {sr(rB,2)}, {sr(pX,2)}, {sr(pC,2)}')
    a(f's_lshl2_add_u32 s{sB1}, s{sFB}, s{sB1}\ns_lshl_b32 s{sB1}, s{sB1}, 6\ns_lshl_b32 s{sSTEP}, s{sSTEP}, 2')
    a(f's_cmp_eq_u32 s{sT3}, 1\ns_cbranch_scc1 L_T_setup')
    stamp(1)
    a(f'buffer_load_dwordx2 v[4:5], v3, {sr(rB,4)}, s{sB2} offen')
    for i in range(16):
        a(f'buffer_load_dwordx4 {vr(W0+4*i,4)}, v2, {sr(rA,4)}, s{sB1} offen {hfl}')
        if i < 15: a(f's_add_u32 s{sB1}, s{sB1}, s{sSTEP}')
    a(f's_cmp_lt_u32 s{sR}, 16\ns_cbranch_scc1 L_T_setup')
    vadd(11, (7, 10), (8, 4))
    for j in range(4): a(f'buffer_load_dwordx4 {vr(AR+4*j,4)}, v11, {sr(rB,4)}, 0 offen offset:{256*j}')
    a('s_branch L_T_setup')
    a.lab('L_other')
    a('s_cmp_lt_u32 s3, 4\ns_cbranch_scc1 L_T23_issue')
    a(f's_cmp_lt_u32 s2, 8\ns_cbranch_scc0 L_A\ns_getpc_b64 {sr(sB4,2)}')
    a.lab('L_pc')
    a(f'v_and_b32 v2, 0xff, v0\nv_lshlrev_b32 v2, 7, v2\nv_cmp_gt_u32 vcc, L_codeend-L_pc, v2\ns_and_saveexec_b64 {sr(sT0,2)}, vcc\ns_cbranch_execz L_pfx')
    a(f'global_load_dword v63, v2, {sr(sB4,2)}')
    a.lab('L_pfx')
    a('s_mov_b64 exec, -1\ns_branch L_A')
    a.lab('L_T23_issue')
    a(f'v_and_b32 v4, 31, v0\nv_lshlrev_b32 v4, 2, v4\nv_add_u32 v4, {L_FL}, v4\nv_mov_b32 v3, 0\nds_write_b32 v4, v3\ns_waitcnt lgkmcnt(0)')
    a.lab('L_T_setup')
    a('v_and_b32 v0, 63, v0')
    common()
    zero_ts()
    imgbase()
    a(f'v_mov_b32 v16, 0\nv_mov_b32 v17, 0\nv_mov_b32 v18, 0\nv_mov_b32 v19, 0\nv_add_u32 v20, s{sT3}, v6')
    for k in range(4): a(f'ds_write_b128 v20, v[16:19] offset:{1024*k}')
    a(f's_mov_b32 exec_hi, 0\nds_write_b128 v20, v[16:19] offset:4096\nv_add_u32 v20, {L_Z}, v6\nds_write_b128 v20, v[16:19]\ns_mov_b32 exec_hi, -1')
    a(f's_cmp_eq_u32 s{sW}, 1\ns_cbranch_scc0 L_T_gate\ns_waitcnt vmcnt({max(kr, k1 + 4)})')
    if kr != k1 + 4:
        a(f's_cmp_lt_u32 s{sR}, 16\ns_cbranch_scc{1 if kr > k1 + 4 else 0} L_T_gate\ns_waitcnt vmcnt({min(kr, k1 + 4)})')
    a.lab('L_T_gate')
    a('s_barrier')
    mktag()
    KF, QF, DD = 128, 192, 208
    def qk_setup():
        a(f's_lshl_b32 s{sT1}, s{sW}, 14\nv_and_b32 v17, 3, v0\nv_lshrrev_b32 v18, 2, v8\nv_lshl_add_u32 v19, v17, 2, v18\nv_xor_b32 v16, v7, v8')
        vadd(48, (16, 4), (19, 8), f's{sT1}')
        a('v_xor_b32 v49, 64, v48\nv_xor_b32 v50, 0x80, v48\nv_xor_b32 v51, 0xc0, v48')
        a(f'v_mul_u32_u24 v52, 320, v17\nv_lshl_add_u32 v52, v7, 4, v52\nv_add_u32 v52, {L_Q}, v52')
        a(f's_lshl_b32 s{sT1}, s{sW}, 2\nv_add_u32 v53, s{sT1}, v13\ns_add_u32 s{sT1}, s{sT1}, {L_MW}\nv_add_u32 v62, s{sT1}, v6')
        sadd(sT1, (sW, 9), L_P)
        a('v_and_b32 v18, 1, v18')
        vadd(54, (18, 3), (17, 4), (7, 6), (10, 8), f's{sT1}')
        a(f's_mul_i32 s{sT1}, s{sW}, {HS}\ns_add_u32 s{sT1}, s{sT1}, {L_ORED}\nv_add_u32 v55, s{sT1}, v6')
        oprec(sB3)
    def kread():
        spin(16, F_K, 1, va=53)
        for t in range(4):
            for j in range(4): a(f'ds_read_b128 {vr(KF + 16*t + 4*j, 4)}, v{48+j} offset:{4096*t}')
    a(f's_cmp_gt_u32 s{sW}, 1\ns_cbranch_scc1 L_T23_job')
    sig(F_E)
    a(f's_cmp_lt_u32 s{sR}, 8\ns_cselect_b32 s{sT0}, s{sW}, 0\ns_cmp_eq_u32 s{sT0}, 1\ns_cbranch_scc1 L_T1_red')
    a('v_bfe_u32 v16, v0, 2, 1')
    vadd(12, (16, 7), (7, 5), (10, 4), f's{sT3}')
    a(f'v_and_b32 v{VI}, 3, v0\nv_mul_u32_u24 v{VI}, 0x5555, v{VI}')
    a(f'v_lshrrev_b32 v18, 5, v0\nv_mul_u32_u24 v16, {PASS}, v18\nv_mul_u32_u24 v17, {SIG}, v9\nv_add3_u32 v11, v16, v17, s{sT3}')
    a('v_and_b32 v17, 1, v7\nv_lshl_add_u32 v11, v17, 4, v11\nv_lshl_add_u32 v11, v10, 6, v11')
    for i in range(8): a(f'v_mov_b32 v{AC+i}, 0')
    vadd(2, (17, 7), (9, 4))
    a(f's_lshl_b32 s{sT0}, s{sW}, 10\ns_add_u32 s{sT1}, s{sT0}, {L_RED}\nv_add_u32 v56, s{sT1}, v6\ns_sub_u32 s{sT1}, {L_RED + 1024}, s{sT0}\nv_add_u32 v57, s{sT1}, v6')
    a(f's_cmp_ge_u32 s{sR}, 16\ns_cbranch_scc1 L_TQ_job')
    a('v_lshl_add_u32 v2, v18, 11, v2\nv_lshl_add_u32 v2, v10, 13, v2')
    a(f's_lshr_b32 s{sT1}, s{sG}, 1\ns_cmp_lt_u32 s{sR}, 8\ns_cselect_b32 s{sT1}, s{sG}, s{sT1}')
    sadd(sB1, (sFB, 14), (sT1, 8), (sW, 12), WS_MOD)
    a(f's_add_u32 s{sB2}, s{sB1}, 4096\ns_mov_b32 s{sT0}, {f32(L2E)}')
    a('s_waitcnt vmcnt(16)')
    a('v_lshlrev_b32 v16, 16, v4\nv_and_b32 v17, 0xffff0000, v4\nv_lshlrev_b32 v18, 16, v5\nv_and_b32 v19, 0xffff0000, v5')
    for r in range(4): a(f'v_mul_f32 v{20+r}, s{sT0}, v{16+r}')
    for r in range(4): a(f'v_exp_f32 v{20+r}, v{20+r}')
    for r in range(4): a(f'v_add_f32 v{20+r}, 1.0, v{20+r}')
    for r in range(4): a(f'v_rcp_f32 v{20+r}, v{20+r}')
    for r in range(4): a(f'v_mul_f32 v{16+r}, v{16+r}, v{20+r}')
    hilo(range(16, 20), range(16, 20), range(20, 24))
    def imgw4():
        a('ds_write2_b32 v11, v16, v17 offset0:0 offset1:2\nds_write2_b32 v11, v18, v19 offset0:8 offset1:10')
        a('ds_write2_b32 v11, v16, v17 offset0:33 offset1:35\nds_write2_b32 v11, v18, v19 offset0:41 offset1:43')
    a(f's_cmp_ge_u32 s{sR}, 8\ns_cbranch_scc1 L_T_pair')
    imgw4()
    for sg in range(8):
        for p in range(2): a(f'ds_read_b128 {vr(128 + 32*p + 4*sg, 4)}, v12 offset:{p*PASS + sg*SIG}')
    for sg in range(8):
        a(f's_waitcnt vmcnt({14 - 2*sg}) lgkmcnt({14 - 2*sg})')
        for p in range(2): smf(AC + 4*p, 128 + 32*p + 4*sg, W0 + 8*sg, VI)
    tagit(AC); tagit(AC+4)
    a(f'buffer_store_dwordx4 {vr(AC,4)}, v2, {sr(rWS,4)}, s{sB1} offen sc1\nbuffer_store_dwordx4 {vr(AC+4,4)}, v2, {sr(rWS,4)}, s{sB2} offen sc1')
    sig(F_H)
    stamp(2)
    a('s_branch L_T_k')
    a.lab('L_T1_red')
    sadd(sT1, (sS, 3), (sG, 0))
    sadd(sB1, (sT1, 14), (sB, 11), WS_MOD + 8*16384)
    a(f's_add_u32 s{sB2}, s{sB1}, 8192')
    sadd(sB4, (sB, 13), (sT1, 9), WS_RD)
    vadd(3, (8, 4), (7, 2), L_RED)
    a(f'v_add_u32 v4, {L_RED}, v6')
    spin(16, F_G, 2, sleep=1)
    def lr():
        for sg in range(2): a(f'buffer_load_dwordx4 {vr(W0 + 4*sg, 4)}, v6, {sr(rWS,4)}, s{sB2 if sg else sB1} offen sc1')
    poll(lr, [W0, W0 + 4], 16, cnt=12)
    red4([W0, W0 + 4], [16, 17])
    a('ds_write2_b32 v3, v16, v17 offset0:0 offset1:64\ns_mov_b32 exec_hi, 0\nds_read_b128 v[20:23], v4\ns_waitcnt lgkmcnt(0)')
    tagit(20)
    a(f'buffer_store_dwordx4 v[20:23], v6, {sr(rWS,4)}, s{sB4} offen sc1\ns_mov_b32 exec_hi, -1')
    stamp(2)
    a.lab('L_T_k')
    qk_setup()
    a.lab('L_T_k2')
    kread()
    a('s_branch L_T_qk')
    a.lab('L_TQ_job')
    a('v_lshl_add_u32 v2, v18, 13, v2\nv_lshl_add_u32 v2, v10, 8, v2')
    qprec(sB1)
    a(f's_lshl_b32 s{sT0}, s{sW}, 14\ns_add_u32 s{sB1}, s{sB1}, s{sT0}')
    a('s_waitcnt vmcnt(0)')
    X = 128
    for i in range(16):
        a(f'v_lshlrev_b32 v{X+2*i}, 16, v{AR+i}\nv_and_b32 v{X+2*i+1}, 0xffff0000, v{AR+i}')
    a(f'v_pk_add_f32 v[16:17], {vr(X,2)}, {vr(X+2,2)}')
    for i in range(2, 16): a(f'v_pk_add_f32 v[16:17], v[16:17], {vr(X+2*i,2)}')
    a('v_add_f32 v16, v16, v17')
    def rowsum(v):
        for k in (1, 2, 4, 8): a(f'v_add_f32_dpp v{v}, v{v}, v{v} row_ror:{k} row_mask:0xf bank_mask:0xf')
    rowsum(16)
    a(f'v_mul_f32 v16, {f32(-1.0/512)}, v16\nv_mov_b32 v17, v16\nv_mov_b32 v18, 0\nv_mov_b32 v19, 0')
    for i in range(16):
        a(f'v_pk_add_f32 {vr(X+2*i,2)}, {vr(X+2*i,2)}, v[16:17]\nv_pk_fma_f32 v[18:19], {vr(X+2*i,2)}, {vr(X+2*i,2)}, v[18:19]')
    a('v_add_f32 v18, v18, v19')
    rowsum(18)
    a(f'v_mov_b32 v19, {f32(1e-5)}\nv_fmac_f32 v19, {f32(1.0/512)}, v18\nv_rsq_f32 v19, v19')
    a('v_lshlrev_b32 v20, 16, v4\nv_and_b32 v21, 0xffff0000, v4\nv_lshlrev_b32 v22, 16, v5\nv_and_b32 v23, 0xffff0000, v5')
    for r in range(4): a(f'v_add_f32 v{20+r}, v{20+r}, v16')
    for r in range(4): a(f'v_mul_f32 v{20+r}, v{20+r}, v19')
    vadd(3, (7, 11), (8, 4))
    sadd(sT1, (sRB, 13), WS_MOD)
    a(f's_add_u32 s{sT2}, s{sT1}, 65536')
    spin(16, F_G, 4)
    stamp(2)
    def l1():
        for sg in range(2):
            for kp in range(8): a(f'buffer_load_dwordx4 {vr(X + 32*sg + 4*kp, 4)}, v3, {sr(rWS,4)}, s{sT2 if sg else sT1} offen offset:{256*kp} sc1')
    def l1f():
        sig(F_GI)
        spin(16, F_E, 8)
    poll(l1, [X + 4*k for k in range(16)], 16, cnt=12, first=(l1f, 0))
    stamp(3)
    tree(X, 8); tree(X + 32, 8)
    add4(X, 20)
    a(f'v_pk_fma_f32 {vr(X,2)}, {vr(X+32,2)}, v[20:21], {vr(X,2)}\nv_pk_fma_f32 {vr(X+2,2)}, {vr(X+34,2)}, v[22:23], {vr(X+2,2)}')
    hilo(range(16, 20), range(X, X+4), range(16, 20))
    a.lab('L_T_pair')
    imgw4()
    a(f's_xor_b32 s{sT0}, s{sW}, 1\ns_mul_i32 s{sT0}, s{sT0}, {PASS}\nv_add_u32 v3, s{sT0}, v12\ns_mul_i32 s{sT0}, s{sW}, {PASS}\nv_add_u32 v4, s{sT0}, v12')
    for p in range(2):
        for sg in range(8): a(f'ds_read_b128 {vr(128 + 32*p + 4*sg, 4)}, v{3+p} offset:{sg*SIG}')
    a('s_waitcnt vmcnt(0)')
    for p in range(2):
        for sg in range(8):
            if p == 0 or sg <= 3: a(f's_waitcnt lgkmcnt({(15 - sg) if p == 0 else (7 - sg if sg < 3 else 0)})')
            smf(AC + 4*p, 128 + 32*p + 4*sg, W0 + 8*sg, VI)
            if p == 1 and sg == 3:
                a(f'ds_write_b128 v57, {vr(AC,4)}')
                sig(F_I)
    spin(16, F_I, 2, extra='ds_read_b128 v[20:23], v56')
    add4(AC + 4, 20)
    a(f's_cmp_lt_u32 s{sR}, 16\ns_cbranch_scc1 L_T_late')
    cold.lab('L_T_late')
    cold(f'v_bfi_b32 v{AC+4}, s{sMASK}, v{VT}, v{AC+4}\nbuffer_store_dwordx4 {vr(AC+4,4)}, v2, {sr(rWS,4)}, s{sB1} offen sc1')
    if ts: cold(f's_memrealtime {sr(TS0 + 4, 2)}')
    cold('s_branch L_T_k')
    tagit(AC+4, VTA)
    a(f'buffer_store_dwordx4 {vr(AC+4,4)}, v2, {sr(rWS,4)}, s{sB1} offen')
    sig(F_P)
    stamp(4)
    qk_setup()
    kread()
    a.lab('L_qs')
    a(f'ds_read_b64 v[16:17], v13 offset:{F_Q}')
    budget()
    a(f's_waitcnt lgkmcnt(0)\nv_or_b32 v18, v16, v17\nv_readfirstlane_b32 s{sSLOW}, v17\nv_cmp_eq_u32 vcc, 0, v18\ns_cbranch_vccnz L_qs')
    a(f's_cmp_eq_u32 s{sSLOW}, 0\ns_cbranch_scc1 L_T_qk2')
    pubdup(AC+4, 4, 2, sB1)
    a('s_branch L_T_qk')
    a.lab('L_T23_job')
    qk_setup()
    a(f's_cmp_eq_u32 s{sW}, 2\ns_cbranch_scc1 L_T2_pre')
    sig(F_E)
    a(f's_cmp_lt_u32 s{sR}, 16\ns_cbranch_scc1 L_T_k2')
    qprec(sB1)
    vadd(2, (17, 7), (7, 13))
    a(f'buffer_load_dword v58, v2, {sr(rWS,4)}, s{sB1} offen')
    yprec(sB1)
    a('v_lshrrev_b32 v3, 5, v0')
    if yrep: vadd(2, (3, 14), (10, 7), (9, 16))
    else: vadd(2, (3, 14), (10, 7))
    if ypt: a(f'buffer_load_dword v58, v2, {sr(rWS,4)}, s{sB1} offen')
    a('s_branch L_T_k2')
    a.lab('L_T2_pre')
    a('v_min_u32 v2, 8, v0\nv_lshlrev_b32 v2, 7, v2')
    for i in range(8): a(f'v_mov_b32 v{32+i}, 0')
    a(f's_cmp_ge_u32 s{sR}, 16\ns_cbranch_scc1 L_T2_q')
    spin(16, F_E, 7, sleep=1)
    sadd(sT1, (sG, 2), (sS, 0))
    sadd(sB1, (sT1, 7), (sB, 16), WS_FP)
    a(f'v_lshrrev_b32 v3, 2, v0\nv_lshlrev_b32 v3, 12, v3\nbuffer_load_dword v58, v3, {sr(rWS,4)}, s{sB1} offen')
    a.lab('L_T2_q')
    a(f'buffer_load_dword v58, v2, {sr(rWS,4)}, s{sB3} offen\nbuffer_store_dwordx4 v[32:35], v6, {sr(rWS,4)}, s{sB3} offen')
    sadd(sB1, (sG, 15), (sB, 13), WS_QP)
    a('v_lshrrev_b32 v3, 5, v0\nv_and_b32 v4, 31, v0')
    vadd(2, (4, 4), (3, 11))
    a('v_add_u32 v59, 4096, v2')
    a(f'v_bfe_u32 v56, v0, 2, 2\nv_lshl_add_u32 v56, v7, 3, v56\nv_mul_u32_u24 v56, {OPS}, v56\nv_lshl_add_u32 v56, v17, 4, v56')
    a(f's_mul_i32 s{sB4}, s{sG}, {32*OPS}\ns_add_u32 s{sB4}, s{sB4}, {WS_OP}')
    a(f'v_and_b32 v4, 1, v7\nv_mul_u32_u24 v11, 320, v3\nv_lshl_add_u32 v11, v4, 7, v11\nv_lshl_add_u32 v11, v9, 4, v11\nv_lshl_add_u32 v11, v10, 3, v11\nv_add_u32 v11, {L_Q}, v11')
    a(f'v_mov_b32 v4, v{VTA}\nv_xor_b32 v5, v{VT}, v{VTA}\nv_mov_b32 v36, v{VTA}\ns_mov_b32 s{sCNT}, 0\ns_waitcnt vmcnt(0)')
    a(f's_mov_b64 exec, 0xf0\nbuffer_store_dwordx4 v[36:39], v6, {sr(rWS,4)}, s{sB3} offen offset:1024')
    sig(F_E)
    spin(3, F_G2, 2, sleep=1)
    stamp(2)
    def l3():
        a(f'buffer_load_dword v57, v56, {sr(rWS,4)}, s{sB4} offen offset:{1024+64} sc1')
        for hp in range(2):
            for e in range(4): a(f'buffer_load_dwordx4 {vr(W0 + 16*hp + 4*e, 4)}, v{59 if hp else 2}, {sr(rWS,4)}, s{sB1} offen offset:{512*e} sc1')
    def r3():
        a(f's_add_u32 s{sCNT}, s{sCNT}, 1\ns_cmp_lt_u32 s{sCNT}, {fb}\ns_cbranch_scc1 L_r3x\ns_cmp_gt_u32 s{sCNT}, {fb}\ns_cbranch_scc1 L_r3t')
        a(f's_add_u32 s{sOFF}, s{sB3}, {WS_B}\nv_mov_b32 v36, v{VT}\nbuffer_store_dwordx4 v[32:35], v6, {sr(rWS,4)}, s{sOFF} offen sc1\ns_waitcnt vmcnt(0)')
        a(f's_mov_b64 exec, 0xf0\nbuffer_store_dwordx4 v[36:39], v6, {sr(rWS,4)}, s{sOFF} offen offset:1024 sc1')
        sig(F_S)
        a.lab('L_r3t')
        a(f's_xor_b32 s{sB1}, s{sB1}, {WS_B}\ns_xor_b32 s{sB4}, s{sB4}, {WS_B}\nv_xor_b32 v4, v4, v5')
        a.lab('L_r3x')
    poll(l3, [57] + [W0 + 4*k for k in range(8)], 3, vt=4, cnt=12, retry=r3)
    stamp(3)
    tree(W0, 4); tree(W0 + 16, 4)
    for hp in range(2):
        R = W0 + 16*hp
        a(f'v_cvt_pk_bf16_f32 v{R}, v{R}, v{R+1}\nv_cvt_pk_bf16_f32 v{R+1}, v{R+2}, v{R+3}\nds_write_b64 v11, {vr(R,2)} offset:{640*hp}')
    a(f's_and_b32 s{sT0}, s{sB1}, {WS_B}\nv_mov_b32 v3, s{sT0}\nds_write_b32 v13, v3 offset:{F_S2}')
    sig(F_Q)
    stamp(4)
    kread()
    a.lab('L_T_qk')
    spin(16, F_Q, 1, extra=f'ds_read_b32 v17, v13 offset:{F_S}')
    a.lab('L_T_qk2')
    stamp(5)
    for j in range(4): a(f'ds_read_b128 {vr(QF + 4*j, 4)}, v52 offset:{64*j}')
    a(f'v_readfirstlane_b32 s{sSLOW}, v17\ns_mov_b32 s{sT2}, {f32(SC)}')
    for j in range(4):
        a(f's_waitcnt lgkmcnt({3-j})')
        for t in (range(4) if j < 3 else (1, 0, 2, 3)):
            c = '0' if j == 0 else vr(DD + 4*t, 4)
            a(f'v_mfma_f32_16x16x32_bf16 {vr(DD + 4*t, 4)}, {vr(KF + 16*t + 4*j, 4)}, {vr(QF + 4*j, 4)}, {c}')
    for t in range(1, 4):
        for r in range(4):
            a(f'v_mov_b32_dpp v{DD+r}, v{DD+4*t+r} quad_perm:[0,1,2,3] row_mask:0xf bank_mask:{1<<t:#x}')
    a(f'v_max3_f32 v16, v{DD}, v{DD+1}, v{DD+2}\nv_max_f32 v16, v16, v{DD+3}')
    a('v_max_f32_dpp v16, v16, v16 row_ror:4 row_mask:0xf bank_mask:0xf')
    a('v_max_f32_dpp v16, v16, v16 row_ror:8 row_mask:0xf bank_mask:0xf')
    a('v_mov_b32 v17, v16\nv_permlane16_swap_b32 v16, v17\nv_max_f32 v16, v16, v17\nv_mov_b32 v17, v16\nv_permlane32_swap_b32 v16, v17\nv_max_f32 v16, v16, v17')
    a(f'v_mul_f32 v17, s{sT2}, v16')
    for r in range(4): a(f'v_fma_f32 v{DD+r}, v{DD+r}, s{sT2}, -v17')
    for r in range(4): a(f'v_exp_f32 v{DD+r}, v{DD+r}')
    a(f'v_cvt_pk_bf16_f32 v18, v{DD}, v{DD+1}\nv_cvt_pk_bf16_f32 v19, v{DD+2}, v{DD+3}\nds_write_b64 v54, v[18:19]')
    a(f's_mov_b64 exec, 1\nds_add_u32 v53, v14 offset:{F_PR}\ns_mov_b64 exec, 15\nds_write_b32 v62, v17')
    sig(F_M)
    stamp(6)
    CSA = 192
    def WG_(sg): return 64 + 16*sg
    def WU_(sg): return 72 + 16*sg
    srd(rA, pWG, 512*3584); srd(rB, pWU, 512*3584); srd(rC, pX, 4096)
    sadd(sT1, (sG, 2), (sS, 0))
    a(f's_mul_i32 s{sFB}, s{sW}, {128*3584}\ns_lshl_b32 s{sT0}, s{sT1}, 7\ns_add_u32 s{sFB}, s{sFB}, s{sT0}')
    a('v_lshrrev_b32 v12, 3, v0\nv_mul_u32_u24 v12, 3584, v12\nv_lshl_add_u32 v12, v9, 4, v12')
    a(f'v_lshl_add_u32 v4, v9, 3, v7\nv_lshl_add_u32 v4, v10, 2, v4\nv_lshlrev_b32 v21, 1, v4')
    sadd(sMK, (sB, 10), (sW, 8))
    imgbase()
    a('v_and_b32 v3, 1, v0')
    vadd(11, (3, 4), (7, 5), (10, 7), f's{sT3}')
    a('v_bfe_u32 v5, v0, 1, 2\nv_mul_u32_u24 v5, 0x5555, v5')
    for i in range(8): a(f'v_mov_b32 v{AC+i}, 0')
    a(f'v_xor_b32 v2, s{sB}, v9\nv_and_b32 v3, 1, v2\nv_and_b32 v61, 1, v7\nv_lshrrev_b32 v63, 1, v7')
    vadd(60, (3, 6), (10, 5), (61, 4), (63, 3))
    a(f'v_lshrrev_b32 v2, 1, v2\nv_mul_u32_u24 v2, {SIG}, v2\nv_add3_u32 v2, v2, v60, s{sT3}\nv_add_u32 v3, {4*SIG}, v2')
    a(f'v_add_u32 v61, {PASS}, v2\nv_add_u32 v63, {PASS}, v3')
    a(f's_lshl_b32 s{sT2}, s{sW}, 9\ns_add_u32 s{sT3}, s{sT2}, {L_X1}\nv_lshl_add_u32 v4, v4, 2, s{sT3}\ns_add_u32 s{sT3}, s{sT2}, {L_RS}')
    vadd(60, (8, 4), (7, 2), f's{sT3}')
    if yrep: sadd(sB2, (sB, 14), (sW, 12), (sG, 16), WS_YP)
    else: sadd(sB2, (sB, 14), (sW, 12), WS_YP)
    a(f's_lshl_b32 s{sT0}, s{sW}, 4\ns_add_u32 s{sT3}, s{sT0}, {L_LS}\nv_mov_b32 v62, s{sT3}\nv_lshlrev_b32 v20, 3, v0')
    a(f's_add_u32 s{sB4}, s{sB3}, 1024\ns_lshl_b32 s{sT0}, s{sW}, 8\ns_add_u32 s{sB3}, s{sB3}, s{sT0}')
    spin(16, F_M, 4, extra='ds_read_b128 v[56:59], v62 offset:64')
    a('v_max3_f32 v33, v56, v57, v58\nv_max_f32 v33, v33, v59')
    for k in range(4): a(f'v_sub_f32 v{56+k}, v{56+k}, v33')
    for k in range(4): a(f'v_exp_f32 v{56+k}, v{56+k}')
    a(f'v_mov_b32 v32, v{VTA}\nv_mov_b32 v35, 0')
    spin(16, F_L, 4, extra='ds_read_b128 v[36:39], v62')
    a('v_mul_f32 v34, v36, v56\nv_fmac_f32 v34, v37, v57\nv_fmac_f32 v34, v38, v58\nv_fmac_f32 v34, v39, v59')
    a(f's_lshl_b64 exec, 1, s{sW}\nbuffer_store_dwordx4 v[32:35], v6, {sr(rWS,4)}, s{sB4} offen')
    pubdup(32, 4, 6, sB4)
    post = [i for i in range(16) if i & 3 == 0] + [i for i in range(16) if i & 3]
    def fld(lo, hi, hook=None):
        for n in range(lo, hi):
            i = post[n]
            if 2*(n - ne) >= NTT: a(f's_waitcnt vmcnt({NTT-2})')
            a(f's_xor_b32 s{sT0}, s{sB}, {i}\ns_mul_i32 s{sT0}, s{sT0}, {8*3584}\ns_add_u32 s{sOFF}, s{sFB}, s{sT0}')
            a(f'buffer_load_dwordx4 {vr(WG_(i >> 1) + 4*(i & 1), 4)}, v12, {sr(rA,4)}, s{sOFF} offen')
            a(f'buffer_load_dwordx4 {vr(WU_(i >> 1) + 4*(i & 1), 4)}, v12, {sr(rB,4)}, s{sOFF} offen')
            if hook: hook(n)
    if ne:
        a(f's_mov_b64 exec, -1\ns_cmp_ge_u32 s{sR}, 16\ns_cbranch_scc1 L_T_noe\ns_cmp_eq_u32 s{sG}, 7\ns_cbranch_scc1 L_T_noe')
        fld(0, ne)
        a.lab('L_T_noe')
        a('s_mov_b32 exec_hi, 0')
    a('s_mov_b32 exec_lo, -1\ns_barrier')
    for w in range(4): a(f'ds_read_b128 {vr(36 + 4*w, 4)}, v55 offset:{SR*w}')
    for w in range(4):
        a(f's_waitcnt lgkmcnt({3-w})')
        for hf in (0, 2):
            k = w & 1
            if w == 0: a(f'v_pk_mul_f32 {vr(36+hf,2)}, {vr(36+hf,2)}, v[56:57] op_sel:[0,0] op_sel_hi:[1,0]')
            else: a(f'v_pk_fma_f32 {vr(36+hf,2)}, {vr(36+4*w+hf,2)}, {vr(56+(w&2),2)}, {vr(36+hf,2)} op_sel:[0,{k},0] op_sel_hi:[1,{k},1]')
    a('v_cvt_pk_bf16_f32 v36, v36, v37\nv_cvt_pk_bf16_f32 v37, v38, v39\nv_or_b32 v36, 1, v36')
    a(f'buffer_store_dwordx2 v[36:37], v20, {sr(rWS,4)}, s{sB3} offen')
    pubdup(36, 2, 20, sB3, tag=False)
    a('s_mov_b32 exec_hi, -1\ns_barrier')
    stamp(7)
    a(f's_cmp_ge_u32 s{sR}, 16\ns_cbranch_scc1 L_T_O\ns_cmp_eq_u32 s{sG}, 7\ns_cbranch_scc1 L_fin')
    hot, a = a, cold
    a.lab('L_T_O')
    if hint:
        a(f's_cmp_eq_u32 s{sW}, 0\ns_cbranch_scc0 L_T_O2\ns_cmp_lt_u32 s{sR}, {16 + 2*hint}\ns_cbranch_scc0 L_T_O2')
        a(f's_and_b32 s{sT1}, s{sR}, 1\ns_lshl1_add_u32 s{sT2}, s{sG}, s{sT1}\ns_mul_i32 s{sB4}, s{sT2}, {16*OPS}\ns_add_u32 s{sB4}, s{sB4}, {WS_OP}')
        a(f'v_mul_u32_u24 v17, {OPS}, v8\nv_readfirstlane_b32 s{sT2}, v{VTA}\ns_mov_b64 exec, 0xffff')
        sadd(sFB, (sT1, 10), (sG, 7), WS_FL)
        a(f's_cmp_lg_u32 s{sSLOW}, 0\ns_cbranch_scc1 L_T_O4')
        a.lab('L_T_O3')
        a(f'buffer_load_dword v16, v17, {sr(rWS,4)}, s{sB4} offen offset:1024 sc1')
        budget()
        a(f's_waitcnt vmcnt(0)\nv_cmp_ne_u32 vcc, s{sT2}, v16\ns_and_b64 exec, exec, vcc\ns_cbranch_scc1 L_T_O3')
        a.lab('L_T_O4')
        if hat == 's': a(f's_and_b32 s{sT2}, s{sE}, s{sMASK}\ns_atomic_swap s{sT2}, s[32:33], s{sFB}')
        elif hat == 'v': a(f's_mov_b64 exec, 1\nbuffer_atomic_swap v{VT}, v6, {sr(rWS,4)}, s{sFB} offen sc1')
        else: a(f's_mov_b64 exec, 1\nbuffer_store_dword v{VT}, v6, {sr(rWS,4)}, s{sFB} offen sc1')
        if ts: a(f's_memrealtime {sr(TS0 + 16, 2)}')
        a.lab('L_T_O2')
    a('s_barrier\ns_branch L_fin')
    a = hot
    GA, GC, XC, XX, EA, Y = 16, 18, 20, 22, 32, 48
    a(f'buffer_load_ushort v{XX}, v21, {sr(rC,4)}, s{sMK} offen\nbuffer_load_ushort v{XX+1}, v21, {sr(rC,4)}, s{sMK} offen offset:128')
    fld(ne, ne + NTT // 2)
    for i in range(16): a(f'v_mov_b32 v{EA+i}, 0')
    spin(49, F_RS, 4, extra=f'ds_read2st64_b32 {vr(GA,2)}, v60 offset0:0 offset1:1\nds_read2st64_b32 v[52:53], v60 offset0:8 offset1:9\nds_read2st64_b32 v[54:55], v60 offset0:16 offset1:17')
    a(f's_waitcnt vmcnt({NTT})')
    a(f'v_add_f32 v54, 1.0, v54\nv_add_f32 v55, 1.0, v55\nv_lshlrev_b32 v{XX}, 16, v{XX}\nv_lshlrev_b32 v{XX+1}, 16, v{XX+1}')
    a(f'v_pk_mul_f32 {vr(GC,2)}, {vr(GA,2)}, v[54:55]\nv_pk_mul_f32 {vr(XC,2)}, {vr(XX,2)}, v[54:55]')
    hilo(range(52, 56), range(52, 56), range(56, 60))
    a('ds_write2_b32 v2, v54, v54 offset0:0 offset1:33\nds_write2_b32 v3, v55, v55 offset0:0 offset1:33')
    a('ds_write2_b32 v61, v52, v52 offset0:0 offset1:33\nds_write2_b32 v63, v53, v53 offset0:0 offset1:33')
    for p in range(2):
        for sg in range(8): a(f'ds_read_b128 {vr(CSA + 32*p + 4*sg, 4)}, v11 offset:{p*PASS + sg*SIG}')
    def cs(sg):
        for p in range(2):
            smf(EA + 8*p, CSA + 32*p + 4*sg, WG_(sg), 5); smf(EA + 8*p + 4, CSA + 32*p + 4*sg, WU_(sg), 5)
    need = lambda sg: max(post.index(i) + 1 for i in (2*sg, 2*sg + 1))
    done = [0]
    a('s_waitcnt lgkmcnt(0)')
    def hook(n):
        landed = n - (NTT - 2) // 2
        while done[0] < 8 and need(done[0]) <= landed: cs(done[0]); done[0] += 1
    fld(ne + NTT // 2, 16, hook)
    stamp(15)
    def l5():
        for k in range(4): a(f'buffer_load_dwordx4 {vr(Y + 4*k, 4)}, v6, {sr(rWS,4)}, s{sB2} offen offset:{1024*k} sc1')
    def rest_cs(k0=4):
        sig(F_YI)
        sadd(sT3, (sW, 10), L_ORED)
        a(f'v_add_u32 v12, s{sT3}, v6')
        for sg in range(done[0], 8):
            a(f's_waitcnt vmcnt({k0 + 2*(16 - need(sg))})')
            cs(sg)
        for k in range(4): parity(CSA + k, EA + 4*k)
        a(f'ds_write_b128 v12, {vr(CSA,4)}')
        sig(F_CS)
        a(f's_add_u32 s{sT0}, s{sT2}, {L_RED}\nv_lshl_add_u32 v12, v0, 3, s{sT0}\ns_lshl_b32 s{sT0}, s{sW}, 3\ns_add_u32 s{sT0}, s{sT0}, {L_ST}\nv_mov_b32 v40, s{sT0}')
    if hint:
        assert dnall
        a(f'ds_read_b32 v48, v13 offset:{F_YR}\ns_waitcnt lgkmcnt(0)\nv_cmp_ne_u32 vcc, 0, v48\ns_cbranch_vccnz L_F_late')
        rest_cs(0)
        spin(48, F_YR, 1)
        l5()
        a.lab('L_F_lateb')
        hot, a = a, Asm()
        a.lab('L_F_late'); l5(); rest_cs(4); a('s_branch L_F_lateb')
        cold.L += a.L; a = hot
        poll(l5, [Y + 4*k for k in range(4)], 32, cnt=14, noload=True)
    else:
        poll(l5, [Y + 4*k for k in range(4)], 32, cnt=14, first=(rest_cs, 0), after_issue=lambda: sig(F_YI), retry=((lambda: a(f's_sleep {ysl}')) if ysl else None))
    stamp(8)
    add4(Y, Y + 4); add4(Y + 8, Y + 12)
    red4([Y, Y + 8], [32, 33])
    a(f'v_pk_fma_f32 v[34:35], v[32:33], {vr(GC,2)}, {vr(XC,2)}')
    hilo((34, 35), (34, 35), (36, 37))
    a('ds_write2_b32 v2, v34, v34 offset0:0 offset1:33\nds_write2_b32 v3, v35, v35 offset0:0 offset1:33')
    for sg in range(8): a(f'ds_read_b128 {vr(CSA + 4*sg, 4)}, v11 offset:{sg*SIG}')
    if not dnall: sig(F_YI, 8)
    a(f'v_pk_fma_f32 {vr(XX,2)}, v[32:33], {vr(GA,2)}, {vr(XX,2)}')
    a(f'ds_write2_b32 v4, v{XX}, v{XX+1} offset0:0 offset1:64\nv_readfirstlane_b32 s{sT0}, v{XX}')
    a(f'v_subrev_f32 v36, s{sT0}, v{XX}\nv_subrev_f32 v37, s{sT0}, v{XX+1}\nv_add_f32 v38, v36, v37\nv_mul_f32 v39, v36, v36\nv_fmac_f32 v39, v37, v37')
    dpp = [f'row_ror:{k} row_mask:0xf' for k in (1, 2, 4, 8)] + ['row_bcast:15 row_mask:0xa', 'row_bcast:31 row_mask:0xc']
    for k in range(NPRE): a(f'v_add_f32_dpp v38, v38, v38 {dpp[k]} bank_mask:0xf\nv_add_f32_dpp v39, v39, v39 {dpp[k]} bank_mask:0xf')
    fill = []
    for k in range(NPRE, 6): fill += [f'v_add_f32_dpp v38, v38, v38 {dpp[k]} bank_mask:0xf', f'v_add_f32_dpp v39, v39, v39 {dpp[k]} bank_mask:0xf']
    fill += [f'v_mul_f32 v36, {f32(1.0/128)}, v38', f'v_fma_f32 v39, -v36, v38, v39\nv_add_f32 v38, s{sT0}, v36']
    extra = 1 if dnall else 2
    for sg in range(8):
        a(f's_waitcnt lgkmcnt({7 - sg + extra})')
        smf(AC, CSA + 4*sg, WG_(sg), 5)
        if fill: a(fill.pop(0))
        smf(AC + 4, CSA + 4*sg, WU_(sg), 5)
        if fill:
            a(fill.pop(0))
            if not fill:
                a(f's_mov_b32 exec_lo, 0\ns_mov_b32 exec_hi, 0x80000000\nds_write_b64 v40, v[38:39]\nds_add_u32 v13, v14 offset:{F_ST}\ns_mov_b64 exec, -1')
                extra += 2
    parity(20, AC); parity(21, AC+4)
    a('ds_write_b64 v12, v[20:21]')
    a('s_waitcnt lgkmcnt(0)\ns_barrier')
    stamp(9)
    a(f's_cmp_lt_u32 s{sG}, 4\ns_cbranch_scc0 L_fin\ns_cmp_eq_u32 s{sW}, 0\ns_cbranch_scc0 L_fin')
    a(f's_lshr_b32 s{sT2}, s{sT1}, 1\ns_and_b32 s{sT3}, s{sT1}, 1')
    sadd(sB1, (sT1, 7), L_RS + 6144)
    vadd(18, (9, 4), (7, 2), f's{sB1}')
    a('ds_read_b32 v20, v18')
    sadd(sB1, (sT2, 6), (sT3, 2))
    a(f'v_lshl_add_u32 v21, v9, 3, v7\nv_add_u32 v21, s{sB1}, v21')
    a(f'v_lshlrev_b32 v22, 2, v21\nv_lshlrev_b32 v21, 1, v21\nv_add_u32 v22, {L_X1}, v22\nds_read_b32 v23, v22')
    sadd(sB1, (sB, 16), (sT1, 12), WS_FP)
    srd(rA, pOUT, 4096)
    a(f's_lshl_b32 s{sB2}, s{sB}, 10')
    for i in range(4): a(f'v_mov_b32 v{44+i}, 0')
    if fsleep: a(f's_sleep {fsleep}')
    stamp(10)
    def fl():
        for j in range(3): a(f'buffer_load_dwordx4 {vr(32+4*j,4)}, v6, {sr(rWS,4)}, s{sB1} offen offset:{1024*j} sc1')
        a(f's_mov_b32 exec_hi, 0\nbuffer_load_dwordx4 v[44:47], v6, {sr(rWS,4)}, s{sB1} offen offset:3072 sc1')
    def fchk():
        a(f'v_xor_b32 v44, v44, v{VT}\ns_mov_b32 exec_hi, -1')
        for j in range(3): a(f'v_xor_b32 v{32+4*j}, v{32+4*j}, v{VT}')
        orall([32, 36, 40, 44], 19)
    poll(fl, None, None, check=fchk, cnt=1)
    stamp(13)
    add4(32, 40); add4(36, 44); add4(32, 36)
    red4([32], [24])
    a('v_add_f32_dpp v24, v24, v24 row_ror:8 row_mask:0xf bank_mask:0xf')
    a('s_waitcnt lgkmcnt(0)\nv_fma_f32 v24, v24, v20, v23\nv_cvt_pk_bf16_f32 v24, v24, v24')
    a('s_mov_b32 exec_lo, 0x00ff00ff\ns_mov_b32 exec_hi, 0x00ff00ff')
    a(f'buffer_store_short v24, v21, {sr(rA,4)}, s{sB2} offen')
    a(f's_cmp_eq_u32 s2, 0\ns_cbranch_scc0 L_fin')
    a(f's_mov_b64 exec, 1\nv_mov_b32 v24, s{sE}\nbuffer_store_dword v24, v6, {sr(rWS,4)}, 0 offen')
    a('s_branch L_fin')

    VR, PV_, WO, ACL, ONE = 32, 160, 192, 20, 16
    PX = (96, 32)
    U0 = 128
    AC2, PA, vOW, vLS, vFW = 140, 148, 152, 153, 154
    a.lab('L_A')
    a('v_and_b32 v0, 63, v0')
    a(f's_and_b32 s{sT1}, s{sR}, 15\ns_lshl_b32 s{sT2}, s{sG}, 1\ns_xor_b32 s{sT1}, s{sT1}, s{sT2}')
    sadd(sB1, (sB, 24), (sG, 21), (sS, 16), (sW, 14), (sT1, 10), 0x180000)
    a(f's_lshl_b32 m0, s{sW}, 14')
    a(f's_mov_b32 s{sLO}, 0x05040100\ns_waitcnt lgkmcnt(0)')
    stamp(1)
    common()
    a('v_lshlrev_b32 v2, 6, v7\nv_xor_b32 v2, v6, v2\nv_xor_b32 v3, 16, v2\nv_xor_b32 v4, 32, v2\nv_xor_b32 v5, 48, v2')
    srd(rA, pK, 0x4000000); srd(rB, pV, 0x4000000); srd(rC, pWO, 4096*1024)
    def setup_A():
        zero_ts()
        mktag()
        sig(F_E)
        imgbase()
        for i in range(8): a(f'v_mov_b32 v{AC2+i}, 0')
        sadd(sT1, (sW, 9), L_P)
        a('v_and_b32 v21, 3, v0\nv_lshrrev_b32 v22, 2, v0')
        vadd(23, (21, 4), (7, 6), f's{sT1}')
        for u in range(4): a(f'v_mov_b32 v{PA+u}, {L_Z}')
        for u in range(4): a(f'v_mov_b32_dpp v{PA+u}, v23 quad_perm:[0,1,2,3] row_mask:0xf bank_mask:{1<<u:#x}')
        for i in range(4): a(f'v_mov_b32 v{ONE+i}, 0x3f803f80')
        a(f's_mul_i32 s{sT1}, s{sW}, {SR}\ns_add_u32 s{sT1}, s{sT1}, {L_ORED}\nv_mul_u32_u24 v{vOW}, {HS}, v21\nv_lshl_add_u32 v{vOW}, v22, 4, v{vOW}\nv_add_u32 v{vOW}, s{sT1}, v{vOW}')
        a(f's_lshl_b32 s{sT1}, s{sW}, 2\nv_add_u32 v{vFW}, s{sT1}, v13\ns_add_u32 s{sT1}, s{sT1}, {L_LS}\nv_add_u32 v{vLS}, s{sT1}, v6')
    def setup_F():
        setup_A()
        sadd(sT1, (sG, 2), (sS, 0))
        sadd(sB3, (sT1, 16), (sW, 8))
        vadd(U0, (7, 10), (8, 4))
        sadd(sB4, (sB, 13), (sW, 11), WS_RD)
        sadd(sT2, (sW, 11), L_RS)
        a(f'v_add_u32 v{U0+1}, s{sT2}, v6\nv_add_u32 v{U0+2}, {L_ORED}, v6\nv_mov_b32 v{U0+3}, {L_ST}')
        vadd(U0+4, (0, 3), L_RED)
        a(f's_lshl_b32 s{sT0}, s{sB}, 1\nv_xor_b32 v23, s{sT0}, v9\nv_mul_u32_u24 v{U0+5}, {SIG}, v23\nv_lshl_add_u32 v{U0+5}, v7, 5, v{U0+5}\nv_lshl_add_u32 v{U0+5}, v10, 3, v{U0+5}\nv_add_u32 v{U0+5}, s{sT3}, v{U0+5}')
        a('v_and_b32 v23, 1, v22')
        vadd(U0+6, (23, 7), (7, 5), f's{sT3}')
        a(f'v_mul_u32_u24 v{U0+7}, 0x5555, v21')
        vadd(U0+8, (10, 13), (7, 12), (9, 4))
        sadd(sMK, (sB, 16), (sW, 14), (sT1, 7), WS_FP)
        a(f'v_mov_b32 v{U0+11}, 0')
    def setup_O():
        setup_A()
        for i in range(4): a(f'v_mov_b32 v{156+i}, 0')
        a(f'v_mul_u32_u24 v{U0}, {OPS}, v7\nv_lshl_add_u32 v{U0}, v8, 4, v{U0}\ns_lshl_b32 s{sT0}, s{sW}, 8\nv_add_u32 v{U0}, s{sT0}, v{U0}')
        a(f'v_mul_u32_u24 v{U0+1}, {OPS}, v8\ns_lshl_b32 s{sT0}, s{sW}, 4\nv_add_u32 v{U0+1}, s{sT0}, v{U0+1}')
        a(f's_and_b32 s{sT1}, s{sR}, 1\ns_lshl1_add_u32 s{sT1}, s{sG}, s{sT1}\ns_mul_i32 s{sB4}, s{sT1}, {16*OPS}\ns_add_u32 s{sB4}, s{sB4}, {WS_OP}')
        a('v_and_b32 v24, 1, v0\nv_bfe_u32 v25, v0, 1, 2\nv_and_b32 v26, 1, v22\nv_and_b32 v27, 1, v7\nv_lshrrev_b32 v28, 1, v7\nv_bfe_u32 v29, v0, 1, 1')
        vadd(U0+2, (25, 5), (10, 4), (24, 3), f's{sT3}')
        vadd(23, (26, 7), (7, 5), (10, 4), f's{sT3}')
        a(f'v_mov_b32 v{U0+3}, {L_Z}\nv_mov_b32 v{U0+4}, {L_Z}\nv_mov_b32 v{U0+7}, {L_Z}\nv_mov_b32 v{U0+8}, {L_Z}')
        a(f'v_mov_b32_dpp v{U0+3}, v23 quad_perm:[0,1,2,3] row_mask:0xf bank_mask:0x3\nv_mov_b32_dpp v{U0+4}, v23 quad_perm:[0,1,2,3] row_mask:0xf bank_mask:0xc')
        a(f'v_mul_u32_u24 v{U0+5}, 0x5555, v21')
        sadd(sT1, (sW, 9), L_DI)
        vadd(U0+6, (26, 8), (24, 7), (28, 6), (10, 4), (27, 3), (29, 2), f's{sT1}')
        vadd(23, (7, 7), (10, 6), (21, 4), f's{sT1}')
        a(f'v_mov_b32_dpp v{U0+7}, v23 quad_perm:[0,1,2,3] row_mask:0xf bank_mask:0x5\nv_mov_b32_dpp v{U0+8}, v23 quad_perm:[0,1,2,3] row_mask:0xf bank_mask:0xa')
        a(f'v_mul_u32_u24 v{U0+9}, 0xaaaa, v29\nv_add_u32 v{U0+9}, 0x4444, v{U0+9}')
        sadd(sT1, (sW, 9), L_RED)
        vadd(U0+10, (28, 8), (9, 4), (10, 3), (27, 2), f's{sT1}')
        yprec(sMK)
        if yrep:
            vadd(U0+11, (27, 14), (8, 4), (28, 16))
            vadd(155, (27, 8), (8, 4), L_RED)
            a(f's_lshl_b32 s{sT0}, s{sW}, 17\ns_add_u32 s{sMK}, s{sMK}, s{sT0}')
        else:
            vadd(U0+11, (7, 14), (8, 4))
            a(f'v_add_u32 v155, {L_RED}, v6')
    def perm_pair(k):
        blk, p = k >> 2, k & 3
        r0 = VR + 32*blk + 8*p
        for c in range(4):
            a(f'v_perm_b32 v{PX[blk] + 8*c + p}, v{r0+4+c}, v{r0+c}, s{sLO}')
            a(f'v_perm_b32 v{PX[blk] + 8*c + 4 + p}, v{r0+4+c}, v{r0+c}, s{sHI}')
    def perm_wo(p):
        r0 = VR + 8*p
        for c in range(4):
            a(f'v_perm_b32 v{WO + 16*c + p}, v{r0+4+c}, v{r0+c}, s{sLO}')
            a(f'v_perm_b32 v{WO + 16*c + 8 + p}, v{r0+4+c}, v{r0+c}, s{sHI}')
    PIL = 4
    def stream(seq, win, sigs, pauses):
        kl = max(n for n, x in enumerate(seq) if x[0] == 'K')
        dv = do = 0; ksig = False
        no = sum(1 for x in seq if x[0] == 'O') // 2
        for n, (t, i) in enumerate(seq):
            w = win(n)
            if n in pauses: pauses[n]()
            if n >= w: a(f's_waitcnt vmcnt({w-1})')
            for (gn, fo) in sigs:
                if n == gn: sig(fo)
            landed = n - w + 1
            if not ksig and landed > kl: sig(F_K, va=vFW); ksig = True
            if t == 'W':
                a(f'buffer_load_dwordx4 v[192:195], v6, {sr(rC,4)}, s{sB2} offen\ns_add_u32 s{sB2}, s{sB2}, 1024')
            elif t == 'O':
                a(f'buffer_load_dwordx4 {vr(VR + 4*i, 4)}, v11, {sr(rC,4)}, s{sB2} offen\ns_add_u32 s{sB2}, s{sB2}, 8192')
            else:
                if i: a(f's_xor_b32 s{sOFF}, s{sB1}, {i << 10}')
                so = sOFF if i else sB1
                if t == 'K':
                    a(f'buffer_load_dwordx4 v{2 + (i & 3)}, {sr(rA,4)}, s{so} offen {kvfl} lds')
                    if i < 15: a('s_add_u32 m0, m0, 0x400')
                else:
                    assert do == no or do > i // 2
                    a(f'buffer_load_dwordx4 {vr(VR + 4*i, 4)}, v6, {sr(rB,4)}, s{so} offen {kvfl}')
            cntl = lambda ch: sum(1 for x in seq[:max(landed, 0)] if x[0] == ch)
            while do < no and cntl('O') >= 2*do + 2: perm_wo(do); do += 1
            while dv < PIL and cntl('V') >= 2*dv + 2: perm_pair(dv); dv += 1
        assert ksig and dv == PIL and do == no
    KV = [('K', i) for i in range(16)] + [('V', i) for i in range(16)]
    a(f's_cmp_ge_u32 s{sR}, 16\ns_cbranch_scc1 L_A_O')
    sadd(sB2, (sG, 19), (sR, 15), (sW, 13))
    a('s_barrier')
    a(f's_cmp_lt_u32 s{sR}, 8\ns_cbranch_scc0 L_A_go')
    spin(20, F_H, 1)
    a.lab('L_A_go')
    stream([('W', i) for i in range(8)] + KV, lambda n: NM2 if n >= nswm else NM, [(gr, F_G), (g2m, F_G2)], {NM: setup_F})
    srd(rC, pWD, 1792*1024)
    a('s_branch L_A_pv')
    a.lab('L_A_O')
    vadd(11, (7, 10), (10, 12), (9, 4))
    a(f's_bfe_u32 s{sT1}, s{sR}, 0x30001')
    sadd(sB2, (sG, 19), (sW, 17), (sT1, 7))
    a('s_barrier')
    def p1():
        setup_O()
        a(f's_waitcnt vmcnt({n1w})'); sig(F_G); spin(20, F_GI, 2)
    pz = {n1: p1}
    if p2at is not None: pz[n1 + n2 + 16 + p2at] = lambda: spin(20, F_P, 2)
    stream(KV[:n1+n2] + [('O', i) for i in range(16)] + KV[n1+n2:], lambda n: NQ, [(g2q, F_G2)], pz)
    a.lab('L_A_pv')
    stamp(2)
    spin(20, F_PR, 1, extra=f'ds_read_b32 v21, v13 offset:{F_S2}', va=vFW)
    stamp(3)
    order = [(0, 0), (1, 0), (0, 1), (0, 2), (0, 3), (1, 1), (1, 2), (1, 3)]
    for blk, u in order: a(f'ds_read_b128 {vr(PV_ + 16*blk + 4*u, 4)}, v{PA+u} offset:{256*blk}')
    a(f'v_readfirstlane_b32 s{sSLOW}, v21')
    def pv(blk, j):
        x, u = j >> 2, j & 3
        c = '0' if (blk == 0 and u == 0) else vr(AC + 4*x, 4)
        a(f'v_mfma_f32_16x16x32_bf16 {vr(AC + 4*x, 4)}, {vr(PX[blk] + 4*j, 4)}, {vr(PV_ + 16*blk + 4*u, 4)}, {c}')
    a('s_waitcnt lgkmcnt(6)')
    a(f'v_mfma_f32_16x16x32_bf16 {vr(ACL,4)}, {vr(ONE,4)}, {vr(PV_,4)}, 0')
    a(f'v_mfma_f32_16x16x32_bf16 {vr(ACL,4)}, {vr(ONE,4)}, {vr(PV_+16,4)}, {vr(ACL,4)}')
    for u in range(4):
        if u: a(f's_waitcnt lgkmcnt({6-u})')
        pv(0, u); pv(0, 4 + u)
    a(f's_mov_b64 exec, 15\nds_write_b32 v{vLS}, v{ACL}')
    sig(F_L)
    stamp(4)
    WDN = 192
    def dn(grp):
        a(f's_xor_b32 s{sT0}, s{sB}, {grp}\ns_lshl_b32 s{sT0}, s{sT0}, 14\ns_add_u32 s{sOFF}, s{sB3}, s{sT0}')
        for k in range(4):
            if k: a(f's_add_u32 s{sOFF}, s{sOFF}, 4096')
            a(f'buffer_load_dwordx4 {vr(WDN + 16*grp + 4*k, 4)}, v{U0}, {sr(rC,4)}, s{sOFF} offen')
    if dne:
        a(f's_cmp_eq_u32 s{sG}, 7\ns_cselect_b32 s{sT1}, 16, s{sR}\ns_cmp_ge_u32 s{sT1}, 16\ns_cselect_b64 vcc, -1, 0\ns_cbranch_scc0 L_A_dne')
        a.lab('L_A_dnb')
        hot, a = a, cold
        a.lab('L_A_dne'); dn(0); a('s_branch L_A_dnb')
        a = hot
    for k in range(PIL, 8):
        if dne:
            l, b_ = U('L_w'), U('L_wb')
            a(f's_cbranch_vccz {l}')
            cold.lab(l); cold(f's_waitcnt vmcnt({18 - 2*k}) lgkmcnt(0)\ns_branch {b_}')
        a(f's_waitcnt vmcnt({14 - 2*k})' + (' lgkmcnt(0)' if k == 6 else ''))
        if dne: a.lab(b_)
        if k == 7: stamp(5)
        if k < 7: perm_pair(k)
    r0 = VR + 32 + 24
    def lp(c):
        a(f'v_perm_b32 v{PX[1] + 8*c + 3}, v{r0+4+c}, v{r0+c}, s{sLO}\nv_perm_b32 v{PX[1] + 8*c + 7}, v{r0+4+c}, v{r0+c}, s{sHI}')
    lp(0); lp(1); pv(1, 0); lp(2); pv(1, 1); lp(3)
    for j in range(2, 8): pv(1, j)
    a(f'ds_write_b128 v{vOW}, {vr(AC,4)}\nds_write_b128 v{vOW}, {vr(AC+4,4)} offset:256')
    a('s_waitcnt lgkmcnt(0)\ns_barrier')
    stamp(6)
    a(f's_cmp_lt_u32 s{sR}, 16\ns_cbranch_scc1 L_A_notO')
    G, ST, WA = 64, 32, 36
    for i in range(8): a(f'v_mov_b32 v{AC+i}, 0')
    a(f'v_readlane_b32 s{sT1}, v{VTA}, s{sW}\nv_readlane_b32 s{sT2}, v{VT}, s{sW}\ns_add_u32 s{sB4}, s{sB4}, s{sSLOW}\ns_cmp_eq_u32 s{sSLOW}, 0\ns_cselect_b32 s{sT1}, s{sT1}, s{sT2}')
    a(f's_add_u32 s{sB1}, s{sB4}, {4*OPS}\ns_add_u32 s{sB2}, s{sB4}, {8*OPS}\ns_add_u32 s{sB3}, s{sB4}, {12*OPS}')
    def ls(): a(f's_mov_b64 exec, 0xffff\nbuffer_load_dwordx4 {vr(ST,4)}, v{U0+1}, {sr(rWS,4)}, s{sB4} offen offset:1024 sc1')
    def ld():
        a('s_mov_b64 exec, -1')
        for k, so in enumerate((sB4, sB1, sB2, sB3)): a(f'buffer_load_dwordx4 {vr(G + 4*k, 4)}, v{U0}, {sr(rWS,4)}, s{so} offen sc1')
    a('s_barrier')
    stamp(7)
    if ts: a(f's_mov_b32 s{TS0+26}, 1')
    ls(); ld()
    a(f's_mov_b64 exec, 0xffff\ns_waitcnt vmcnt(4)\nv_cmp_ne_u32 vcc, s{sT1}, v{ST}\ns_cbranch_vccnz L_O_s')
    hot, a = a, cold
    a.lab('L_O_s')
    ls()
    if ts: a(f's_add_u32 s{TS0+26}, s{TS0+26}, 1')
    budget()
    a(f's_waitcnt vmcnt(0)\nv_cmp_ne_u32 vcc, s{sT1}, v{ST}\ns_cbranch_vccnz L_O_s')
    ld()
    a('s_mov_b64 exec, 0xffff\ns_branch L_O_w')
    a = hot
    a.lab('L_O_w')
    stamp(12)
    def weights():
        xs = ['quad_perm:[1,0,3,2]', 'quad_perm:[2,3,0,1]', 'row_half_mirror']
        a(f'v_max_f32_dpp v17, v{ST+1}, v{ST+1} {xs[0]} row_mask:0xf bank_mask:0xf')
        for x in xs[1:]: a(f'v_max_f32_dpp v17, v17, v17 {x} row_mask:0xf bank_mask:0xf')
        a(f'v_sub_f32 v17, v{ST+1}, v17\nv_exp_f32 v17, v17\nv_mul_f32 v18, v17, v{ST+2}')
        for x in xs: a(f'v_add_f32_dpp v18, v18, v18 {x} row_mask:0xf bank_mask:0xf')
        a('v_rcp_f32 v18, v18\nv_mul_f32 v17, v17, v18')
        hilo([17], [17], [18])
        a(f'ds_write2_b32 v{U0+2}, v17, v17 offset0:0 offset1:33\ns_mov_b64 exec, -1')
        a(f'ds_read_b128 {vr(WA,4)}, v{U0+3}\nds_read_b128 {vr(WA+4,4)}, v{U0+4}')
    def dchk():
        a(f'v_min3_u32 v17, v{G}, v{G+2}, v{G+4}\nv_min3_u32 v18, v{G+6}, v{G+8}, v{G+10}\nv_min3_u32 v17, v17, v{G+12}, v{G+14}\nv_min_u32 v17, v17, v18\nv_cmp_eq_u32 vcc, 0, v17')
    poll(ld, None, None, cnt=14, check=dchk, first=(weights, 0), noload=True)
    stamp(8)
    a('s_waitcnt lgkmcnt(0)')
    smf(156, WA, G, U0+5); smf(156, WA + 4, G + 8, U0+5)
    a(f'v_cvt_pk_bf16_f32 v16, v156, v157\nv_cvt_pk_bf16_f32 v17, v158, v159\nds_write2_b32 v{U0+6}, v16, v17 offset0:0 offset1:8')
    a(f'ds_read_b128 {vr(WA,4)}, v{U0+7}\nds_read_b128 {vr(WA+4,4)}, v{U0+8}')
    YA = [AC, AC + 4, AC2, AC2 + 4]
    for jp in range(2):
        a(f's_waitcnt lgkmcnt({1-jp})')
        for x in range(4): smf(YA[x], WA + 4*jp, WO + 8*(2*x + jp), U0+9)
    for x in range(4): a(f'v_pk_add_f32 {vr(YA[x],2)}, {vr(YA[x],2)}, {vr(YA[x]+2,2)}')
    for k in range(2):
        a(f'v_add_f32_dpp v{16+k}, v{YA[2*k]+1}, v{YA[2*k]} row_ror:8 row_mask:0xf bank_mask:0x3')
    for k in range(2):
        a(f'v_add_f32_dpp v{16+k}, v{YA[2*k+1]}, v{YA[2*k+1]+1} row_ror:8 row_mask:0xf bank_mask:0xc')
    a(f'ds_write2_b32 v{U0+10}, v16, v17 offset0:0 offset1:32')
    if yrep:
        a(f's_cmp_eq_u32 s{sW}, 3\ns_cselect_b32 exec_hi, 0, -1\ns_waitcnt lgkmcnt(0)\ns_barrier')
        stamp(9)
    else:
        a(f's_mov_b32 exec_hi, 0\ns_cmp_eq_u32 s{sW}, 0\ns_waitcnt lgkmcnt(0)\ns_barrier')
        stamp(9)
        a(f's_cbranch_scc0 L_fin')
    sum4(64, 155, 512)
    tagit(64)
    a(f'buffer_store_dwordx4 v[64:67], v{U0+11}, {sr(rWS,4)}, s{sMK} offen sc1')
    stamp(10)
    a('s_branch L_fin')
    a.lab('L_A_notO')
    a('s_barrier')
    a(f's_cmp_eq_u32 s{sG}, 7\ns_cbranch_scc1 L_fin')
    def l6():
        for j in range(2): a(f'buffer_load_dwordx4 {vr(64+4*j,4)}, v6, {sr(rWS,4)}, s{sB4} offen offset:{1024*j} sc1')
    poll(l6, [64, 68], 19, cnt=13, first=(None if dne else (lambda: dn(0), 4)))
    a(f'ds_write_b128 v{U0+1}, v[64:67]\nds_write_b128 v{U0+1}, v[68:71] offset:1024')
    sig(F_RS)
    if hint:
        if a3now: a(f's_cmp_eq_u32 s{sW}, 3\ns_cbranch_scc1 L_A_now')
    spin(16, F_YI, 4, sleep=1)
    if hint: a.lab('L_A_now')
    dn(1)
    if dnall: dn(2); dn(3)
    if hint:
        a(f's_cmp_eq_u32 s{sW}, 3\ns_cbranch_scc1 L_A_watch')
        a.lab('L_A_wb')
        hot, a = a, cold
        a.lab('L_A_watch')
        a(f's_lshr_b32 s{sT1}, s{sB}, 1\nv_readfirstlane_b32 s{sT2}, v{VT}\nv_lshlrev_b32 v17, 7, v0')
        sadd(sB4, (sT1, 10), WS_FL)
        a('s_mov_b64 exec, 0xff')
        if hskip: a(f's_bitset0_b32 exec_lo, s{sG}')
        a.lab('L_A_w1')
        a(f'buffer_load_dword v16, v17, {sr(rWS,4)}, s{sB4} offen sc1')
        budget()
        a(f's_waitcnt vmcnt(0)\nv_cmp_ne_u32 vcc, s{sT2}, v16\ns_and_b64 exec, exec, vcc\ns_cbranch_scc0 L_A_w2')
        if hsl: a(f's_sleep {hsl}')
        a('s_branch L_A_w1')
        a.lab('L_A_w2')
        if ydel: a(f's_sleep {ydel}')
        sig(F_YR)
        if ts: a(f's_memrealtime {sr(TS0 + 14, 2)}')
        a('s_branch L_A_wb')
        a = hot
    spin(16, F_CS, 4)
    sum4(64, U0+2, 1024)
    a(f'v_mul_f32 v64, {f32(L2E)}, v64\nv_mul_f32 v66, {f32(L2E)}, v66')
    if not dnall:
        spin(16, F_YI, 8); dn(2); spin(16, F_YI, 12); dn(3)
    spin(16, F_ST, 4, extra=f'ds_read_b128 v[68:71], v{U0+3}\nds_read_b128 v[72:75], v{U0+3} offset:16')
    a(f'v_pk_add_f32 v[76:77], v[68:69], v[70:71]\nv_pk_add_f32 v[78:79], v[72:73], v[74:75]\nv_mov_b32 v71, {f32(1e-5)}\nv_pk_add_f32 v[76:77], v[76:77], v[78:79]\nv_mul_f32 v76, {f32(0.25)}, v76')
    a('v_max_f32 v77, 0, v77\nv_sub_f32 v68, v68, v76\nv_sub_f32 v70, v70, v76\nv_sub_f32 v72, v72, v76\nv_sub_f32 v74, v74, v76')
    a(f'v_fmac_f32 v71, {f32(1.0/512)}, v77\nv_mul_f32 v68, v68, v68\nv_fmac_f32 v68, v70, v70\nv_fmac_f32 v68, v72, v72\nv_fmac_f32 v68, v74, v74')
    a(f'v_fmac_f32 v71, {f32(0.25)}, v68\nv_rsq_f32 v71, v71')
    a('s_barrier')
    stamp(9)
    for w in range(4): a(f'ds_read_b64 {vr(80 + 2*w, 2)}, v{U0+4} offset:{512*w}')
    a(f'v_mul_f32 v70, {f32(L2E)}, v71\nv_mul_f32 v76, v76, v71\nv_fma_f32 v66, -v76, v64, v66\nv_fma_f32 v67, -v76, v65, v67')
    a('s_waitcnt lgkmcnt(2)\nv_pk_add_f32 v[80:81], v[80:81], v[82:83]\ns_waitcnt lgkmcnt(1)\nv_pk_add_f32 v[80:81], v[80:81], v[84:85]\ns_waitcnt lgkmcnt(0)\nv_pk_add_f32 v[80:81], v[80:81], v[86:87]')
    a('v_pk_fma_f32 v[72:73], v[80:81], v[70:71], v[66:67]')
    a('v_exp_f32 v72, v72\nv_add_f32 v72, 1.0, v72\nv_rcp_f32 v72, v72\nv_mul_f32 v72, v72, v73\nv_cvt_pk_bf16_f32 v72, v72, 0')
    a(f'ds_write2_b32 v{U0+5}, v72, v72 offset0:0 offset1:33')
    for sg in range(8): a(f'ds_read_b128 {vr(96 + 4*sg, 4)}, v{U0+6} offset:{sg*SIG}')
    a('s_waitcnt vmcnt(0)')
    for sg in range(8):
        a(f's_waitcnt lgkmcnt({7-sg})')
        smf(AC2, 96 + 4*sg, WDN + 8*sg, U0+7)
    a('s_mov_b32 exec_hi, 0')
    tagit(AC2)
    a(f'buffer_store_dwordx4 {vr(AC2,4)}, v{U0+8}, {sr(rWS,4)}, s{sMK} offen sc1')
    stamp(10)
    a.lab('L_fin')
    stamp(11)
    if leak:
        W, w, ka, kb = leak
        a(f's_cmp_eq_u32 s2, {W}\ns_cbranch_scc0 L_end\ns_cmp_eq_u32 s3, {w}\ns_cbranch_scc0 L_end')
        a(f's_waitcnt lgkmcnt(0)\ns_sub_u32 s{sT0}, s{TS0+2*ka}, s{TS0+2*kb}\ns_min_u32 s{sT0}, s{sT0}, 5000\ns_mul_i32 s{sT0}, s{sT0}, 40')
        a.lab('L_leak')
        a(f's_memrealtime s[100:101]\ns_waitcnt lgkmcnt(0)\ns_sub_u32 s{sT1}, s100, s{TS0+22}\ns_cmp_lt_u32 s{sT1}, s{sT0}\ns_cbranch_scc1 L_leak')
    elif ts:
        a('s_waitcnt lgkmcnt(0)')
        a(f's_xor_b32 s{sT1}, s3, 4\ns_lshl3_add_u32 s{sOFF}, s2, s{sT1}\ns_lshl_b32 s{sOFF}, s{sOFF}, 6\ns_add_u32 s{sOFF}, s{sOFF}, {WS_TS}')
        a('s_mov_b64 exec, 1\nv_mov_b32 v2, 0')
        for k in range(16):
            a(f'v_mov_b32 v3, s{TS0+2*k}\nbuffer_store_dword v3, v2, {sr(rWS,4)}, s{sOFF} offen offset:{4*k}')
    a.lab('L_end')
    a('s_endpgm')
    a.L += cold.L
    a.lab('L_codeend')

    body, added = hazard_pass(a.L)
    out = [HEADER + f'; @launch grid=(256,1,1) block=(512,1,1) lds={L_END}',
           '.amdgcn_target "amdgcn-amd-amdhsa--gfx950"', '.text', f'.globl {NAME}_kernel', '.p2align 8', f'.type {NAME}_kernel,@function']
    out += [l if l.endswith(':') else '    ' + l for l in body]
    out += ['.section .rodata,"a"', '.p2align 6', f'.amdhsa_kernel {NAME}_kernel',
            '  .amdhsa_next_free_vgpr 256', '  .amdhsa_next_free_sgpr 102', '  .amdhsa_accum_offset 256',
            '  .amdhsa_group_segment_fixed_size 0', '  .amdhsa_kernarg_size 112', '  .amdhsa_user_sgpr_count 2',
            '  .amdhsa_user_sgpr_kernarg_segment_ptr 1', '  .amdhsa_system_sgpr_workgroup_id_x 1',
            '  .amdhsa_float_denorm_mode_32 3', '.end_amdhsa_kernel']
    return '\n'.join(out) + '\n'

if __name__ == '__main__':
    kw = {}
    for arg in sys.argv[2:]:
        k, v = arg.split('=')
        try: v = eval(v)
        except Exception: pass
        kw[k] = v
    open(sys.argv[1], 'w').write(gen(**kw))
```

```python
import sys, struct, math
from asmlib import Asm, hazard_pass, vr, sr
from gen_v1 import HEADER
NAME = 'adaLN_cond__sliding_block_cached__glu_gated_glu__decode'
def f32(x): return '0x%08x' % struct.unpack('<I', struct.pack('<f', x))[0]

WS_MOD = 0x10000
WS_RD  = 0x70000
WS_QP  = 0x80000
WS_OP  = 0x100000
OPS    = 1152
WS_YP  = 0x200000
WS_FP  = 0x280000
WS_FL  = 0x300000
WS_B   = 0x400000
WS_TS  = 0x8000000
SIG = 288; PASS = 8 * SIG; IMG = 2 * PASS
HS = 544; SR = 4 * HS
L_IMG = 65536
L_Q   = L_IMG + 4 * IMG
L_P   = L_Q + 1536
L_Z   = L_P + 2048
L_ORED = L_Z + 512
L_LS  = L_ORED + 4 * SR
L_MW  = L_LS + 64
L_DI  = L_MW + 64
L_RED = L_DI + 2048
L_ST  = L_RED + 2048
L_X1  = L_ST + 64
L_RS  = L_X1 + 2048
L_FL  = L_RS + 8192
F_Q, F_S, F_S2, F_P, F_M, F_H, F_E, F_G, F_GI, F_G2, F_I, F_L, F_RS, F_YI, F_CS, F_ST = [4*k for k in range(16)]
F_VI, F_G3 = 96, 100
F_K, F_PR = 64, 80
L_END = L_FL + 128
TAGMASK = 0xFFF
BUDGET = 1 << 21

sG, sR, sB, sS = 4, 5, 6, 7
pX, pK, pV, pWQ, pWO, pWG, pWU, pWD, pC, pWM, pOUT, pWS = 8, 10, 12, 14, 16, 20, 22, 24, 26, 28, 30, 32
rWS, rA, rB, rC = 32, 36, 40, 44
sE, sMASK, sOFF, sB1, sB2, sCNT, sW, sSLOW, sB4, sMK, sLO, sHI, sT0, sT1, sT2, sT3 = range(48, 64)
sXC, sB3 = 18, 19
sBUD, sFB, sRB, sGF = 96, 97, 98, 99
sMR_, sMG_ = 100, 101
TS0 = 64
VT, VTA = 1, 15
SC = math.log2(math.e) / math.sqrt(128.0)
L2E = -math.log2(math.e)

def gen(NM=8, NM2=8, nswm=28, NQ=8, n1=4, n1w=0, n2=2, kr=12, k1=12, gr=16, g2m=25, g2q=27, NTT=8,
        kvfl='nt', hfl='nt', ts=False, fb=64, fsleep=19, leak=None, forceslow=0, ne=4, p2at=0, fack=0, idle=4,
        dns=((0,[1]),(4,[2]),(8,[3])), plate=False, g3m=None, g3q=None, prio=0, xmap=False, prioA=0, NQ1=None, nswq=38, pre=0, gp=22, sord=True, npw=8, ndp=0, dpos=24, opf=0, rde=True, mcs=2, yl=True, fl_=False, inl=True, trim=0, fpt=2, gbl=False, wsh=False, hdel=0, pdel=0, odel=0, wdel=0, cln=0):
    assert not (gbl and xmap)
    assert not (yl and opf)
    if opf: dns = [(opf + 4, [0, 1, 2, 3])]
    assert not (pre and g3m)
    if leak: ts = True
    a = Asm()
    cold = Asm()
    uid = [0]
    def U(p): uid[0] += 1; return f'{p}_{uid[0]}'
    def stamp(k):
        if ts: a(f's_memrealtime {sr(TS0 + 2*k, 2)}')
    def srd(r, p, size):
        a(f's_mov_b64 {sr(r,2)}, {sr(p,2)}\ns_mov_b32 s{r+2}, {size}\ns_mov_b32 s{r+3}, 0x20000')
    def sig(off, n=1, va=13): a(f's_mov_b64 exec, {(1<<n)-1}\nds_add_u32 v{va}, v14 offset:{off}\ns_mov_b64 exec, -1')
    def budget(): a(f's_sub_u32 s{sBUD}, s{sBUD}, 1\ns_cbranch_scc1 L_end')
    def spin(vt, off, n, sleep=0, extra=None, va=13):
        l = U('L_spin')
        if sleep:
            l2 = U('L_spin')
            cold.lab(l2); cold(f's_sleep {sleep}\ns_branch {l}')
        a.lab(l)
        a(f'ds_read_b32 v{vt}, v{va} offset:{off}')
        if extra: a(extra)
        budget()
        a(f's_waitcnt lgkmcnt(0)\nv_cmp_gt_u32 vcc, {n}, v{vt}\ns_cbranch_vccnz {l2 if sleep else l}')
    def orall(fs, vacc):
        fs = list(fs)
        if len(fs) % 2: a(f'v_or3_b32 v{vacc}, v{fs[0]}, v{fs[1]}, v{fs[2]}'); fs = fs[3:]
        else: a(f'v_or_b32 v{vacc}, v{fs[0]}, v{fs[1]}'); fs = fs[2:]
        while fs: a(f'v_or3_b32 v{vacc}, v{vacc}, v{fs[0]}, v{fs[1]}'); fs = fs[2:]
        a(f'v_and_b32 v{vacc}, s{sMASK}, v{vacc}\nv_cmp_ne_u32 vcc, 0, v{vacc}')
    def poll(loads, firsts, vacc, vt=VT, check=None, cnt=None, after_issue=None, first=None, noload=False, retry=None):
        nonlocal a
        c, l = U('L_chk'), U('L_poll')
        if inl and not retry and (not first or first[1] == 0):
            if ts and cnt is not None: a(f's_mov_b32 s{TS0+2*cnt}, {1 if first else 0}')
            if first:
                if not noload: loads()
                first[0]()
                a(f's_branch {c}')
            a.lab(l)
            loads()
            if after_issue: after_issue()
            if ts and cnt is not None: a(f's_add_u32 s{TS0+2*cnt}, s{TS0+2*cnt}, 1')
            budget()
            a.lab(c)
            a('s_waitcnt vmcnt(0)')
            if check: check()
            else:
                for f in firsts: a(f'v_xor_b32 v{f}, v{f}, v{vt}')
                orall(firsts, vacc)
            a(f's_cbranch_vccnz {l}')
            return
        if ts and cnt is not None: a(f's_mov_b32 s{TS0+2*cnt}, 1')
        if not noload: loads()
        if first: first[0]()
        elif after_issue: after_issue()
        a(f's_waitcnt vmcnt({first[1] if first else 0})')
        a.lab(c)
        if check: check()
        else:
            for f in firsts: a(f'v_xor_b32 v{f}, v{f}, v{vt}')
            orall(firsts, vacc)
        a(f's_cbranch_vccnz {l}')
        hot, a = a, Asm()
        a.lab(l)
        if retry: retry()
        loads()
        if after_issue: after_issue()
        if ts and cnt is not None: a(f's_add_u32 s{TS0+2*cnt}, s{TS0+2*cnt}, 1')
        budget()
        a(f's_waitcnt vmcnt(0)\ns_branch {c}')
        cold.L += a.L
        a = hot
    def tagit(v, vt=VT): a(f'v_bfi_b32 v{v}, s{sMASK}, v{vt}, v{v}')
    def mktag():
        a(f's_getreg_b32 s{sXC}, hwreg(HW_REG_XCC_ID, 0, 3)')
        if forceslow: a(f's_cmp_eq_u32 s{sR}, {forceslow}\ns_cselect_b32 s{sXC}, 1, 0')
        a(f's_lshl_b32 s{sXC}, s{sXC}, 9\nv_and_b32 v{VT}, 3, v0\nv_mul_u32_u24 v{VT}, 0x2d5, v{VT}\ns_waitcnt lgkmcnt(0)\ns_add_u32 s{sE}, s{sE}, 1\nv_add_u32 v{VT}, s{sE}, v{VT}')
        a(f'v_add_u32 v{VTA}, s{sXC}, v{VT}\nv_and_b32 v{VT}, s{sMASK}, v{VT}\nv_and_b32 v{VTA}, s{sMASK}, v{VTA}')
    def red4(Rs, dsts):
        for R in Rs: a(f'v_permlane32_swap_b32 v{R}, v{R+2}\nv_permlane32_swap_b32 v{R+1}, v{R+3}')
        for R in Rs: a(f'v_pk_add_f32 {vr(R,2)}, {vr(R,2)}, {vr(R+2,2)}')
        for R in Rs: a(f'v_permlane16_swap_b32 v{R}, v{R+1}')
        for R, d_ in zip(Rs, dsts): a(f'v_add_f32 v{d_}, v{R}, v{R+1}')
    def add4(D, X): a(f'v_pk_add_f32 {vr(D,2)}, {vr(D,2)}, {vr(X,2)}\nv_pk_add_f32 {vr(D+2,2)}, {vr(D+2,2)}, {vr(X+2,2)}')
    def tree(R, n):
        st = 4
        while n > 1:
            for k in range(0, n, 2): add4(R + st*k, R + st*(k+1))
            st *= 2; n //= 2
    def sum4(R, vaddr, stride):
        for w in range(4): a(f'ds_read_b128 {vr(R + 4*w, 4)}, v{vaddr} offset:{stride*w}')
        for w in range(1, 4):
            a(f's_waitcnt lgkmcnt({3-w})'); add4(R, R + 4*w)
    def hilo(dsts, srcs, tmps):
        for t, x in zip(tmps, srcs): a(f'v_and_b32 v{t}, 0xffff0000, v{x}')
        for t, x in zip(tmps, srcs): a(f'v_sub_f32 v{t}, v{x}, v{t}')
        for d_, t, x in zip(dsts, tmps, srcs): a(f'v_perm_b32 v{d_}, v{x}, v{t}, s{sHI}')
    def parity(dst, D):
        a(f'v_add_f32_dpp v{dst}, v{D+1}, v{D} row_ror:8 row_mask:0xf bank_mask:0x3')
        a(f'v_add_f32_dpp v{dst}, v{D+2}, v{D+3} row_ror:8 row_mask:0xf bank_mask:0xc')
    def smf(D, A_, B_, vi): a(f'v_smfmac_f32_16x16x64_bf16 {vr(D,4)}, {vr(A_,4)}, {vr(B_,8)}, v{vi}')
    def sadd(dst, *terms):
        first = True
        for t in terms:
            if isinstance(t, tuple):
                r, sh = t
                if first: a(f's_lshl_b32 s{dst}, s{r}, {sh}')
                elif 1 <= sh <= 4: a(f's_lshl{sh}_add_u32 s{dst}, s{r}, s{dst}')
                elif sh == 0: a(f's_add_u32 s{dst}, s{dst}, s{r}')
                else: a(f's_lshl_b32 s{sT0}, s{r}, {sh}\ns_add_u32 s{dst}, s{dst}, s{sT0}')
            else: a(f's_add_u32 s{dst}, s{dst}, {t}')
            first = False
    def vadd(dst, *terms):
        first = True
        for t in terms:
            if isinstance(t, tuple):
                r, sh = t
                if first: a(f'v_lshlrev_b32 v{dst}, {sh}, v{r}')
                else: a(f'v_lshl_add_u32 v{dst}, v{r}, {sh}, v{dst}')
            else: a(f'v_add_u32 v{dst}, {t}, v{dst}')
            first = False
    def oprec(dst):
        sadd(dst, (sG, 5), (sB, 3), (sS, 0))
        a(f's_mul_i32 s{dst}, s{dst}, {OPS}\ns_add_u32 s{dst}, s{dst}, {WS_OP}')
    def qprec(dst): sadd(dst, (sG, 15), (sR, 9), WS_QP - 16*512)
    def yprec(dst):
        a(f's_and_b32 s{sT1}, s{sR}, 1\ns_bfe_u32 s{sT2}, s{sR}, 0x30001')
        sadd(dst, (sT1, 15), (sT2, 11), (sG, 8), WS_YP)
    def imgbase(): a(f's_mul_i32 s{sT3}, s{sW}, {IMG}\ns_add_u32 s{sT3}, s{sT3}, {L_IMG}')
    def pubdup(V, n, vaddr, sbase, tag=True):
        l, b = U('L_dup'), U('L_dupb')
        a(f's_cmp_lg_u32 s{sSLOW}, 0\ns_cbranch_scc1 {l}')
        a.lab(b)
        cold.lab(l)
        cold(f's_add_u32 s{sOFF}, s{sbase}, {WS_B}\ns_nop 1')
        if tag: cold(f'v_bfi_b32 v{V}, s{sMASK}, v{VT}, v{V}')
        cold(f'buffer_store_dwordx{n} {vr(V,n)}, v{vaddr}, {sr(rWS,4)}, s{sOFF} offen sc1\ns_nop 1\ns_branch {b}')
    def zero_ts():
        if ts:
            for k in range(2, 16): a(f's_mov_b32 s{TS0+2*k}, 0')
    def common():
        a(f's_load_dword s{sE}, s[32:33], 0\ns_mov_b32 s34, 0x10000000\ns_mov_b32 s35, 0x20000\ns_movk_i32 s{sMASK}, {TAGMASK}\ns_mov_b32 s{sBUD}, {BUDGET}')
        a(f'v_mov_b32 v13, {L_FL}\nv_mov_b32 v14, 1\nv_lshlrev_b32 v6, 4, v0\ns_mov_b32 s{sHI}, 0x07060302')
        a(f's_cmp_eq_u32 s{sG}, 7\ns_cselect_b32 s{sGF}, {idle}, s{sG}\ns_cmp_eq_u32 s{sG}, {idle}\ns_cselect_b32 s{sGF}, 7, s{sGF}')

    W0, AR, AC, VI = 64, 32, 24, 63
    sMR, sMG = (sMR_, sMG_) if xmap else (sR, sG)
    a.lab(f'{NAME}_kernel')
    a('s_load_dwordx16 s[8:23], s[0:1], 0\ns_load_dwordx8 s[24:31], s[0:1], 64\ns_load_dwordx2 s[32:33], s[0:1], 104')
    stamp(0)
    a('s_cmpk_ge_u32 s2, 256\ns_cbranch_scc1 L_end')
    a(f'v_lshrrev_b32 v1, 6, v0\ns_and_b32 s{sG}, s2, 7\nv_readfirstlane_b32 s3, v1\ns_lshr_b32 s{sR}, s2, 3\ns_and_b32 s{sB}, s{sR}, 3\ns_lshr_b32 s{sS}, s{sR}, 2')
    a('v_bfe_u32 v7, v0, 4, 2\nv_and_b32 v8, 15, v0\nv_and_b32 v9, 7, v0\nv_bfe_u32 v10, v0, 3, 1')
    if xmap:
        a(f's_lshr_b32 s{sT0}, s{sR}, 1\ns_xor_b32 s{sT0}, s{sT0}, s{sG}\ns_and_b32 s{sT0}, s{sT0}, 4\ns_xor_b32 s{sMG}, s{sG}, s{sT0}\ns_lshl_b32 s{sT0}, s{sT0}, 1\ns_xor_b32 s{sMR}, s{sR}, s{sT0}')
    a(f's_and_b32 s{sW}, s3, 3\ns_cmp_gt_u32 s3, 1\ns_cbranch_scc1 L_other')
    sSTEP = sLO
    a(f's_and_b32 s{sRB}, s{sMG}, 6\ns_add_u32 s{sRB}, s{sRB}, s{sW}\ns_and_b32 s{sFB}, s{sMG}, 1\ns_lshl1_add_u32 s{sFB}, s{sMR}, s{sFB}\ns_sub_u32 s{sFB}, s{sFB}, 8')
    a(f's_cmp_lt_u32 s{sMR}, 8\ns_cselect_b32 s{sRB}, s{sMG}, s{sRB}\ns_cselect_b32 s{sFB}, s{sMR}, s{sFB}\ns_cselect_b32 s{sT3}, s{sW}, 0')
    if gbl: a(f's_cmp_ge_u32 s{sFB}, 20\ns_cselect_b32 s{sT3}, 1, s{sT3}')
    a(f's_lshl1_add_u32 s{sT0}, s{sB}, s{sW}\ns_lshl2_add_u32 s{sT1}, s{sG}, s{sS}\ns_sub_u32 s{sT1}, s{sT1}, 4\ns_movk_i32 s{sSTEP}, 6144')
    a(f's_cmp_ge_u32 s{sR}, 16\ns_cselect_b32 s{sRB}, s{sT0}, s{sRB}\ns_cselect_b32 s{sFB}, s{sT1}, s{sFB}\ns_cselect_b32 s{sSTEP}, 0x2000, s{sSTEP}' + (f'\ns_cselect_b32 s{sT3}, 0, s{sT3}' if gbl else ''))
    a(f's_mul_i32 s{rA+2}, s{sSTEP}, 512\ns_mul_i32 s{sB1}, s{sRB}, s{sSTEP}\ns_mul_i32 s{sB2}, s{sRB}, 128')
    a(f'v_mul_u32_u24 v2, s{sSTEP}, v7\nv_lshl_add_u32 v2, v8, 4, v2')
    vadd(3, (7, 10), (9, 4), (10, 3))
    a(f's_mov_b32 s{rA+3}, 0x20000\ns_movk_i32 s{rB+2}, 4096\ns_mov_b32 s{rB+3}, s{rA+3}')
    a('s_waitcnt lgkmcnt(0)')
    a(f's_cselect_b64 {sr(rA,2)}, {sr(pWQ,2)}, {sr(pWM,2)}\ns_cselect_b64 {sr(rB,2)}, {sr(pX,2)}, {sr(pC,2)}')
    a(f's_lshl2_add_u32 s{sB1}, s{sFB}, s{sB1}\ns_lshl_b32 s{sB1}, s{sB1}, 6\ns_lshl_b32 s{sSTEP}, s{sSTEP}, 2')
    a(f's_cmp_eq_u32 s{sT3}, 1\ns_cbranch_scc1 L_T_setup')
    stamp(1)
    a(f'buffer_load_dwordx2 v[4:5], v3, {sr(rB,4)}, s{sB2} offen')
    for i in range(16):
        a(f'buffer_load_dwordx4 {vr(W0+4*i,4)}, v2, {sr(rA,4)}, s{sB1} offen {hfl}')
        if i < 15: a(f's_add_u32 s{sB1}, s{sB1}, s{sSTEP}')
    a(f's_cmp_lt_u32 s{sR}, 16\ns_cbranch_scc1 L_T_setup')
    vadd(11, (7, 10), (8, 4))
    for j in range(4): a(f'buffer_load_dwordx4 {vr(AR+4*j,4)}, v11, {sr(rB,4)}, 0 offen offset:{256*j}')
    a('s_branch L_T_setup')
    a.lab('L_other')
    a('s_cmp_lt_u32 s3, 4\ns_cbranch_scc1 L_T23_issue')
    a(f's_cmp_lt_u32 s2, 8\ns_cbranch_scc0 L_A\ns_getpc_b64 {sr(sB4,2)}')
    a.lab('L_pc')
    a(f'v_and_b32 v2, 0xff, v0\nv_lshlrev_b32 v2, 7, v2\nv_cmp_gt_u32 vcc, L_codeend-L_pc, v2\ns_and_saveexec_b64 {sr(sT0,2)}, vcc\ns_cbranch_execz L_pfx')
    a(f'global_load_dword v63, v2, {sr(sB4,2)}')
    a.lab('L_pfx')
    a('s_mov_b64 exec, -1\ns_branch L_A')
    a.lab('L_T23_issue')
    a(f'v_and_b32 v4, 31, v0\nv_lshlrev_b32 v4, 2, v4\nv_add_u32 v4, {L_FL}, v4\nv_mov_b32 v3, 0\nds_write_b32 v4, v3\ns_waitcnt lgkmcnt(0)')
    a.lab('L_T_setup')
    if prio: a(f's_setprio {prio}')
    a('v_and_b32 v0, 63, v0')
    common()
    zero_ts()
    imgbase()
    a(f'v_mov_b32 v16, 0\nv_mov_b32 v17, 0\nv_mov_b32 v18, 0\nv_mov_b32 v19, 0\nv_add_u32 v20, s{sT3}, v6')
    for k in range(4): a(f'ds_write_b128 v20, v[16:19] offset:{1024*k}')
    a(f's_mov_b32 exec_hi, 0\nds_write_b128 v20, v[16:19] offset:4096\nv_add_u32 v20, {L_Z}, v6\nds_write_b128 v20, v[16:19]\ns_mov_b32 exec_hi, -1')
    a(f's_cmp_eq_u32 s{sW}, 1\ns_cbranch_scc0 L_T_gate\ns_waitcnt vmcnt({max(kr, k1 + 4)})')
    if kr != k1 + 4:
        a(f's_cmp_lt_u32 s{sR}, 16\ns_cbranch_scc{1 if kr > k1 + 4 else 0} L_T_gate\ns_waitcnt vmcnt({min(kr, k1 + 4)})')
    a.lab('L_T_gate')
    a('s_barrier')
    mktag()
    KF, QF, DD = 128, 192, 208
    def qk_setup():
        a(f's_lshl_b32 s{sT1}, s{sW}, 14\nv_and_b32 v17, 3, v0\nv_lshrrev_b32 v18, 2, v8\nv_lshl_add_u32 v19, v17, 2, v18\nv_xor_b32 v16, v7, v8')
        vadd(48, (16, 4), (19, 8), f's{sT1}')
        a('v_xor_b32 v49, 64, v48\nv_xor_b32 v50, 0x80, v48\nv_xor_b32 v51, 0xc0, v48')
        a(f'v_mul_u32_u24 v52, 320, v17\nv_lshl_add_u32 v52, v7, 4, v52\nv_add_u32 v52, {L_Q}, v52')
        a(f's_lshl_b32 s{sT1}, s{sW}, 2\nv_add_u32 v53, s{sT1}, v13\ns_add_u32 s{sT1}, s{sT1}, {L_MW}\nv_add_u32 v62, s{sT1}, v6')
        sadd(sT1, (sW, 9), L_P)
        a('v_and_b32 v18, 1, v18')
        vadd(54, (18, 3), (17, 4), (7, 6), (10, 8), f's{sT1}')
        a(f's_mul_i32 s{sT1}, s{sW}, {HS}\ns_add_u32 s{sT1}, s{sT1}, {L_ORED}\nv_add_u32 v55, s{sT1}, v6')
        oprec(sB3)
    def WG_(sg): return 64 + 16*sg
    def WU_(sg): return 72 + 16*sg
    post = (list(range(4)) + sorted(range(4, 16), key=lambda i: (sord and (i & 3) >= pre, i))) if pre else [i for i in range(16) if i & 3 == 0] + [i for i in range(16) if i & 3]
    def f_setup():
        srd(rA, pWG, 512*3584); srd(rB, pWU, 512*3584)
        sadd(sT1, (sGF, 2), (sS, 0))
        a(f's_mul_i32 s{sFB}, s{sW}, {128*3584}\ns_lshl_b32 s{sT0}, s{sT1}, 7\ns_add_u32 s{sFB}, s{sFB}, s{sT0}\ns_lshl_b32 s{sLO}, s{sB}, {2 if pre else 0}')
        a('v_lshrrev_b32 v12, 3, v0\nv_mul_u32_u24 v12, 3584, v12\nv_lshl_add_u32 v12, v9, 4, v12')
    def fld(lo, hi, hook=None):
        for n in range(lo, hi):
            i = post[n]
            if 2*(n - ne - pre) >= NTT: a(f's_waitcnt vmcnt({NTT-2})')
            a(f's_xor_b32 s{sT0}, s{sLO}, {i}\ns_mul_i32 s{sT0}, s{sT0}, {8*3584}\ns_add_u32 s{sOFF}, s{sFB}, s{sT0}')
            a(f'buffer_load_dwordx4 {vr(WG_(i >> 1) + 4*(i & 1), 4)}, v12, {sr(rA,4)}, s{sOFF} offen')
            a(f'buffer_load_dwordx4 {vr(WU_(i >> 1) + 4*(i & 1), 4)}, v12, {sr(rB,4)}, s{sOFF} offen')
            if hook: hook(n)
    def f_pre():
        if not (pre or rde): return
        l = U('L_fp')
        a(f's_cmp_ge_u32 s{sR}, 16\ns_cbranch_scc1 {l}\ns_cmp_eq_u32 s{sGF}, 7\ns_cbranch_scc1 {l}')
        f_setup()
        if rde:
            srd(rC, pX, 4096)
            vadd(21, (9, 4), (10, 3), (7, 1))
            sadd(sT2, (sB, 10), (sW, 8))
        spin(16, F_G3, 2, sleep=1)
        if rde: a(f'buffer_load_ushort v22, v21, {sr(rC,4)}, s{sT2} offen\nbuffer_load_ushort v23, v21, {sr(rC,4)}, s{sT2} offen offset:128')
        fld(0, pre)
        a.lab(l)
    def kread():
        spin(16, F_K, 1, va=53)
        for t in range(4):
            for j in range(4): a(f'ds_read_b128 {vr(KF + 16*t + 4*j, 4)}, v{48+j} offset:{4096*t}')
    a(f's_cmp_gt_u32 s{sW}, 1\ns_cbranch_scc1 L_T23_job')
    sig(F_E)
    a(f's_cmp_lt_u32 s{sMR}, 8\ns_cselect_b32 s{sT0}, s{sW}, 0\ns_cmp_eq_u32 s{sT0}, 1\ns_cbranch_scc1 L_T1_red')
    if gbl:
        a(f's_lshr_b32 s{sT0}, s{sR}, 1\ns_cmp_eq_u32 s{sT0}, 7\ns_cbranch_scc1 L_T_k\ns_mov_b32 s{sCNT}, 0')
        a.lab('L_T_job')
    a('v_bfe_u32 v16, v0, 2, 1')
    vadd(12, (16, 7), (7, 5), (10, 4), f's{sT3}')
    a(f'v_and_b32 v{VI}, 3, v0\nv_mul_u32_u24 v{VI}, 0x5555, v{VI}')
    a(f'v_lshrrev_b32 v18, 5, v0\nv_mul_u32_u24 v16, {PASS}, v18\nv_mul_u32_u24 v17, {SIG}, v9\nv_add3_u32 v11, v16, v17, s{sT3}')
    a('v_and_b32 v17, 1, v7\nv_lshl_add_u32 v11, v17, 4, v11\nv_lshl_add_u32 v11, v10, 6, v11')
    for i in range(8): a(f'v_mov_b32 v{AC+i}, 0')
    vadd(2, (17, 7), (9, 4))
    a(f's_lshl_b32 s{sT0}, s{sW}, 10\ns_add_u32 s{sT1}, s{sT0}, {L_RED}\nv_add_u32 v56, s{sT1}, v6\ns_sub_u32 s{sT1}, {L_RED + 1024}, s{sT0}\nv_add_u32 v57, s{sT1}, v6')
    a(f's_cmp_ge_u32 s{sR}, 16\ns_cbranch_scc1 L_TQ_job')
    a('v_lshl_add_u32 v2, v18, 11, v2\nv_lshl_add_u32 v2, v10, 13, v2')
    a(f's_lshr_b32 s{sT1}, s{sMG}, 1\ns_cmp_lt_u32 s{sMR}, 8\ns_cselect_b32 s{sT1}, s{sMG}, s{sT1}')
    sadd(sB1, (sFB, 14), (sT1, 8), (sW, 12), WS_MOD)
    a(f's_add_u32 s{sB2}, s{sB1}, 4096\ns_mov_b32 s{sT0}, {f32(L2E)}')
    a('s_waitcnt vmcnt(16)')
    a('v_lshlrev_b32 v16, 16, v4\nv_and_b32 v17, 0xffff0000, v4\nv_lshlrev_b32 v18, 16, v5\nv_and_b32 v19, 0xffff0000, v5')
    for r in range(4): a(f'v_mul_f32 v{20+r}, s{sT0}, v{16+r}')
    for r in range(4): a(f'v_exp_f32 v{20+r}, v{20+r}')
    for r in range(4): a(f'v_add_f32 v{20+r}, 1.0, v{20+r}')
    for r in range(4): a(f'v_rcp_f32 v{20+r}, v{20+r}')
    for r in range(4): a(f'v_mul_f32 v{16+r}, v{16+r}, v{20+r}')
    hilo(range(16, 20), range(16, 20), range(20, 24))
    def imgw4():
        a('ds_write2_b32 v11, v16, v17 offset0:0 offset1:2\nds_write2_b32 v11, v18, v19 offset0:8 offset1:10')
        a('ds_write2_b32 v11, v16, v17 offset0:33 offset1:35\nds_write2_b32 v11, v18, v19 offset0:41 offset1:43')
    a(f's_cmp_ge_u32 s{sMR}, 8\ns_cbranch_scc1 L_T_pair')
    imgw4()
    for sg in range(8):
        for p in range(2): a(f'ds_read_b128 {vr(128 + 32*p + 4*sg, 4)}, v12 offset:{p*PASS + sg*SIG}')
    for sg in range(8):
        a(f's_waitcnt vmcnt({14 - 2*sg}) lgkmcnt({14 - 2*sg})')
        for p in range(2): smf(AC + 4*p, 128 + 32*p + 4*sg, W0 + 8*sg, VI)
    tagit(AC); tagit(AC+4)
    a(f'buffer_store_dwordx4 {vr(AC,4)}, v2, {sr(rWS,4)}, s{sB1} offen sc1\nbuffer_store_dwordx4 {vr(AC+4,4)}, v2, {sr(rWS,4)}, s{sB2} offen sc1')
    sig(F_H)
    if gbl: a(f's_cmp_eq_u32 s{sCNT}, 1\ns_cbranch_scc1 L_fin')
    stamp(2)
    a('s_branch L_T_k')
    a.lab('L_T1_red')
    a(f's_and_b32 s{sT2}, s{sS}, 1')
    sadd(sT1, (sT2, 3), (sMG, 0))
    if gbl: a(f's_cmp_ge_u32 s{sT1}, 12\ns_cbranch_scc1 L_T_k')
    sadd(sB1, (sT1, 14), (sB, 11), WS_MOD + 8*16384)
    a(f's_add_u32 s{sB2}, s{sB1}, 8192')
    sadd(sB4, (sB, 13), (sT1, 9), WS_RD)
    vadd(3, (8, 4), (7, 2), L_RED)
    a(f'v_add_u32 v4, {L_RED}, v6')
    spin(16, F_G, 2, sleep=1)
    def lr():
        for sg in range(2): a(f'buffer_load_dwordx4 {vr(W0 + 4*sg, 4)}, v6, {sr(rWS,4)}, s{sB2 if sg else sB1} offen sc1')
    poll(lr, [W0, W0 + 4], 16, cnt=12)
    red4([W0, W0 + 4], [16, 17])
    a('ds_write2_b32 v3, v16, v17 offset0:0 offset1:64\ns_mov_b32 exec_hi, 0\nds_read_b128 v[20:23], v4\ns_waitcnt lgkmcnt(0)')
    tagit(20)
    a(f'buffer_store_dwordx4 v[20:23], v6, {sr(rWS,4)}, s{sB4} offen sc1\ns_mov_b32 exec_hi, -1')
    stamp(2)
    a.lab('L_T_k')
    qk_setup()
    a.lab('L_T_k2')
    f_pre()
    kread()
    a('s_branch L_T_qk')
    a.lab('L_TQ_job')
    a('v_lshl_add_u32 v2, v18, 13, v2\nv_lshl_add_u32 v2, v10, 8, v2')
    qprec(sB1)
    a(f's_lshl_b32 s{sT0}, s{sW}, 14\ns_add_u32 s{sB1}, s{sB1}, s{sT0}')
    a('s_waitcnt vmcnt(0)')
    X = 128
    for i in range(16):
        a(f'v_lshlrev_b32 v{X+2*i}, 16, v{AR+i}\nv_and_b32 v{X+2*i+1}, 0xffff0000, v{AR+i}')
    a(f'v_pk_add_f32 v[16:17], {vr(X,2)}, {vr(X+2,2)}')
    for i in range(2, 16): a(f'v_pk_add_f32 v[16:17], v[16:17], {vr(X+2*i,2)}')
    a('v_add_f32 v16, v16, v17')
    def rowsum(v):
        for k in (1, 2, 4, 8): a(f'v_add_f32_dpp v{v}, v{v}, v{v} row_ror:{k} row_mask:0xf bank_mask:0xf')
    rowsum(16)
    a(f'v_mul_f32 v16, {f32(-1.0/512)}, v16\nv_mov_b32 v17, v16\nv_mov_b32 v18, 0\nv_mov_b32 v19, 0')
    for i in range(16):
        a(f'v_pk_add_f32 {vr(X+2*i,2)}, {vr(X+2*i,2)}, v[16:17]\nv_pk_fma_f32 v[18:19], {vr(X+2*i,2)}, {vr(X+2*i,2)}, v[18:19]')
    a('v_add_f32 v18, v18, v19')
    rowsum(18)
    a(f'v_mov_b32 v19, {f32(1e-5)}\nv_fmac_f32 v19, {f32(1.0/512)}, v18\nv_rsq_f32 v19, v19')
    a('v_lshlrev_b32 v20, 16, v4\nv_and_b32 v21, 0xffff0000, v4\nv_lshlrev_b32 v22, 16, v5\nv_and_b32 v23, 0xffff0000, v5')
    for r in range(4): a(f'v_add_f32 v{20+r}, v{20+r}, v16')
    for r in range(4): a(f'v_mul_f32 v{20+r}, v{20+r}, v19')
    vadd(3, (7, 11), (8, 4))
    sadd(sT1, (sRB, 13), WS_MOD)
    a(f's_add_u32 s{sT2}, s{sT1}, 65536')
    spin(16, F_G, 4)
    stamp(2)
    def l1():
        for sg in range(2):
            for kp in range(8): a(f'buffer_load_dwordx4 {vr(X + 32*sg + 4*kp, 4)}, v3, {sr(rWS,4)}, s{sT2 if sg else sT1} offen offset:{256*kp} sc1')
    def l1f():
        sig(F_GI)
        spin(16, F_E, 8)
    poll(l1, [X + 4*k for k in range(16)], 16, cnt=12, first=(l1f, 0))
    stamp(3)
    if hdel: a(f's_sleep {hdel}')
    tree(X, 8); tree(X + 32, 8)
    add4(X, 20)
    a(f'v_pk_fma_f32 {vr(X,2)}, {vr(X+32,2)}, v[20:21], {vr(X,2)}\nv_pk_fma_f32 {vr(X+2,2)}, {vr(X+34,2)}, v[22:23], {vr(X+2,2)}')
    hilo(range(16, 20), range(X, X+4), range(16, 20))
    a.lab('L_T_pair')
    imgw4()
    a(f's_xor_b32 s{sT0}, s{sW}, 1\ns_mul_i32 s{sT0}, s{sT0}, {PASS}\nv_add_u32 v3, s{sT0}, v12\ns_mul_i32 s{sT0}, s{sW}, {PASS}\nv_add_u32 v4, s{sT0}, v12')
    for p in range(2):
        for sg in range(8): a(f'ds_read_b128 {vr(128 + 32*p + 4*sg, 4)}, v{3+p} offset:{sg*SIG}')
    a('s_waitcnt vmcnt(0)')
    for p in range(2):
        for sg in range(8):
            if p == 0 or sg <= 3: a(f's_waitcnt lgkmcnt({(15 - sg) if p == 0 else (7 - sg if sg < 3 else 0)})')
            smf(AC + 4*p, 128 + 32*p + 4*sg, W0 + 8*sg, VI)
            if p == 1 and sg == 3:
                a(f'ds_write_b128 v57, {vr(AC,4)}')
                sig(F_I)
    spin(16, F_I, 2, extra='ds_read_b128 v[20:23], v56')
    add4(AC + 4, 20)
    a(f's_cmp_lt_u32 s{sR}, 16\ns_cbranch_scc1 L_T_late')
    cold.lab('L_T_late')
    cold(f'v_bfi_b32 v{AC+4}, s{sMASK}, v{VT}, v{AC+4}\nbuffer_store_dwordx4 {vr(AC+4,4)}, v2, {sr(rWS,4)}, s{sB1} offen sc1')
    if ts: cold(f's_memrealtime {sr(TS0 + 4, 2)}')
    cold('s_branch L_T_k')
    tagit(AC+4, VTA)
    a(f'buffer_store_dwordx4 {vr(AC+4,4)}, v2, {sr(rWS,4)}, s{sB1} offen')
    sig(F_P)
    stamp(4)
    qk_setup()
    kread()
    a.lab('L_qs')
    a(f'ds_read_b64 v[16:17], v13 offset:{F_Q}')
    budget()
    a(f's_waitcnt lgkmcnt(0)\nv_or_b32 v18, v16, v17\nv_readfirstlane_b32 s{sSLOW}, v17\nv_cmp_eq_u32 vcc, 0, v18\ns_cbranch_vccnz L_qs')
    a(f's_cmp_eq_u32 s{sSLOW}, 0\ns_cbranch_scc1 L_T_qk2')
    pubdup(AC+4, 4, 2, sB1)
    a('s_branch L_T_qk')
    a.lab('L_T23_job')
    qk_setup()
    a(f's_cmp_eq_u32 s{sW}, 2\ns_cbranch_scc1 L_T2_pre')
    sig(F_E)
    a(f's_cmp_lt_u32 s{sR}, 16\ns_cbranch_scc1 L_T_k2')
    qprec(sB1)
    vadd(2, (17, 7), (7, 13))
    a(f'buffer_load_dword v97, v2, {sr(rWS,4)}, s{sB1} offen')
    yprec(sB1)
    a('v_lshrrev_b32 v3, 5, v0')
    if yl:
        a('v_and_b32 v4, 1, v7')
        vadd(2, (3, 14), (10, 7), (4, 16))
    else: vadd(2, (3, 14), (10, 7))
    a(f'buffer_load_dword v97, v2, {sr(rWS,4)}, s{sB1} offen')
    a('s_branch L_T_k2')
    a.lab('L_T2_pre')
    a('v_min_u32 v2, 8, v0\nv_lshlrev_b32 v2, 7, v2')
    for i in range(8): a(f'v_mov_b32 v{32+i}, 0')
    a(f's_cmp_ge_u32 s{sR}, 16\ns_cbranch_scc1 L_T2_q')
    spin(16, F_E, 7, sleep=1)
    if fpt == 1:
      sadd(sT1, (sGF, 2), (sS, 0))
      sadd(sB1, (sT1, 7), (sB, 16), WS_FP)
      a(f'v_lshrrev_b32 v3, 2, v0\nv_lshlrev_b32 v3, 12, v3\nbuffer_load_dword v97, v3, {sr(rWS,4)}, s{sB1} offen')
    a.lab('L_T2_q')
    a(f'buffer_load_dword v97, v2, {sr(rWS,4)}, s{sB3} offen\nbuffer_store_dwordx4 v[32:35], v6, {sr(rWS,4)}, s{sB3} offen')
    sadd(sB1, (sG, 15), (sB, 13), WS_QP)
    a('v_lshrrev_b32 v3, 5, v0\nv_and_b32 v4, 31, v0')
    vadd(2, (4, 4), (3, 11))
    a('v_add_u32 v59, 4096, v2')
    a(f'v_bfe_u32 v56, v0, 2, 2\nv_lshl_add_u32 v56, v7, 3, v56\nv_mul_u32_u24 v56, {OPS}, v56\nv_lshl_add_u32 v56, v17, 4, v56')
    a(f's_mul_i32 s{sB4}, s{sG}, {32*OPS}\ns_add_u32 s{sB4}, s{sB4}, {WS_OP}')
    a(f'v_and_b32 v4, 1, v7\nv_mul_u32_u24 v11, 320, v3\nv_lshl_add_u32 v11, v4, 7, v11\nv_lshl_add_u32 v11, v9, 4, v11\nv_lshl_add_u32 v11, v10, 3, v11\nv_add_u32 v11, {L_Q}, v11')
    a(f'v_mov_b32 v4, v{VTA}\nv_xor_b32 v5, v{VT}, v{VTA}\nv_mov_b32 v36, v{VTA}\ns_mov_b32 s{sCNT}, 0\ns_waitcnt vmcnt(0)')
    a(f's_mov_b64 exec, 0xf0\nbuffer_store_dwordx4 v[36:39], v6, {sr(rWS,4)}, s{sB3} offen offset:1024')
    sig(F_E)
    f_pre()
    if pre: W0 = 224
    spin(3, F_G2, 2, sleep=1)
    stamp(2)
    def l3(R=W0, M=(223 if pre else 96)):
        a(f'buffer_load_dword v{M}, v56, {sr(rWS,4)}, s{sB4} offen offset:{1024+64} sc1')
        for hp in range(2):
            for e in range(4): a(f'buffer_load_dwordx4 {vr(R + 16*hp + 4*e, 4)}, v{59 if hp else 2}, {sr(rWS,4)}, s{sB1} offen offset:{512*e} sc1')
    def r3():
        a(f's_add_u32 s{sCNT}, s{sCNT}, 1\ns_cmp_lt_u32 s{sCNT}, {fb}\ns_cbranch_scc1 L_r3x\ns_cmp_gt_u32 s{sCNT}, {fb}\ns_cbranch_scc1 L_r3t')
        a(f's_add_u32 s{sOFF}, s{sB3}, {WS_B}\nv_mov_b32 v36, v{VT}\nbuffer_store_dwordx4 v[32:35], v6, {sr(rWS,4)}, s{sOFF} offen sc1\ns_waitcnt vmcnt(0)')
        a(f's_mov_b64 exec, 0xf0\nbuffer_store_dwordx4 v[36:39], v6, {sr(rWS,4)}, s{sOFF} offen offset:1024 sc1')
        sig(F_S)
        a.lab('L_r3t')
        a(f's_xor_b32 s{sB1}, s{sB1}, {WS_B}\ns_xor_b32 s{sB4}, s{sB4}, {WS_B}\nv_xor_b32 v4, v4, v5')
        a.lab('L_r3x')
    if g3m:
        l3(224, 60)
        spin(3, F_G3, 2)
        def f3():
            a('s_waitcnt vmcnt(9)')
            fs = [60] + [224 + 4*k for k in range(8)]
            for f in fs: a(f'v_xor_b32 v{f}, v{f}, v4')
            orall(fs, 3)
            a('s_cbranch_vccz L_q1')
        poll(l3, [96] + [W0 + 4*k for k in range(8)], 3, vt=4, cnt=12, retry=r3, first=(f3, 0))
        for k in range(0, 32, 2): a(f'v_pk_mov_b32 {vr(224+k,2)}, {vr(W0+k,2)}, {vr(W0+k,2)} op_sel:[0,1]')
        a.lab('L_q1')
        W0 = 224
    else:
        poll(l3, [223 if pre else 96] + [W0 + 4*k for k in range(8)], 3, vt=4, cnt=12, retry=r3)
    stamp(3)
    tree(W0, 4); tree(W0 + 16, 4)
    for hp in range(2):
        R = W0 + 16*hp
        a(f'v_cvt_pk_bf16_f32 v{R}, v{R}, v{R+1}\nv_cvt_pk_bf16_f32 v{R+1}, v{R+2}, v{R+3}\nds_write_b64 v11, {vr(R,2)} offset:{640*hp}')
    a(f's_and_b32 s{sT0}, s{sB1}, {WS_B}\nv_mov_b32 v3, s{sT0}\nds_write_b32 v13, v3 offset:{F_S2}')
    sig(F_Q)
    stamp(4)
    kread()
    a.lab('L_T_qk')
    spin(16, F_Q, 1, extra=f'ds_read_b32 v17, v13 offset:{F_S}')
    a.lab('L_T_qk2')
    if pdel: a(f's_sleep {pdel}')
    stamp(5)
    if plate: a(f'ds_read_b32 v19, v13 offset:{F_VI}')
    for j in range(4): a(f'ds_read_b128 {vr(QF + 4*j, 4)}, v52 offset:{64*j}')
    a(f'v_readfirstlane_b32 s{sSLOW}, v17\ns_mov_b32 s{sT2}, {f32(SC)}')
    for j in range(4):
        a(f's_waitcnt lgkmcnt({3-j})')
        for t in (range(4) if j < 3 else (1, 0, 2, 3)):
            c = '0' if j == 0 else vr(DD + 4*t, 4)
            a(f'v_mfma_f32_16x16x32_bf16 {vr(DD + 4*t, 4)}, {vr(KF + 16*t + 4*j, 4)}, {vr(QF + 4*j, 4)}, {c}')
    if plate: a(f'v_readfirstlane_b32 s{sRB}, v19')
    for t in range(1, 4):
        for r in range(4):
            a(f'v_mov_b32_dpp v{DD+r}, v{DD+4*t+r} quad_perm:[0,1,2,3] row_mask:0xf bank_mask:{1<<t:#x}')
    a(f'v_max3_f32 v16, v{DD}, v{DD+1}, v{DD+2}\nv_max_f32 v16, v16, v{DD+3}')
    a('v_max_f32_dpp v16, v16, v16 row_ror:4 row_mask:0xf bank_mask:0xf')
    a('v_max_f32_dpp v16, v16, v16 row_ror:8 row_mask:0xf bank_mask:0xf')
    a('v_mov_b32 v17, v16\nv_permlane16_swap_b32 v16, v17\nv_max_f32 v16, v16, v17\nv_mov_b32 v17, v16\nv_permlane32_swap_b32 v16, v17\nv_max_f32 v16, v16, v17')
    a(f'v_mul_f32 v17, s{sT2}, v16')
    for r in range(4): a(f'v_fma_f32 v{DD+r}, v{DD+r}, s{sT2}, -v17')
    for r in range(4): a(f'v_exp_f32 v{DD+r}, v{DD+r}')
    a(f'v_cvt_pk_bf16_f32 v18, v{DD}, v{DD+1}\nv_cvt_pk_bf16_f32 v19, v{DD+2}, v{DD+3}\nds_write_b64 v54, v[18:19]')
    a(f's_mov_b64 exec, 1\nds_add_u32 v53, v14 offset:{F_PR}\ns_mov_b64 exec, 15\nds_write_b32 v62, v17')
    sig(F_M)
    stamp(6)
    CSA = 192
    f_setup()
    srd(rC, pX, 4096)
    a(f'v_lshl_add_u32 v4, v9, 3, v7\nv_lshl_add_u32 v4, v10, 2, v4\nv_lshlrev_b32 v21, 1, v4')
    sadd(sMK, (sB, 10), (sW, 8))
    imgbase()
    a('v_and_b32 v3, 1, v0')
    vadd(11, (3, 4), (7, 5), (10, 7), f's{sT3}')
    a('v_bfe_u32 v5, v0, 1, 2\nv_mul_u32_u24 v5, 0x5555, v5')
    for i in range(8): a(f'v_mov_b32 v{AC+i}, 0')
    a(f'v_xor_b32 v2, s{sLO}, v9\nv_and_b32 v3, 1, v2\nv_and_b32 v61, 1, v7\nv_lshrrev_b32 v63, 1, v7')
    vadd(60, (3, 6), (10, 5), (61, 4), (63, 3))
    a(f'v_lshrrev_b32 v2, 1, v2\nv_xor_b32 v3, 4, v2\nv_mul_u32_u24 v2, {SIG}, v2\nv_mul_u32_u24 v3, {SIG}, v3\nv_add3_u32 v2, v2, v60, s{sT3}\nv_add3_u32 v3, v3, v60, s{sT3}')
    a(f'v_add_u32 v61, {PASS}, v2\nv_add_u32 v63, {PASS}, v3')
    a(f's_lshl_b32 s{sT2}, s{sW}, 9\ns_add_u32 s{sT3}, s{sT2}, {L_X1}\nv_lshl_add_u32 v4, v4, 2, s{sT3}\ns_add_u32 s{sT3}, s{sT2}, {L_RS}')
    vadd(60, (8, 4), (7, 2), f's{sT3}')
    sadd(sB2, (sB, 14), (sW, 12), WS_YP)
    a(f's_lshl_b32 s{sT0}, s{sW}, 4\ns_add_u32 s{sT3}, s{sT0}, {L_LS}\nv_mov_b32 v62, s{sT3}\nv_lshlrev_b32 v20, 3, v0')
    a(f's_add_u32 s{sB4}, s{sB3}, 1024\ns_lshl_b32 s{sT0}, s{sW}, 8\ns_add_u32 s{sB3}, s{sB3}, s{sT0}')
    spin(16, F_M, 4, extra='ds_read_b128 v[56:59], v62 offset:64')
    a('v_max3_f32 v33, v56, v57, v58\nv_max_f32 v33, v33, v59')
    for k in range(4): a(f'v_sub_f32 v{56+k}, v{56+k}, v33')
    for k in range(4): a(f'v_exp_f32 v{56+k}, v{56+k}')
    a(f'v_mov_b32 v32, v{VTA}\nv_mov_b32 v35, 0')
    spin(16, F_L, 4, extra='ds_read_b128 v[36:39], v62')
    a('v_mul_f32 v34, v36, v56\nv_fmac_f32 v34, v37, v57\nv_fmac_f32 v34, v38, v58\nv_fmac_f32 v34, v39, v59')
    a(f's_lshl_b64 exec, 1, s{sW}\nbuffer_store_dwordx4 v[32:35], v6, {sr(rWS,4)}, s{sB4} offen')
    pubdup(32, 4, 6, sB4)
    GA, GC, XC, XX, EA, Y = 16, 18, 20, 22, 32, 48
    a(f's_mov_b64 exec, -1\ns_cmp_ge_u32 s{sR}, 16\ns_cbranch_scc1 L_T_noe\ns_cmp_eq_u32 s{sGF}, 7\ns_cbranch_scc1 L_T_noe')
    if plate: a(f's_cmp_ge_u32 s{sRB}, {plate}\ns_cbranch_scc1 L_T_noe')
    fld(pre, pre + ne)
    a.lab('L_T_noe')
    a('s_mov_b32 exec_hi, 0')
    a('s_mov_b32 exec_lo, -1\ns_barrier')
    for w in range(4): a(f'ds_read_b128 {vr(36 + 4*w, 4)}, v55 offset:{SR*w}')
    for w in range(4):
        a(f's_waitcnt lgkmcnt({3-w})')
        for hf in (0, 2):
            k = w & 1
            if w == 0: a(f'v_pk_mul_f32 {vr(36+hf,2)}, {vr(36+hf,2)}, v[56:57] op_sel:[0,0] op_sel_hi:[1,0]')
            else: a(f'v_pk_fma_f32 {vr(36+hf,2)}, {vr(36+4*w+hf,2)}, {vr(56+(w&2),2)}, {vr(36+hf,2)} op_sel:[0,{k},0] op_sel_hi:[1,{k},1]')
    a('v_cvt_pk_bf16_f32 v36, v36, v37\nv_cvt_pk_bf16_f32 v37, v38, v39\nv_or_b32 v36, 1, v36')
    a(f'buffer_store_dwordx2 v[36:37], v20, {sr(rWS,4)}, s{sB3} offen')
    if trim & 2: a('s_barrier')
    pubdup(36, 2, 20, sB3, tag=False)
    a('s_mov_b32 exec_hi, -1' + ('' if trim & 2 else '\ns_barrier'))
    stamp(7)
    a(f's_cmp_ge_u32 s{sR}, 16\ns_cbranch_scc1 L_T_O\ns_cmp_eq_u32 s{sGF}, 7\ns_cbranch_scc1 L_fin')
    hot, a = a, cold
    a.lab('L_T_O')
    if gbl:
        a(f's_cmp_eq_u32 s{sW}, 0\ns_cselect_b32 s{sT0}, s{sS}, 0\ns_cmp_eq_u32 s{sT0}, 4\ns_cbranch_scc0 L_T_O2')
        srd(rA, pWM, 512*6144); srd(rB, pC, 4096)
        a(f's_add_u32 s{sFB}, s{sB}, 20\ns_mul_i32 s{sB1}, s{sG}, {64*6144}\ns_lshl_b32 s{sT0}, s{sFB}, 8\ns_add_u32 s{sB1}, s{sB1}, s{sT0}\ns_lshl_b32 s{sB2}, s{sG}, 7')
        a('v_mul_u32_u24 v2, 6144, v7\nv_lshl_add_u32 v2, v8, 4, v2')
        vadd(3, (7, 10), (9, 4), (10, 3))
        a(f's_mov_b32 s{sR}, 0\ns_mov_b32 s{sCNT}, 1')
        imgbase()
        a('s_barrier\ns_barrier')
        a(f'buffer_load_dwordx2 v[4:5], v3, {sr(rB,4)}, s{sB2} offen')
        for i in range(16):
            a(f'buffer_load_dwordx4 {vr(64+4*i,4)}, v2, {sr(rA,4)}, s{sB1} offen {hfl}')
            if i < 15: a(f's_add_u32 s{sB1}, s{sB1}, {4*6144}')
        a('s_branch L_T_job')
        a.lab('L_T_O2')
    a('s_barrier\ns_branch L_fin')
    a = hot
    if plate:
        a(f's_cmp_ge_u32 s{sRB}, {plate}\ns_cbranch_scc1 L_T_ne')
        a.lab('L_T_neb')
        hot, a = a, cold
        a.lab('L_T_ne'); fld(0, ne); a('s_branch L_T_neb')
        a = hot
    if not rde: a(f'buffer_load_ushort v{XX}, v21, {sr(rC,4)}, s{sMK} offen\nbuffer_load_ushort v{XX+1}, v21, {sr(rC,4)}, s{sMK} offen offset:128')
    n0 = min(16, pre + ne + NTT // 2)
    fld(pre + ne, n0)
    if yl:
        a(f'ds_read_b32 v48, v13 offset:{F_S2}\ns_lshr_b32 s{sT0}, s{sG}, 2\ns_lshl_b32 s{sT0}, s{sT0}, 10\ns_add_u32 s{sB1}, s{sB2}, s{sT0}\ns_xor_b32 s{sB2}, s{sB1}, 1024')
        a(f's_and_b32 s{sT0}, s{sG}, 3\nv_add_u32 v8, 0x10000, v6\ns_waitcnt lgkmcnt(0)\nv_or_b32 v48, v48, v7\nv_cmp_eq_u32 {sr(sB4,2)}, s{sT0}, v48')
        a(f'v_cndmask_b32 v8, v6, v8, {sr(sB4,2)}\nv_cndmask_b32 v{VTA}, v{VT}, v{VTA}, {sr(sB4,2)}')
    for i in range(16): a(f'v_mov_b32 v{EA+i}, 0')
    spin(49, F_RS, 4, extra=f'ds_read2st64_b32 {vr(GA,2)}, v60 offset0:0 offset1:1\nds_read2st64_b32 v[52:53], v60 offset0:8 offset1:9\nds_read2st64_b32 v[54:55], v60 offset0:16 offset1:17')
    a(f's_waitcnt vmcnt({2*(n0 - pre) + 2 if rde else 2*(n0 - pre - ne)})')
    a(f'v_add_f32 v54, 1.0, v54\nv_add_f32 v55, 1.0, v55\nv_lshlrev_b32 v{XX}, 16, v{XX}\nv_lshlrev_b32 v{XX+1}, 16, v{XX+1}')
    a(f'v_pk_mul_f32 {vr(GC,2)}, {vr(GA,2)}, v[54:55]\nv_pk_mul_f32 {vr(XC,2)}, {vr(XX,2)}, v[54:55]')
    hilo(range(52, 56), range(52, 56), range(56, 60))
    a('ds_write2_b32 v2, v54, v54 offset0:0 offset1:33\nds_write2_b32 v3, v55, v55 offset0:0 offset1:33')
    a('ds_write2_b32 v61, v52, v52 offset0:0 offset1:33\nds_write2_b32 v63, v53, v53 offset0:0 offset1:33')
    for p in range(2):
        for sg in range(8): a(f'ds_read_b128 {vr(CSA + 32*p + 4*sg, 4)}, v11 offset:{p*PASS + sg*SIG}')
    def cs(sg):
        for p in range(2):
            smf(EA + 8*p, CSA + 32*p + 4*sg, WG_(sg), 5); smf(EA + 8*p + 4, CSA + 32*p + 4*sg, WU_(sg), 5)
    need = lambda sg: max(post.index(i) + 1 for i in (2*sg, 2*sg + 1))
    done = [0]
    so_ = sorted(range(8), key=need)
    a('s_waitcnt lgkmcnt(0)')
    if rde:
        while need(so_[done[0]]) <= pre: cs(so_[done[0]]); done[0] += 1
    def hook(n):
        landed = n - (NTT - 2) // 2
        k = 0
        while k < mcs and done[0] < 8 and need(so_[done[0]]) <= landed: cs(so_[done[0]]); done[0] += 1; k += 1
    fld(n0, 16, hook)
    if wdel: a(f's_sleep {wdel}')
    stamp(15)
    def l5():
        for k in range(4):
            if yl: a(f'buffer_load_dwordx4 {vr(Y + 4*k, 4)}, v{8 if k & 1 else 6}, {sr(rWS,4)}, s{sB1 if k & 1 else sB2} offen offset:{2048*(k >> 1)} sc1')
            else: a(f'buffer_load_dwordx4 {vr(Y + 4*k, 4)}, v6, {sr(rWS,4)}, s{sB2} offen offset:{1024*k} sc1')
    def ychk():
        for k in range(4): a(f'v_xor_b32 v{Y+4*k}, v{Y+4*k}, v{VTA if (yl and k & 1) else VT}')
        orall([Y + 4*k for k in range(4)], 32)
    def rest_cs(k0=4):
        sig(F_YI)
        sadd(sT3, (sW, 10), L_ORED)
        a(f'v_add_u32 v12, s{sT3}, v6')
        for sg in so_[done[0]:]:
            a(f's_waitcnt vmcnt({k0 + 2*(16 - need(sg))})')
            cs(sg)
        for k in range(4): parity(CSA + k, EA + 4*k)
        a(f'ds_write_b128 v12, {vr(CSA,4)}')
        sig(F_CS)
        a(f's_add_u32 s{sT0}, s{sT2}, {L_RED}\nv_lshl_add_u32 v12, v0, 3, s{sT0}\ns_lshl_b32 s{sT0}, s{sW}, 3\ns_add_u32 s{sT0}, s{sT0}, {L_ST}\nv_mov_b32 v40, s{sT0}')
    def own():
        l = U('L_own')
        a(f'v_or_b32 v32, v{Y}, v{Y+8}\nv_or_b32 v33, v{Y+4}, v{Y+12}\nv_and_b32 v32, s{sMASK}, v32\nv_and_b32 v33, s{sMASK}, v33')
        a(f'v_cmp_ne_u32 vcc, 0, v32\nv_cmp_ne_u32 {sr(sB4,2)}, 0, v33\ns_cmp_lt_u32 s{sG}, 4\ns_cselect_b64 vcc, vcc, {sr(sB4,2)}')
        a(f's_lshl_b32 s{sT0}, s{sG}, 4\ns_lshr_b64 vcc, vcc, s{sT0}\ns_and_b32 s{sT0}, vcc_lo, 0xffff\ns_cbranch_scc1 {l}')
        sig(F_YI)
        a.lab(l)
    if opf: poll(l5, [Y + 4*k for k in range(4)], 32, cnt=14, first=(rest_cs, 0), retry=own)
    else: poll(l5, None, None, check=ychk, cnt=14, first=(rest_cs, 0), after_issue=lambda: sig(F_YI))
    stamp(8)
    if not trim & 8: sig(F_YI, 8)
    add4(Y, Y + 4); add4(Y + 8, Y + 12)
    red4([Y, Y + 8], [32, 33])
    a(f'v_pk_fma_f32 v[34:35], v[32:33], {vr(GC,2)}, {vr(XC,2)}')
    hilo((34, 35), (34, 35), (36, 37))
    a('ds_write2_b32 v2, v34, v34 offset0:0 offset1:33\nds_write2_b32 v3, v35, v35 offset0:0 offset1:33')
    for sg in range(8): a(f'ds_read_b128 {vr(CSA + 4*sg, 4)}, v11 offset:{sg*SIG}')
    if trim & 8: sig(F_YI, 8)
    a(f'v_pk_fma_f32 {vr(XX,2)}, v[32:33], {vr(GA,2)}, {vr(XX,2)}')
    a(f'ds_write2_b32 v4, v{XX}, v{XX+1} offset0:0 offset1:64')
    a(f'v_add_f32 v38, v{XX}, v{XX+1}\nv_mul_f32 v39, v{XX}, v{XX}\nv_fmac_f32 v39, v{XX+1}, v{XX+1}')
    dpp = [f'row_ror:{k} row_mask:0xf' for k in (1, 2, 4, 8)] + ['row_bcast:15 row_mask:0xa', 'row_bcast:31 row_mask:0xc']
    for sg in range(8):
        a(f's_waitcnt lgkmcnt({(9 if trim & 8 else 8) - sg})')
        smf(AC, CSA + 4*sg, WG_(sg), 5)
        if sg < 6: a(f'v_add_f32_dpp v38, v38, v38 {dpp[sg]} bank_mask:0xf')
        smf(AC + 4, CSA + 4*sg, WU_(sg), 5)
        if sg < 6: a(f'v_add_f32_dpp v39, v39, v39 {dpp[sg]} bank_mask:0xf')
    a('s_mov_b32 exec_lo, 0\ns_mov_b32 exec_hi, 0x80000000\nds_write_b64 v40, v[38:39]\ns_mov_b64 exec, -1')
    parity(20, AC); parity(21, AC+4)
    a('ds_write_b64 v12, v[20:21]')
    a('s_waitcnt lgkmcnt(0)\ns_barrier')
    stamp(9)
    a(f's_cmp_lt_u32 s{sGF}, 4\ns_cbranch_scc0 L_fin\ns_cmp_eq_u32 s{sW}, 0\ns_cbranch_scc0 L_fin')
    a(f's_lshr_b32 s{sT2}, s{sT1}, 1\ns_and_b32 s{sT3}, s{sT1}, 1')
    if gbl:
        sadd(sB4, (sT2, 13), (sB, 11), (sT3, 7), WS_MOD + 40*8192)
        a('v_lshrrev_b32 v17, 3, v0')
        vadd(18, (17, 8), (9, 4))
    else:
        sadd(sB1, (sT1, 7), L_RS + 6144)
        vadd(18, (9, 4), (7, 2), f's{sB1}')
        a('ds_read_b32 v20, v18')
    sadd(sB1, (sT2, 6), (sT3, 2))
    a(f'v_lshl_add_u32 v21, v9, 3, v7\nv_add_u32 v21, s{sB1}, v21')
    a(f'v_lshlrev_b32 v22, 2, v21\nv_lshlrev_b32 v21, 1, v21\nv_add_u32 v22, {L_X1}, v22\nds_read_b32 v23, v22')
    sadd(sB1, (sB, 16), (sT1, 12), WS_FP)
    srd(rA, pOUT, 4096)
    a(f's_lshl_b32 s{sB2}, s{sB}, 10')
    for i in range(4): a(f'v_mov_b32 v{44+i}, 0')
    if fack: a('s_barrier')
    if fsleep: a(f's_sleep {fsleep}')
    stamp(10)
    def fl():
        if gbl: a(f'buffer_load_dwordx4 v[48:51], v18, {sr(rWS,4)}, s{sB4} offen sc1')
        for j in range(3): a(f'buffer_load_dwordx4 {vr(32+4*j,4)}, v6, {sr(rWS,4)}, s{sB1} offen offset:{1024*j} sc1')
        a(f's_mov_b32 exec_hi, 0\nbuffer_load_dwordx4 v[44:47], v6, {sr(rWS,4)}, s{sB1} offen offset:3072 sc1')
    def fchk():
        a(f'v_xor_b32 v44, v44, v{VT}\ns_mov_b32 exec_hi, -1')
        for j in range(3): a(f'v_xor_b32 v{32+4*j}, v{32+4*j}, v{VT}')
        if gbl: a(f'v_xor_b32 v48, v48, v{VT}')
        orall([32, 36, 40, 44] + ([48] if gbl else []), 19)
    poll(fl, None, None, check=fchk, cnt=1)
    stamp(13)
    add4(32, 40); add4(36, 44); add4(32, 36)
    if gbl:
        red4([48, 32], [20, 24])
        a('v_add_f32_dpp v20, v20, v20 row_ror:8 row_mask:0xf bank_mask:0xf')
    else: red4([32], [24])
    a('v_add_f32_dpp v24, v24, v24 row_ror:8 row_mask:0xf bank_mask:0xf')
    a('s_waitcnt lgkmcnt(0)\nv_fma_f32 v24, v24, v20, v23\nv_cvt_pk_bf16_f32 v24, v24, v24')
    a('s_mov_b32 exec_lo, 0x00ff00ff\ns_mov_b32 exec_hi, 0x00ff00ff')
    a(f'buffer_store_short v24, v21, {sr(rA,4)}, s{sB2} offen')
    a(f's_cmp_eq_u32 s2, 0\ns_cbranch_scc0 L_fin')
    a(f's_mov_b64 exec, 1\nv_mov_b32 v24, s{sE}\nbuffer_store_dword v24, v6, {sr(rWS,4)}, 0 offen')
    a('s_branch L_fin')

    VR, PV_, WO, ACL, ONE = 32, 160, 192, 20, 16
    PX = (96, 32)
    U0 = 128
    AC2, PA, vOW, vLS, vFW = 140, 148, 152, 153, 154
    a.lab('L_A')
    a('v_and_b32 v0, 63, v0')
    a(f's_and_b32 s{sT1}, s{sR}, 15\ns_lshl_b32 s{sT2}, s{sG}, 1\ns_xor_b32 s{sT1}, s{sT1}, s{sT2}')
    sadd(sB1, (sB, 24), (sG, 21), (sS, 16), (sW, 14), (sT1, 10), 0x180000)
    a(f's_lshl_b32 m0, s{sW}, 14')
    a(f's_mov_b32 s{sLO}, 0x05040100\ns_waitcnt lgkmcnt(0)')
    stamp(1)
    common()
    a('v_lshlrev_b32 v2, 6, v7\nv_xor_b32 v2, v6, v2\nv_xor_b32 v3, 16, v2\nv_xor_b32 v4, 32, v2\nv_xor_b32 v5, 48, v2')
    srd(rA, pK, 0x4000000); srd(rB, pV, 0x4000000); srd(rC, pWO, 4096*1024)
    def setup_A():
        zero_ts()
        mktag()
        sig(F_E)
        imgbase()
        for i in range(8): a(f'v_mov_b32 v{AC2+i}, 0')
        sadd(sT1, (sW, 9), L_P)
        a('v_and_b32 v21, 3, v0\nv_lshrrev_b32 v22, 2, v0')
        vadd(23, (21, 4), (7, 6), f's{sT1}')
        for u in range(4): a(f'v_mov_b32 v{PA+u}, {L_Z}')
        for u in range(4): a(f'v_mov_b32_dpp v{PA+u}, v23 quad_perm:[0,1,2,3] row_mask:0xf bank_mask:{1<<u:#x}')
        for i in range(4): a(f'v_mov_b32 v{ONE+i}, 0x3f803f80')
        a(f's_mul_i32 s{sT1}, s{sW}, {SR}\ns_add_u32 s{sT1}, s{sT1}, {L_ORED}\nv_mul_u32_u24 v{vOW}, {HS}, v21\nv_lshl_add_u32 v{vOW}, v22, 4, v{vOW}\nv_add_u32 v{vOW}, s{sT1}, v{vOW}')
        a(f's_lshl_b32 s{sT1}, s{sW}, 2\nv_add_u32 v{vFW}, s{sT1}, v13\ns_add_u32 s{sT1}, s{sT1}, {L_LS}\nv_add_u32 v{vLS}, s{sT1}, v6')
    def setup_F():
        setup_A()
        sadd(sT1, (sGF, 2), (sS, 0))
        sadd(sB3, (sT1, 16), (sW, 8))
        vadd(U0, (7, 10), (8, 4))
        a(f's_min_u32 s{sT2}, s{sW}, {2 if gbl else 3}')
        sadd(sB4, (sB, 13), (sT2, 11), WS_RD)
        sadd(sT2, (sW, 11), L_RS)
        a(f'v_add_u32 v{U0+1}, s{sT2}, v6\nv_add_u32 v{U0+2}, {L_ORED}, v6\nv_mov_b32 v{U0+3}, {L_ST}')
        vadd(U0+4, (0, 3), L_RED)
        a(f's_lshl_b32 s{sT0}, s{sB}, 1\nv_xor_b32 v23, s{sT0}, v9\nv_mul_u32_u24 v{U0+5}, {SIG}, v23\nv_lshl_add_u32 v{U0+5}, v7, 5, v{U0+5}\nv_lshl_add_u32 v{U0+5}, v10, 3, v{U0+5}\nv_add_u32 v{U0+5}, s{sT3}, v{U0+5}')
        a('v_and_b32 v23, 1, v22')
        vadd(U0+6, (23, 7), (7, 5), f's{sT3}')
        a(f'v_mul_u32_u24 v{U0+7}, 0x5555, v21')
        vadd(U0+8, (10, 13), (7, 12), (9, 4))
        sadd(sMK, (sB, 16), (sW, 14), (sT1, 7), WS_FP)
        a(f'v_mov_b32 v{U0+11}, 0')
    def setup_O():
        setup_A()
        for i in range(4): a(f'v_mov_b32 v{156+i}, 0')
        a(f'v_mul_u32_u24 v{U0}, {OPS}, v7\nv_lshl_add_u32 v{U0}, v8, 4, v{U0}\ns_lshl_b32 s{sT0}, s{sW}, 8\nv_add_u32 v{U0}, s{sT0}, v{U0}')
        a(f'v_mul_u32_u24 v{U0+1}, {OPS}, v8\ns_lshl_b32 s{sT0}, s{sW}, 4\nv_add_u32 v{U0+1}, s{sT0}, v{U0+1}')
        a(f's_and_b32 s{sT1}, s{sR}, 1\ns_lshl1_add_u32 s{sT1}, s{sG}, s{sT1}\ns_mul_i32 s{sB4}, s{sT1}, {16*OPS}\ns_add_u32 s{sB4}, s{sB4}, {WS_OP}')
        a('v_and_b32 v24, 1, v0\nv_bfe_u32 v25, v0, 1, 2\nv_and_b32 v26, 1, v22\nv_and_b32 v27, 1, v7\nv_lshrrev_b32 v28, 1, v7\nv_bfe_u32 v29, v0, 1, 1')
        vadd(U0+2, (25, 5), (10, 4), (24, 3), f's{sT3}')
        vadd(23, (26, 7), (7, 5), (10, 4), f's{sT3}')
        a(f'v_mov_b32 v{U0+3}, {L_Z}\nv_mov_b32 v{U0+4}, {L_Z}\nv_mov_b32 v{U0+7}, {L_Z}\nv_mov_b32 v{U0+8}, {L_Z}')
        a(f'v_mov_b32_dpp v{U0+3}, v23 quad_perm:[0,1,2,3] row_mask:0xf bank_mask:0x3\nv_mov_b32_dpp v{U0+4}, v23 quad_perm:[0,1,2,3] row_mask:0xf bank_mask:0xc')
        a(f'v_mul_u32_u24 v{U0+5}, 0x5555, v21')
        sadd(sT1, (sW, 9), L_DI)
        vadd(U0+6, (26, 8), (24, 7), (28, 6), (10, 4), (27, 3), (29, 2), f's{sT1}')
        vadd(23, (7, 7), (10, 6), (21, 4), f's{sT1}')
        a(f'v_mov_b32_dpp v{U0+7}, v23 quad_perm:[0,1,2,3] row_mask:0xf bank_mask:0x5\nv_mov_b32_dpp v{U0+8}, v23 quad_perm:[0,1,2,3] row_mask:0xf bank_mask:0xa')
        a(f'v_mul_u32_u24 v{U0+9}, 0xaaaa, v29\nv_add_u32 v{U0+9}, 0x4444, v{U0+9}')
        sadd(sT1, (sW, 9), L_RED)
        vadd(U0+10, (28, 8), (9, 4), (10, 3), (27, 2), f's{sT1}')
        yprec(sMK)
        vadd(U0+11, (7, 14), (8, 4))
        a(f'v_add_u32 v155, {L_RED}, v6')
    def perm_pair(k):
        blk, p = k >> 2, k & 3
        r0 = VR + 32*blk + 8*p
        for c in range(4):
            a(f'v_perm_b32 v{PX[blk] + 8*c + p}, v{r0+4+c}, v{r0+c}, s{sLO}')
            a(f'v_perm_b32 v{PX[blk] + 8*c + 4 + p}, v{r0+4+c}, v{r0+c}, s{sHI}')
    def perm_wo(p):
        r0 = VR + 8*p
        for c in range(4):
            a(f'v_perm_b32 v{WO + 16*c + p}, v{r0+4+c}, v{r0+c}, s{sLO}')
            a(f'v_perm_b32 v{WO + 16*c + 8 + p}, v{r0+4+c}, v{r0+c}, s{sHI}')
    PIL = 4
    def stream(seq, win, sigs, pauses):
        kl = max(n for n, x in enumerate(seq) if x[0] == 'K')
        dv = do = 0; ksig = False
        no = sum(1 for x in seq if x[0] == 'O') // 2
        for n, (t, i) in enumerate(seq):
            w = win(n)
            if n in pauses: pauses[n]()
            if n >= w: a(f's_waitcnt vmcnt({w-1})')
            for (gn, fo) in sigs:
                if n == gn: sig(fo)
            landed = n - w + 1
            if not ksig and landed > kl: sig(F_K, va=vFW); ksig = True
            if t == 'W':
                a(f'buffer_load_dwordx4 v[192:195], v6, {sr(rC,4)}, s{sB2} offen\ns_add_u32 s{sB2}, s{sB2}, 1024')
            elif t == 'D':
                if i == 0:
                    srd(rC, pWD, 1792*1024)
                    a(f's_lshl_b32 s{sB2}, s{sB}, 14\ns_add_u32 s{sB2}, s{sB2}, s{sB3}')
                a(f'buffer_load_dwordx4 {vr(192 + 4*i, 4)}, v{U0}, {sr(rC,4)}, s{sB2} offen\ns_add_u32 s{sB2}, s{sB2}, 4096')
            elif t == 'O':
                a(f'buffer_load_dwordx4 {vr(VR + 4*i, 4)}, v11, {sr(rC,4)}, s{sB2} offen\ns_add_u32 s{sB2}, s{sB2}, 8192')
            else:
                if i: a(f's_xor_b32 s{sOFF}, s{sB1}, {i << 10}')
                so = sOFF if i else sB1
                if t == 'K':
                    a(f'buffer_load_dwordx4 v{2 + (i & 3)}, {sr(rA,4)}, s{so} offen {kvfl} lds')
                    if i < 15: a('s_add_u32 m0, m0, 0x400')
                else:
                    assert do == no or do > i // 2
                    a(f'buffer_load_dwordx4 {vr(VR + 4*i, 4)}, v6, {sr(rB,4)}, s{so} offen {kvfl}')
            cntl = lambda ch: sum(1 for x in seq[:max(landed, 0)] if x[0] == ch)
            while do < no and cntl('O') >= 2*do + 2: perm_wo(do); do += 1
            while dv < PIL and cntl('V') >= 2*dv + 2: perm_pair(dv); dv += 1
        assert ksig and dv == PIL and do == no
    KV = [('K', i) for i in range(16)] + [('V', i) for i in range(16)]
    a(f's_cmp_ge_u32 s{sR}, 16\ns_cbranch_scc1 L_A_O')
    if wsh:
        a(f's_lshl2_add_u32 s{sT1}, s{sR}, s{sW}\ns_mul_i32 s{sT2}, s{sT1}, 15\ns_sub_u32 s{sT2}, s{sT2}, {56*15 - 392}\ns_mul_i32 s{sT1}, s{sT1}, 7\ns_cmp_ge_u32 s{sR}, 14\ns_cselect_b32 s{sT1}, s{sT2}, s{sT1}')
        sadd(sB2, (sG, 19), (sT1, 10))
        a(f's_barrier\ns_cmp_ge_u32 s{sR}, 14\ns_cbranch_scc1 L_A_go\ns_cmp_lt_u32 s{sMR}, 8\ns_cbranch_scc0 L_A_go2')
        spin(20, F_H, 1)
        a('s_branch L_A_go2')
        a.lab('L_A_go')
        d_ = 7
        stream([('W', i) for i in range(15)] + KV, lambda n: NM2 if n >= nswm + d_ else NM, [(gr + d_, F_G), (g2m + d_, F_G2), (gp + d_, F_G3)], {8: lambda: a.lab('L_A_go2'), 8 + NM: setup_F})
    else:
        sadd(sB2, (sG, 19), (sR, 15), (sW, 13))
        a('s_barrier')
        a(f's_cmp_lt_u32 s{sMR}, 8\ns_cbranch_scc0 L_A_go')
        spin(20, F_H, 1)
        a.lab('L_A_go')
        seq = [('W', i) for i in range(npw)] + KV
        if ndp: seq = seq[:dpos] + [('D', i) for i in range(4)] + seq[dpos:]
        stream(seq, lambda n: NM2 if n >= nswm else NM, [(gr, F_G), (g2m, F_G2), (gp if (pre or rde) else g3m, F_G3)], {NM: setup_F})
    if plate: sig(F_VI)
    if rde:
        for j in range(2): a(f'buffer_load_dwordx4 {vr(240+4*j,4)}, v6, {sr(rWS,4)}, s{sB4} offen offset:{1024*j} sc1')
    srd(rC, pWD, 1792*1024)
    a('s_branch L_A_pv')
    a.lab('L_A_O')
    vadd(11, (7, 10), (10, 12), (9, 4))
    a(f's_bfe_u32 s{sT1}, s{sR}, 0x30001')
    sadd(sB2, (sG, 19), (sW, 17), (sT1, 7))
    a('s_barrier')
    def p1():
        setup_O()
        a(f's_waitcnt vmcnt({n1w})'); sig(F_G); spin(20, F_GI, 2)
    pz = {n1: p1}
    if p2at is not None: pz[n1 + n2 + 16 + p2at] = lambda: spin(20, F_P, 2)
    stream(KV[:n1+n2] + [('O', i) for i in range(16)] + KV[n1+n2:], lambda n: NQ1 if (NQ1 and n1 + n2 + 16 <= n < nswq) else NQ, [(g2q, F_G2), (g3q, F_G3)], pz)
    a.lab('L_A_pv')
    RDR = 240 if rde else 64
    def l6():
        for j in range(2): a(f'buffer_load_dwordx4 {vr(RDR+4*j,4)}, v6, {sr(rWS,4)}, s{sB4} offen offset:{1024*j} sc1')
    if prioA: a(f's_setprio {prioA}')
    stamp(2)
    spin(20, F_PR, 1, extra=f'ds_read_b32 v21, v13 offset:{F_S2}', va=vFW)
    stamp(3)
    order = [(0, 0), (1, 0), (0, 1), (0, 2), (0, 3), (1, 1), (1, 2), (1, 3)]
    for blk, u in order: a(f'ds_read_b128 {vr(PV_ + 16*blk + 4*u, 4)}, v{PA+u} offset:{256*blk}')
    a(f'v_readfirstlane_b32 s{sSLOW}, v21')
    def pv(blk, j):
        x, u = j >> 2, j & 3
        c = '0' if (blk == 0 and u == 0) else vr(AC + 4*x, 4)
        a(f'v_mfma_f32_16x16x32_bf16 {vr(AC + 4*x, 4)}, {vr(PX[blk] + 4*j, 4)}, {vr(PV_ + 16*blk + 4*u, 4)}, {c}')
    a('s_waitcnt lgkmcnt(6)')
    a(f'v_mfma_f32_16x16x32_bf16 {vr(ACL,4)}, {vr(ONE,4)}, {vr(PV_,4)}, 0')
    a(f'v_mfma_f32_16x16x32_bf16 {vr(ACL,4)}, {vr(ONE,4)}, {vr(PV_+16,4)}, {vr(ACL,4)}')
    for u in range(4):
        if u: a(f's_waitcnt lgkmcnt({6-u})')
        pv(0, u); pv(0, 4 + u)
    a(f's_mov_b64 exec, 15\nds_write_b32 v{vLS}, v{ACL}')
    sig(F_L)
    stamp(4)
    WDN = 192
    def dn(grp):
        a(f's_xor_b32 s{sT0}, s{sB}, {grp}\ns_lshl_b32 s{sT0}, s{sT0}, 14\ns_add_u32 s{sOFF}, s{sB3}, s{sT0}')
        for k in range(4):
            if k: a(f's_add_u32 s{sOFF}, s{sOFF}, 4096')
            a(f'buffer_load_dwordx4 {vr(WDN + 16*grp + 4*k, 4)}, v{U0}, {sr(rC,4)}, s{sOFF} offen')
    if rde: a(f's_cmp_ge_u32 s{sR}, 16\ns_cselect_b64 vcc, -1, 0')
    for k in range(PIL, 8):
        if rde:
            l, b_ = U('L_w'), U('L_wb')
            if inl: a(f's_waitcnt vmcnt({16 - 2*k})' + (' lgkmcnt(0)' if k == 6 else '') + f'\ns_cbranch_vccz {b_}')
            else:
                a(f's_cbranch_vccz {l}')
                cold.lab(l); cold(f's_waitcnt vmcnt({16 - 2*k}) lgkmcnt(0)\ns_branch {b_}')
        a(f's_waitcnt vmcnt({14 - 2*k})' + (' lgkmcnt(0)' if k == 6 else ''))
        if rde: a.lab(b_)
        if k == 7: stamp(5)
        if k < 7: perm_pair(k)
    r0 = VR + 32 + 24
    def lp(c):
        a(f'v_perm_b32 v{PX[1] + 8*c + 3}, v{r0+4+c}, v{r0+c}, s{sLO}\nv_perm_b32 v{PX[1] + 8*c + 7}, v{r0+4+c}, v{r0+c}, s{sHI}')
    lp(0); lp(1); pv(1, 0); lp(2); pv(1, 1); lp(3)
    for j in range(2, 8): pv(1, j)
    a(f'ds_write_b128 v{vOW}, {vr(AC,4)}\nds_write_b128 v{vOW}, {vr(AC+4,4)} offset:256')
    a('s_waitcnt lgkmcnt(0)\ns_barrier')
    stamp(6)
    a(f's_cmp_lt_u32 s{sR}, 16\ns_cbranch_scc1 L_A_notO')
    G, ST, WA = 64, 32, 36
    for i in range(8): a(f'v_mov_b32 v{AC+i}, 0')
    a(f'v_readlane_b32 s{sT1}, v{VTA}, s{sW}\nv_readlane_b32 s{sT2}, v{VT}, s{sW}\ns_add_u32 s{sB4}, s{sB4}, s{sSLOW}\ns_cmp_eq_u32 s{sSLOW}, 0\ns_cselect_b32 s{sT1}, s{sT1}, s{sT2}')
    a(f's_add_u32 s{sB1}, s{sB4}, {4*OPS}\ns_add_u32 s{sB2}, s{sB4}, {8*OPS}\ns_add_u32 s{sB3}, s{sB4}, {12*OPS}')
    def ls(): a(f's_mov_b64 exec, 0xffff\nbuffer_load_dwordx4 {vr(ST,4)}, v{U0+1}, {sr(rWS,4)}, s{sB4} offen offset:1024 sc1')
    def ld():
        a('s_mov_b64 exec, -1')
        for k, so in enumerate((sB4, sB1, sB2, sB3)): a(f'buffer_load_dwordx4 {vr(G + 4*k, 4)}, v{U0}, {sr(rWS,4)}, s{so} offen sc1')
    a('s_barrier')
    stamp(7)
    if ts: a(f's_mov_b32 s{TS0+26}, 1')
    ls(); ld()
    a(f's_mov_b64 exec, 0xffff\ns_waitcnt vmcnt(4)\nv_cmp_ne_u32 vcc, s{sT1}, v{ST}\ns_cbranch_vcc' + ('z L_O_w' if inl else 'nz L_O_s'))
    hot, a = a, (a if inl else cold)
    a.lab('L_O_s')
    ls()
    if ts: a(f's_add_u32 s{TS0+26}, s{TS0+26}, 1')
    budget()
    a(f's_waitcnt vmcnt(0)\nv_cmp_ne_u32 vcc, s{sT1}, v{ST}\ns_cbranch_vccnz L_O_s')
    ld()
    a('s_mov_b64 exec, 0xffff' + ('' if inl else '\ns_branch L_O_w'))
    a = hot
    a.lab('L_O_w')
    stamp(12)
    def weights():
        xs = ['quad_perm:[1,0,3,2]', 'quad_perm:[2,3,0,1]', 'row_half_mirror']
        a(f'v_max_f32_dpp v17, v{ST+1}, v{ST+1} {xs[0]} row_mask:0xf bank_mask:0xf')
        for x in xs[1:]: a(f'v_max_f32_dpp v17, v17, v17 {x} row_mask:0xf bank_mask:0xf')
        a(f'v_sub_f32 v17, v{ST+1}, v17\nv_exp_f32 v17, v17\nv_mul_f32 v18, v17, v{ST+2}')
        for x in xs: a(f'v_add_f32_dpp v18, v18, v18 {x} row_mask:0xf bank_mask:0xf')
        a('v_rcp_f32 v18, v18\nv_mul_f32 v17, v17, v18')
        hilo([17], [17], [18])
        a(f'ds_write2_b32 v{U0+2}, v17, v17 offset0:0 offset1:33\ns_mov_b64 exec, -1')
        a(f'ds_read_b128 {vr(WA,4)}, v{U0+3}\nds_read_b128 {vr(WA+4,4)}, v{U0+4}')
    def dchk():
        if trim & 4:
            a('s_waitcnt lgkmcnt(0)')
            smf(156, WA, G, U0+5); smf(156, WA + 4, G + 8, U0+5)
        a(f'v_min3_u32 v17, v{G}, v{G+2}, v{G+4}\nv_min3_u32 v18, v{G+6}, v{G+8}, v{G+10}\nv_min3_u32 v17, v17, v{G+12}, v{G+14}\nv_min_u32 v17, v17, v18\nv_cmp_eq_u32 vcc, 0, v17')
    def rz():
        for i in range(4): a(f'v_mov_b32 v{156+i}, 0')
    poll(ld, None, None, cnt=14, check=dchk, first=(weights, 0), noload=True, after_issue=(rz if trim & 4 else None))
    stamp(8)
    if not trim & 4:
        a('s_waitcnt lgkmcnt(0)')
        smf(156, WA, G, U0+5); smf(156, WA + 4, G + 8, U0+5)
    a(f'v_cvt_pk_bf16_f32 v16, v156, v157\nv_cvt_pk_bf16_f32 v17, v158, v159\nds_write2_b32 v{U0+6}, v16, v17 offset0:0 offset1:8')
    a(f'ds_read_b128 {vr(WA,4)}, v{U0+7}\nds_read_b128 {vr(WA+4,4)}, v{U0+8}')
    YA = [AC, AC + 4, AC2, AC2 + 4]
    for jp in range(2):
        a(f's_waitcnt lgkmcnt({1-jp})')
        for x in range(4): smf(YA[x], WA + 4*jp, WO + 8*(2*x + jp), U0+9)
    for x in range(4): a(f'v_pk_add_f32 {vr(YA[x],2)}, {vr(YA[x],2)}, {vr(YA[x]+2,2)}')
    for k in range(2):
        a(f'v_add_f32_dpp v{16+k}, v{YA[2*k]+1}, v{YA[2*k]} row_ror:8 row_mask:0xf bank_mask:0x3')
    for k in range(2):
        a(f'v_add_f32_dpp v{16+k}, v{YA[2*k+1]}, v{YA[2*k+1]+1} row_ror:8 row_mask:0xf bank_mask:0xc')
    a(f'ds_write2_b32 v{U0+10}, v16, v17 offset0:0 offset1:32')
    if trim & 1:
        a(f's_mov_b32 exec_hi, 0\ns_cmp_eq_u32 s{sW}, 0\ns_cbranch_scc1 L_O_y\ns_waitcnt lgkmcnt(0)\ns_barrier\ns_branch L_fin')
        a.lab('L_O_y')
        a('s_waitcnt lgkmcnt(0)\ns_barrier')
        stamp(9)
    else:
        a(f's_mov_b32 exec_hi, 0\ns_cmp_eq_u32 s{sW}, 0\ns_waitcnt lgkmcnt(0)\ns_barrier')
        stamp(9)
        a(f's_cbranch_scc0 L_fin')
    if odel: a(f's_sleep {odel}')
    sum4(64, 155, 512)
    tagit(64)
    a(f'buffer_store_dwordx4 v[64:67], v{U0+11}, {sr(rWS,4)}, s{sMK} offen sc1')
    if yl:
        a(f's_add_u32 s{sMK}, s{sMK}, 0x10000')
        tagit(64, VTA)
        a(f'buffer_store_dwordx4 v[64:67], v{U0+11}, {sr(rWS,4)}, s{sMK} offen')
    stamp(10)
    if gbl: a('s_barrier')
    if fpt == 2:
        sadd(sT1, (sGF, 2), (sS, 0))
        sadd(sB1, (sT1, 7), (sB, 16), WS_FP - 4*128)
        a(f'v_lshlrev_b32 v3, 12, v8\nbuffer_load_dword v97, v3, {sr(rWS,4)}, s{sB1} offen')
    if cln:
        a(f's_mov_b64 exec, -1\ns_bfe_u32 s{sT2}, s{sR}, 0x30001\ns_and_b32 s{sT1}, s{sR}, 1')
        sadd(sB1, (sG, 15), (sT1, 14), (sT2, 11), WS_QP)
        for i in range(4): a(f'v_mov_b32 v{68+i}, 0')
        if cln & 2: a('s_waitcnt vmcnt(0)')
        a(f'buffer_store_dwordx4 v[68:71], v6, {sr(rWS,4)}, s{sB1} offen sc1\nbuffer_store_dwordx4 v[68:71], v6, {sr(rWS,4)}, s{sB1} offen offset:1024 sc1')
    if opf:
        srd(rC, pWD, 1792*1024)
        sadd(sB1, (sGF, 18), (sR, 14), (-16 << 14) & 0xffffffff)
        a(f's_mov_b64 exec, -1\nv_lshlrev_b32 v2, 7, v0\ns_add_u32 s{sB2}, s{sB1}, 8192')
        a(f'buffer_load_dword v3, v2, {sr(rC,4)}, s{sB1} offen\nbuffer_load_dword v4, v2, {sr(rC,4)}, s{sB2} offen')
    a('s_branch L_fin')
    a.lab('L_A_notO')
    dn0 = not (ndp or any(0 in g_ for _, g_ in dns))
    def rsw():
        a(f'ds_write_b128 v{U0+1}, {vr(RDR,4)}\nds_write_b128 v{U0+1}, {vr(RDR+4,4)} offset:1024')
        sig(F_RS)
    if rde:
        a(f's_waitcnt vmcnt(0)\nv_xor_b32 v{RDR}, v{RDR}, v{VT}\nv_xor_b32 v{RDR+4}, v{RDR+4}, v{VT}')
        orall([RDR, RDR+4], 19)
        a('s_cbranch_vccnz L_A_rd')
        rsw()
        a(f's_barrier\ns_cmp_eq_u32 s{sGF}, 7\ns_cbranch_scc1 L_fin')
        if dn0: dn(0)
        a.lab('L_A_rdb')
        hot, a = a, Asm()
        a.lab('L_A_rd')
    a(f's_barrier\ns_cmp_eq_u32 s{sGF}, 7\ns_cbranch_scc1 L_fin')
    poll(l6, [RDR, RDR+4], 19, cnt=13, first=((lambda: dn(0), 4) if dn0 else None))
    rsw()
    if rde:
        a('s_branch L_A_rdb')
        cold.L += a.L; a = hot
    csdone = False
    for th, grps in dns:
        if th > 4 and not csdone:
            spin(16, F_CS, 4); sum4(64, U0+2, 1024); csdone = True
        if th: spin(16, F_YI, th, sleep=(1 if th == 4 else 0))
        for g_ in grps: dn(g_)
    if not csdone:
        spin(16, F_CS, 4); sum4(64, U0+2, 1024)
    a(f'v_mul_f32 v64, {f32(L2E)}, v64\nv_mul_f32 v66, {f32(L2E)}, v66\nv_mov_b32 v78, {f32(1.0/512)}')
    a('s_barrier')
    stamp(9)
    a(f'ds_read_b128 v[68:71], v{U0+3}\nds_read_b128 v[72:75], v{U0+3} offset:16')
    for w in range(4): a(f'ds_read_b64 {vr(80 + 2*w, 2)}, v{U0+4} offset:{512*w}')
    a('s_waitcnt lgkmcnt(5)\nv_pk_add_f32 v[68:69], v[68:69], v[70:71]\ns_waitcnt lgkmcnt(4)\nv_pk_add_f32 v[72:73], v[72:73], v[74:75]\nv_pk_add_f32 v[68:69], v[68:69], v[72:73]')
    a('v_pk_mul_f32 v[76:77], v[68:69], v[78:79] op_sel_hi:[1,0]')
    a(f'v_fma_f32 v71, -v76, v76, v77\nv_max_f32 v71, 0, v71\nv_add_f32 v71, {f32(1e-5)}, v71\nv_rsq_f32 v71, v71')
    a('v_pk_mul_f32 v[64:65], v[64:65], v[76:77] op_sel_hi:[1,0]')
    a(f'v_mul_f32 v70, {f32(L2E)}, v71\nv_fma_f32 v66, -v71, v64, v66\nv_fma_f32 v67, -v71, v65, v67')
    a('s_waitcnt lgkmcnt(2)\nv_pk_add_f32 v[80:81], v[80:81], v[82:83]\ns_waitcnt lgkmcnt(1)\nv_pk_add_f32 v[80:81], v[80:81], v[84:85]\ns_waitcnt lgkmcnt(0)\nv_pk_add_f32 v[80:81], v[80:81], v[86:87]')
    a('v_pk_fma_f32 v[72:73], v[80:81], v[70:71], v[66:67]')
    a('v_exp_f32 v72, v72\nv_add_f32 v72, 1.0, v72\nv_rcp_f32 v72, v72\nv_mul_f32 v72, v72, v73\nv_cvt_pk_bf16_f32 v72, v72, 0')
    a(f'ds_write2_b32 v{U0+5}, v72, v72 offset0:0 offset1:33')
    for sg in range(8): a(f'ds_read_b128 {vr(96 + 4*sg, 4)}, v{U0+6} offset:{sg*SIG}')
    a('s_waitcnt vmcnt(0)')
    for sg in range(8):
        a(f's_waitcnt lgkmcnt({7-sg})')
        smf(AC2, 96 + 4*sg, WDN + 8*sg, U0+7)
    a('s_mov_b32 exec_hi, 0')
    if fl_: a(f's_or_b32 s{sT0}, s{sGF}, s{sSLOW}\ns_cmp_eq_u32 s{sT0}, s{sW}')
    tagit(AC2)
    if fl_: a('s_cbranch_scc1 L_A_loc')
    a(f'buffer_store_dwordx4 {vr(AC2,4)}, v{U0+8}, {sr(rWS,4)}, s{sMK} offen sc1')
    if fl_:
        a('s_branch L_A_locb')
        a.lab('L_A_loc')
        a(f'buffer_store_dwordx4 {vr(AC2,4)}, v{U0+8}, {sr(rWS,4)}, s{sMK} offen')
        a.lab('L_A_locb')
    stamp(10)
    if fack == 1: a('s_waitcnt vmcnt(0)')
    if fack >= 3:
        if fack == 5: a(f's_xor_b32 s{sGF}, s{sGF}, 1')
        a(f's_cmp_eq_u32 s{sW}, ' + ('0' if fack == 3 else f's{sGF}') + '\ns_cbranch_scc0 L_A_nw\ns_waitcnt vmcnt(0)')
        a.lab('L_A_nw')
    if fack: a('s_barrier')
    a.lab('L_fin')
    stamp(11)
    if leak:
        W, w, ka, kb = leak
        a(f's_cmp_eq_u32 s2, {W}\ns_cbranch_scc0 L_end\ns_cmp_eq_u32 s3, {w}\ns_cbranch_scc0 L_end')
        a(f's_waitcnt lgkmcnt(0)\ns_sub_u32 s{sT0}, s{TS0+2*ka}, s{TS0+2*kb}\ns_min_u32 s{sT0}, s{sT0}, 5000\ns_mul_i32 s{sT0}, s{sT0}, 40')
        if ka == kb: a(f's_getreg_b32 s{sT0}, hwreg(HW_REG_XCC_ID, 0, 3)\ns_mul_i32 s{sT0}, s{sT0}, 1000')
        a.lab('L_leak')
        a(f's_memrealtime s[96:97]\ns_waitcnt lgkmcnt(0)\ns_sub_u32 s{sT1}, s96, s{TS0+22}\ns_cmp_lt_u32 s{sT1}, s{sT0}\ns_cbranch_scc1 L_leak')
    elif ts:
        a('s_sleep 60\ns_waitcnt lgkmcnt(0)')
        a(f's_xor_b32 s{sT1}, s3, 4\ns_lshl3_add_u32 s{sOFF}, s2, s{sT1}\ns_lshl_b32 s{sOFF}, s{sOFF}, 6\ns_add_u32 s{sOFF}, s{sOFF}, {WS_TS}')
        a('s_mov_b64 exec, 1\nv_mov_b32 v2, 0')
        for k in range(16):
            a(f'v_mov_b32 v3, s{TS0+2*k}\nbuffer_store_dword v3, v2, {sr(rWS,4)}, s{sOFF} offen offset:{4*k}')
    a.lab('L_end')
    a('s_endpgm')
    a.L += cold.L
    a.lab('L_codeend')

    body, added = hazard_pass(a.L)
    out = [HEADER + f'; @launch grid=(256,1,1) block=(512,1,1) lds={L_END}',
           '.amdgcn_target "amdgcn-amd-amdhsa--gfx950"', '.text', f'.globl {NAME}_kernel', '.p2align 8', f'.type {NAME}_kernel,@function']
    out += [l if l.endswith(':') else '    ' + l for l in body]
    out += ['.section .rodata,"a"', '.p2align 6', f'.amdhsa_kernel {NAME}_kernel',
            '  .amdhsa_next_free_vgpr 256', '  .amdhsa_next_free_sgpr 102', '  .amdhsa_accum_offset 256',
            '  .amdhsa_group_segment_fixed_size 0', '  .amdhsa_kernarg_size 112', '  .amdhsa_user_sgpr_count 2',
            '  .amdhsa_user_sgpr_kernarg_segment_ptr 1', '  .amdhsa_system_sgpr_workgroup_id_x 1',
            '  .amdhsa_float_denorm_mode_32 3', '.end_amdhsa_kernel']
    return '\n'.join(out) + '\n'

if __name__ == '__main__':
    kw = {}
    for arg in sys.argv[2:]:
        k, v = arg.split('=')
        try: v = eval(v)
        except Exception: pass
        kw[k] = v
    open(sys.argv[1], 'w').write(gen(**kw))
```

```python
import sys, struct, math
from asmlib import Asm, hazard_pass, vr, sr
from gen_v1 import HEADER
NAME = 'adaLN_cond__sliding_block_cached__glu_gated_glu__decode'
def f32(x): return '0x%08x' % struct.unpack('<I', struct.pack('<f', x))[0]

WS_MOD = 0x10000
WS_RD  = 0x70000
WS_QP  = 0x80000
WS_OP  = 0x100000
OPS    = 1152
WS_YP  = 0x200000
WS_FP  = 0x280000
WS_FL  = 0x300000
WS_B   = 0x400000
WS_TS  = 0x8000000
SIG = 288; PASS = 8 * SIG; IMG = 2 * PASS
HS = 544; SR = 4 * HS
L_IMG = 65536
L_Q   = L_IMG + 4 * IMG
L_P   = L_Q + 1536
L_Z   = L_P + 2048
L_ORED = L_Z + 512
L_LS  = L_ORED + 4 * SR
L_MW  = L_LS + 64
L_DI  = L_MW + 64
L_RED = L_DI + 2048
L_ST  = L_RED + 2048
L_X1  = L_ST + 64
L_RS  = L_X1 + 2048
L_FL  = L_RS + 8192
F_Q, F_S, F_S2, F_P, F_M, F_H, F_E, F_G, F_GI, F_G2, F_I, F_L, F_RS, F_YI, F_CS, F_ST = [4*k for k in range(16)]
F_VI, F_G3 = 96, 100
F_K, F_PR = 64, 80
L_SCR = L_FL + 128
L_END = L_SCR + 256
TAGMASK = 0xFFF
BUDGET = 1 << 21

sG, sR, sB, sS = 4, 5, 6, 7
pX, pK, pV, pWQ, pWO, pWG, pWU, pWD, pC, pWM, pOUT, pWS = 8, 10, 12, 14, 16, 20, 22, 24, 26, 28, 30, 32
rWS, rA, rB, rC = 32, 36, 40, 44
sE, sMASK, sOFF, sB1, sB2, sCNT, sW, sSLOW, sB4, sMK, sLO, sHI, sT0, sT1, sT2, sT3 = range(48, 64)
sXC, sB3 = 18, 19
sBUD, sFB, sRB, sGF = 96, 97, 98, 99
sMR_, sMG_ = 100, 101
TS0 = 64
VT, VTA = 1, 15
SC = math.log2(math.e) / math.sqrt(128.0)
L2E = -math.log2(math.e)

def gen(NM=8, NM2=8, nswm=28, NQ=8, n1=4, n1w=0, n2=2, kr=12, k1=12, gr=16, g2m=25, g2q=27, NTT=8,
        kvfl='nt', hfl='nt', ts=False, fb=64, fsleep=0, leak=None, forceslow=0, ne=4, p2at=0, fack=5, idle=4,
        dns=((0,[1]),(4,[2]),(8,[3])), plate=False, g3m=None, g3q=None, prio=0, xmap=False, prioA=0, NQ1=None, nswq=38, pre=0, gp=22, sord=True, npw=8, ndp=0, dpos=24, opf=0, rde=True, mcs=2, yl=True, fl_=True, inl=True, trim=0, fpt=2, gbl=False, wsh=False, hdel=0, pdel=0, odel=0, wdel=0, cln=0, hlp=0, hfl2='nt', opt=45, npd=3, wpf='', nef='', dnf='', vl=16, fdel=0):
    assert not (gbl and xmap)
    assert not (yl and opf)
    if opf: dns = [(opf + 4, [0, 1, 2, 3])]
    assert not (pre and g3m)
    if leak: ts = True
    a = Asm()
    cold = Asm()
    uid = [0]
    def U(p): uid[0] += 1; return f'{p}_{uid[0]}'
    def stamp(k):
        if ts: a(f's_memrealtime {sr(TS0 + 2*k, 2)}')
    def srd(r, p, size):
        a(f's_mov_b64 {sr(r,2)}, {sr(p,2)}\ns_mov_b32 s{r+2}, {size}\ns_mov_b32 s{r+3}, 0x20000')
    def sig(off, n=1, va=13): a(f's_mov_b64 exec, {(1<<n)-1}\nds_add_u32 v{va}, v14 offset:{off}\ns_mov_b64 exec, -1')
    def budget(): a(f's_sub_u32 s{sBUD}, s{sBUD}, 1\ns_cbranch_scc1 L_end')
    def spin(vt, off, n, sleep=0, extra=None, va=13):
        l = U('L_spin')
        if sleep:
            l2 = U('L_spin')
            cold.lab(l2); cold(f's_sleep {sleep}\ns_branch {l}')
        a.lab(l)
        a(f'ds_read_b32 v{vt}, v{va} offset:{off}')
        if extra: a(extra)
        budget()
        a(f's_waitcnt lgkmcnt(0)\nv_cmp_gt_u32 vcc, {n}, v{vt}\ns_cbranch_vccnz {l2 if sleep else l}')
    def orall(fs, vacc):
        fs = list(fs)
        if len(fs) % 2: a(f'v_or3_b32 v{vacc}, v{fs[0]}, v{fs[1]}, v{fs[2]}'); fs = fs[3:]
        else: a(f'v_or_b32 v{vacc}, v{fs[0]}, v{fs[1]}'); fs = fs[2:]
        while fs: a(f'v_or3_b32 v{vacc}, v{vacc}, v{fs[0]}, v{fs[1]}'); fs = fs[2:]
        a(f'v_and_b32 v{vacc}, s{sMASK}, v{vacc}\nv_cmp_ne_u32 vcc, 0, v{vacc}')
    def poll(loads, firsts, vacc, vt=VT, check=None, cnt=None, after_issue=None, first=None, noload=False, retry=None, ownwait=False):
        nonlocal a
        c, l = U('L_chk'), U('L_poll')
        if inl and not retry and (not first or first[1] == 0):
            if ts and cnt is not None: a(f's_mov_b32 s{TS0+2*cnt}, {1 if first else 0}')
            if first:
                if not noload: loads()
                first[0]()
                a(f's_branch {c}')
            a.lab(l)
            loads()
            if after_issue: after_issue()
            if ts and cnt is not None: a(f's_add_u32 s{TS0+2*cnt}, s{TS0+2*cnt}, 1')
            budget()
            a.lab(c)
            if not ownwait: a('s_waitcnt vmcnt(0)')
            if check: check()
            else:
                for f in firsts: a(f'v_xor_b32 v{f}, v{f}, v{vt}')
                orall(firsts, vacc)
            a(f's_cbranch_vccnz {l}')
            return
        if ts and cnt is not None: a(f's_mov_b32 s{TS0+2*cnt}, 1')
        if not noload: loads()
        if first: first[0]()
        elif after_issue: after_issue()
        a(f's_waitcnt vmcnt({first[1] if first else 0})')
        a.lab(c)
        if check: check()
        else:
            for f in firsts: a(f'v_xor_b32 v{f}, v{f}, v{vt}')
            orall(firsts, vacc)
        a(f's_cbranch_vccnz {l}')
        hot, a = a, Asm()
        a.lab(l)
        if retry: retry()
        loads()
        if after_issue: after_issue()
        if ts and cnt is not None: a(f's_add_u32 s{TS0+2*cnt}, s{TS0+2*cnt}, 1')
        budget()
        a(f's_waitcnt vmcnt(0)\ns_branch {c}')
        cold.L += a.L
        a = hot
    def tagit(v, vt=VT): a(f'v_bfi_b32 v{v}, s{sMASK}, v{vt}, v{v}')
    def mktag():
        a(f's_getreg_b32 s{sXC}, hwreg(HW_REG_XCC_ID, 0, 3)')
        if forceslow: a(f's_cmp_eq_u32 s{sR}, {forceslow}\ns_cselect_b32 s{sXC}, 1, 0')
        a(f's_lshl_b32 s{sXC}, s{sXC}, 9\nv_and_b32 v{VT}, 3, v0\nv_mul_u32_u24 v{VT}, 0x2d5, v{VT}\ns_waitcnt lgkmcnt(0)\ns_add_u32 s{sE}, s{sE}, 1\nv_add_u32 v{VT}, s{sE}, v{VT}')
        a(f'v_add_u32 v{VTA}, s{sXC}, v{VT}\nv_and_b32 v{VT}, s{sMASK}, v{VT}\nv_and_b32 v{VTA}, s{sMASK}, v{VTA}')
    def red4(Rs, dsts):
        for R in Rs: a(f'v_permlane32_swap_b32 v{R}, v{R+2}\nv_permlane32_swap_b32 v{R+1}, v{R+3}')
        for R in Rs: a(f'v_pk_add_f32 {vr(R,2)}, {vr(R,2)}, {vr(R+2,2)}')
        for R in Rs: a(f'v_permlane16_swap_b32 v{R}, v{R+1}')
        for R, d_ in zip(Rs, dsts): a(f'v_add_f32 v{d_}, v{R}, v{R+1}')
    def add4(D, X): a(f'v_pk_add_f32 {vr(D,2)}, {vr(D,2)}, {vr(X,2)}\nv_pk_add_f32 {vr(D+2,2)}, {vr(D+2,2)}, {vr(X+2,2)}')
    def tree(R, n):
        st = 4
        while n > 1:
            for k in range(0, n, 2): add4(R + st*k, R + st*(k+1))
            st *= 2; n //= 2
    def sum4(R, vaddr, stride):
        for w in range(4): a(f'ds_read_b128 {vr(R + 4*w, 4)}, v{vaddr} offset:{stride*w}')
        for w in range(1, 4):
            a(f's_waitcnt lgkmcnt({3-w})'); add4(R, R + 4*w)
    def hilo(dsts, srcs, tmps):
        for t, x in zip(tmps, srcs): a(f'v_and_b32 v{t}, 0xffff0000, v{x}')
        for t, x in zip(tmps, srcs): a(f'v_sub_f32 v{t}, v{x}, v{t}')
        for d_, t, x in zip(dsts, tmps, srcs): a(f'v_perm_b32 v{d_}, v{x}, v{t}, s{sHI}')
    def parity(dst, D):
        a(f'v_add_f32_dpp v{dst}, v{D+1}, v{D} row_ror:8 row_mask:0xf bank_mask:0x3')
        a(f'v_add_f32_dpp v{dst}, v{D+2}, v{D+3} row_ror:8 row_mask:0xf bank_mask:0xc')
    def smf(D, A_, B_, vi): a(f'v_smfmac_f32_16x16x64_bf16 {vr(D,4)}, {vr(A_,4)}, {vr(B_,8)}, v{vi}')
    def sadd(dst, *terms):
        first = True
        for t in terms:
            if isinstance(t, tuple):
                r, sh = t
                if first: a(f's_lshl_b32 s{dst}, s{r}, {sh}')
                elif 1 <= sh <= 4: a(f's_lshl{sh}_add_u32 s{dst}, s{r}, s{dst}')
                elif sh == 0: a(f's_add_u32 s{dst}, s{dst}, s{r}')
                else: a(f's_lshl_b32 s{sT0}, s{r}, {sh}\ns_add_u32 s{dst}, s{dst}, s{sT0}')
            else: a(f's_add_u32 s{dst}, s{dst}, {t}')
            first = False
    def vadd(dst, *terms):
        first = True
        for t in terms:
            if isinstance(t, tuple):
                r, sh = t
                if first: a(f'v_lshlrev_b32 v{dst}, {sh}, v{r}')
                else: a(f'v_lshl_add_u32 v{dst}, v{r}, {sh}, v{dst}')
            else: a(f'v_add_u32 v{dst}, {t}, v{dst}')
            first = False
    def oprec(dst):
        sadd(dst, (sG, 5), (sB, 3), (sS, 0))
        a(f's_mul_i32 s{dst}, s{dst}, {OPS}\ns_add_u32 s{dst}, s{dst}, {WS_OP}')
    def qprec(dst): sadd(dst, (sG, 15), (sR, 9), WS_QP - 16*512)
    def yprec(dst):
        a(f's_and_b32 s{sT1}, s{sR}, 1\ns_bfe_u32 s{sT2}, s{sR}, 0x30001')
        sadd(dst, (sT1, 15), (sT2, 11), (sG, 8), WS_YP)
    def imgbase(): a(f's_mul_i32 s{sT3}, s{sW}, {IMG}\ns_add_u32 s{sT3}, s{sT3}, {L_IMG}')
    def pubdup(V, n, vaddr, sbase, tag=True):
        l, b = U('L_dup'), U('L_dupb')
        a(f's_cmp_lg_u32 s{sSLOW}, 0\ns_cbranch_scc1 {l}')
        a.lab(b)
        cold.lab(l)
        cold(f's_add_u32 s{sOFF}, s{sbase}, {WS_B}\ns_nop 1')
        if tag: cold(f'v_bfi_b32 v{V}, s{sMASK}, v{VT}, v{V}')
        cold(f'buffer_store_dwordx{n} {vr(V,n)}, v{vaddr}, {sr(rWS,4)}, s{sOFF} offen sc1\ns_nop 1\ns_branch {b}')
    def zero_ts():
        if ts:
            for k in range(2, 16): a(f's_mov_b32 s{TS0+2*k}, 0')
    def common():
        a(f's_load_dword s{sE}, s[32:33], 0\ns_mov_b32 s34, 0x10000000\ns_mov_b32 s35, 0x20000\ns_movk_i32 s{sMASK}, {TAGMASK}\ns_mov_b32 s{sBUD}, {BUDGET}')
        a(f'v_mov_b32 v13, {L_FL}\nv_mov_b32 v14, 1\nv_lshlrev_b32 v6, 4, v0\ns_mov_b32 s{sHI}, 0x07060302')
        a(f's_cmp_eq_u32 s{sG}, 7\ns_cselect_b32 s{sGF}, {idle}, s{sG}\ns_cmp_eq_u32 s{sG}, {idle}\ns_cselect_b32 s{sGF}, 7, s{sGF}')

    W0, AR, AC, VI = 64, 32, 24, 63
    sMR, sMG = (sMR_, sMG_) if xmap else (sR, sG)
    a.lab(f'{NAME}_kernel')
    a('s_load_dwordx16 s[8:23], s[0:1], 0\ns_load_dwordx8 s[24:31], s[0:1], 64\ns_load_dwordx2 s[32:33], s[0:1], 104')
    stamp(0)
    a('s_cmpk_ge_u32 s2, 256\ns_cbranch_scc1 L_end')
    a(f'v_lshrrev_b32 v1, 6, v0\ns_and_b32 s{sG}, s2, 7\nv_readfirstlane_b32 s3, v1\ns_lshr_b32 s{sR}, s2, 3\ns_and_b32 s{sB}, s{sR}, 3\ns_lshr_b32 s{sS}, s{sR}, 2')
    a('v_bfe_u32 v7, v0, 4, 2\nv_and_b32 v8, 15, v0\nv_and_b32 v9, 7, v0\nv_bfe_u32 v10, v0, 3, 1')
    if xmap:
        a(f's_lshr_b32 s{sT0}, s{sR}, 1\ns_xor_b32 s{sT0}, s{sT0}, s{sG}\ns_and_b32 s{sT0}, s{sT0}, 4\ns_xor_b32 s{sMG}, s{sG}, s{sT0}\ns_lshl_b32 s{sT0}, s{sT0}, 1\ns_xor_b32 s{sMR}, s{sR}, s{sT0}')
    a(f's_and_b32 s{sW}, s3, 3\ns_cmp_gt_u32 s3, 1\ns_cbranch_scc1 L_other')
    sSTEP = sLO
    a(f's_and_b32 s{sRB}, s{sMG}, 6\ns_add_u32 s{sRB}, s{sRB}, s{sW}\ns_and_b32 s{sFB}, s{sMG}, 1\ns_lshl1_add_u32 s{sFB}, s{sMR}, s{sFB}\ns_sub_u32 s{sFB}, s{sFB}, 8')
    a(f's_cmp_lt_u32 s{sMR}, 8\ns_cselect_b32 s{sRB}, s{sMG}, s{sRB}\ns_cselect_b32 s{sFB}, s{sMR}, s{sFB}\ns_cselect_b32 s{sT3}, s{sW}, 0')
    if gbl: a(f's_cmp_ge_u32 s{sFB}, 20\ns_cselect_b32 s{sT3}, 1, s{sT3}')
    a(f's_lshl1_add_u32 s{sT0}, s{sB}, s{sW}\ns_lshl2_add_u32 s{sT1}, s{sG}, s{sS}\ns_sub_u32 s{sT1}, s{sT1}, 4\ns_movk_i32 s{sSTEP}, 6144')
    a(f's_cmp_ge_u32 s{sR}, 16\ns_cselect_b32 s{sRB}, s{sT0}, s{sRB}\ns_cselect_b32 s{sFB}, s{sT1}, s{sFB}\ns_cselect_b32 s{sSTEP}, 0x2000, s{sSTEP}' + (f'\ns_cselect_b32 s{sT3}, 0, s{sT3}' if gbl else ''))
    a(f's_mul_i32 s{rA+2}, s{sSTEP}, 512\ns_mul_i32 s{sB1}, s{sRB}, s{sSTEP}\ns_mul_i32 s{sB2}, s{sRB}, 128')
    a(f'v_mul_u32_u24 v2, s{sSTEP}, v7\nv_lshl_add_u32 v2, v8, 4, v2')
    vadd(3, (7, 10), (9, 4), (10, 3))
    a(f's_mov_b32 s{rA+3}, 0x20000\ns_movk_i32 s{rB+2}, 4096\ns_mov_b32 s{rB+3}, s{rA+3}')
    a('s_waitcnt lgkmcnt(0)')
    a(f's_cselect_b64 {sr(rA,2)}, {sr(pWQ,2)}, {sr(pWM,2)}\ns_cselect_b64 {sr(rB,2)}, {sr(pX,2)}, {sr(pC,2)}')
    a(f's_lshl2_add_u32 s{sB1}, s{sFB}, s{sB1}\ns_lshl_b32 s{sB1}, s{sB1}, 6\ns_lshl_b32 s{sSTEP}, s{sSTEP}, 2')
    a(f's_cmp_eq_u32 s{sT3}, 1\ns_cbranch_scc1 L_T_setup')
    stamp(1)
    a(f'buffer_load_dwordx2 v[4:5], v3, {sr(rB,4)}, s{sB2} offen')
    for i in range(16):
        a(f'buffer_load_dwordx4 {vr(W0+4*i,4)}, v2, {sr(rA,4)}, s{sB1} offen {hfl}')
        if i < 15: a(f's_add_u32 s{sB1}, s{sB1}, s{sSTEP}')
    a(f's_cmp_lt_u32 s{sR}, 16\ns_cbranch_scc1 L_T_setup')
    vadd(11, (7, 10), (8, 4))
    for j in range(4): a(f'buffer_load_dwordx4 {vr(AR+4*j,4)}, v11, {sr(rB,4)}, 0 offen offset:{256*j}')
    a('s_branch L_T_setup')
    a.lab('L_other')
    a('s_cmp_lt_u32 s3, 4\ns_cbranch_scc1 L_T23_issue')
    a(f's_cmp_lt_u32 s2, 8\ns_cbranch_scc0 L_A\ns_getpc_b64 {sr(sB4,2)}')
    a.lab('L_pc')
    a(f'v_and_b32 v2, 0xff, v0\nv_lshlrev_b32 v2, 7, v2\nv_cmp_gt_u32 vcc, L_codeend-L_pc, v2\ns_and_saveexec_b64 {sr(sT0,2)}, vcc\ns_cbranch_execz L_pfx')
    a(f'global_load_dword v63, v2, {sr(sB4,2)}')
    a.lab('L_pfx')
    a('s_mov_b64 exec, -1\ns_branch L_A')
    a.lab('L_T23_issue')
    a(f'v_and_b32 v4, 31, v0\nv_lshlrev_b32 v4, 2, v4\nv_add_u32 v4, {L_FL}, v4\nv_mov_b32 v3, 0\nds_write_b32 v4, v3\ns_waitcnt lgkmcnt(0)')
    a.lab('L_T_setup')
    if prio: a(f's_setprio {prio}')
    a('v_and_b32 v0, 63, v0')
    common()
    zero_ts()
    imgbase()
    a(f'v_mov_b32 v16, 0\nv_mov_b32 v17, 0\nv_mov_b32 v18, 0\nv_mov_b32 v19, 0\nv_add_u32 v20, s{sT3}, v6')
    for k in range(4): a(f'ds_write_b128 v20, v[16:19] offset:{1024*k}')
    a(f's_mov_b32 exec_hi, 0\nds_write_b128 v20, v[16:19] offset:4096\nv_add_u32 v20, {L_Z}, v6\nds_write_b128 v20, v[16:19]\ns_mov_b32 exec_hi, -1')
    a(f's_cmp_eq_u32 s{sW}, 1\ns_cbranch_scc0 L_T_gate\ns_waitcnt vmcnt({max(kr, k1 + 4)})')
    if kr != k1 + 4:
        a(f's_cmp_lt_u32 s{sR}, 16\ns_cbranch_scc{1 if kr > k1 + 4 else 0} L_T_gate\ns_waitcnt vmcnt({min(kr, k1 + 4)})')
    a.lab('L_T_gate')
    a('s_barrier')
    mktag()
    KF, QF, DD = 128, 192, 208
    def qk_setup():
        a(f's_lshl_b32 s{sT1}, s{sW}, 14\nv_and_b32 v17, 3, v0\nv_lshrrev_b32 v18, 2, v8\nv_lshl_add_u32 v19, v17, 2, v18\nv_xor_b32 v16, v7, v8')
        vadd(48, (16, 4), (19, 8), f's{sT1}')
        a('v_xor_b32 v49, 64, v48\nv_xor_b32 v50, 0x80, v48\nv_xor_b32 v51, 0xc0, v48')
        a(f'v_mul_u32_u24 v52, 320, v17\nv_lshl_add_u32 v52, v7, 4, v52\nv_add_u32 v52, {L_Q}, v52')
        a(f's_lshl_b32 s{sT1}, s{sW}, 2\nv_add_u32 v53, s{sT1}, v13\ns_add_u32 s{sT1}, s{sT1}, {L_MW}\nv_add_u32 v62, s{sT1}, v6')
        sadd(sT1, (sW, 9), L_P)
        a('v_and_b32 v18, 1, v18')
        vadd(54, (18, 3), (17, 4), (7, 6), (10, 8), f's{sT1}')
        a(f's_mul_i32 s{sT1}, s{sW}, {HS}\ns_add_u32 s{sT1}, s{sT1}, {L_ORED}\nv_add_u32 v55, s{sT1}, v6')
        oprec(sB3)
    def WG_(sg): return 64 + 16*sg
    def WU_(sg): return 72 + 16*sg
    post = (list(range(4)) + sorted(range(4, 16), key=lambda i: (sord and (i & 3) >= pre, i))) if pre else [i for i in range(16) if i & 3 == 0] + [i for i in range(16) if i & 3]
    def f_setup():
        srd(rA, pWG, 512*3584); srd(rB, pWU, 512*3584)
        sadd(sT1, (sGF, 2), (sS, 0))
        a(f's_mul_i32 s{sFB}, s{sW}, {128*3584}\ns_lshl_b32 s{sT0}, s{sT1}, 7\ns_add_u32 s{sFB}, s{sFB}, s{sT0}\ns_lshl_b32 s{sLO}, s{sB}, {2 if pre else 0}')
        a('v_lshrrev_b32 v12, 3, v0\nv_mul_u32_u24 v12, 3584, v12\nv_lshl_add_u32 v12, v9, 4, v12')
    def fld(lo, hi, hook=None):
        for n in range(lo, hi):
            i = post[n]
            if 2*(n - ne - pre) >= NTT: a(f's_waitcnt vmcnt({NTT-2})')
            a(f's_xor_b32 s{sT0}, s{sLO}, {i}\ns_mul_i32 s{sT0}, s{sT0}, {8*3584}\ns_add_u32 s{sOFF}, s{sFB}, s{sT0}')
            a(f'buffer_load_dwordx4 {vr(WG_(i >> 1) + 4*(i & 1), 4)}, v12, {sr(rA,4)}, s{sOFF} offen ' + (nef if n < 4 else ''))
            a(f'buffer_load_dwordx4 {vr(WU_(i >> 1) + 4*(i & 1), 4)}, v12, {sr(rB,4)}, s{sOFF} offen ' + (nef if n < 4 else ''))
            if hook: hook(n)
    def f_pre():
        if not (pre or rde): return
        l = U('L_fp')
        a(f's_cmp_ge_u32 s{sR}, 16\ns_cbranch_scc1 {l}\ns_cmp_eq_u32 s{sGF}, 7\ns_cbranch_scc1 {l}')
        f_setup()
        if rde:
            srd(rC, pX, 4096)
            vadd(21, (9, 4), (10, 3), (7, 1))
            sadd(sT2, (sB, 10), (sW, 8))
        spin(16, F_G3, 2, sleep=1)
        if rde: a(f'buffer_load_ushort v22, v21, {sr(rC,4)}, s{sT2} offen\nbuffer_load_ushort v23, v21, {sr(rC,4)}, s{sT2} offen offset:128')
        fld(0, pre)
        a.lab(l)
    def kread():
        spin(16, F_K, 1, va=53)
        for t in range(4):
            for j in range(4): a(f'ds_read_b128 {vr(KF + 16*t + 4*j, 4)}, v{48+j} offset:{4096*t}')
    a(f's_cmp_gt_u32 s{sW}, 1\ns_cbranch_scc1 L_T23_job')
    sig(F_E)
    a(f's_cmp_lt_u32 s{sMR}, 8\ns_cselect_b32 s{sT0}, s{sW}, 0\ns_cmp_eq_u32 s{sT0}, 1\ns_cbranch_scc1 L_T1_red')
    if gbl:
        a(f's_lshr_b32 s{sT0}, s{sR}, 1\ns_cmp_eq_u32 s{sT0}, 7\ns_cbranch_scc1 L_T_k\ns_mov_b32 s{sCNT}, 0')
        a.lab('L_T_job')
    a('v_bfe_u32 v16, v0, 2, 1')
    vadd(12, (16, 7), (7, 5), (10, 4), f's{sT3}')
    a(f'v_and_b32 v{VI}, 3, v0\nv_mul_u32_u24 v{VI}, 0x5555, v{VI}')
    a(f'v_lshrrev_b32 v18, 5, v0\nv_mul_u32_u24 v16, {PASS}, v18\nv_mul_u32_u24 v17, {SIG}, v9\nv_add3_u32 v11, v16, v17, s{sT3}')
    a('v_and_b32 v17, 1, v7\nv_lshl_add_u32 v11, v17, 4, v11\nv_lshl_add_u32 v11, v10, 6, v11')
    for i in range(8): a(f'v_mov_b32 v{AC+i}, 0')
    vadd(2, (17, 7), (9, 4))
    a(f's_lshl_b32 s{sT0}, s{sW}, 10\ns_add_u32 s{sT1}, s{sT0}, {L_RED}\nv_add_u32 v56, s{sT1}, v6\ns_sub_u32 s{sT1}, {L_RED + 1024}, s{sT0}\nv_add_u32 v57, s{sT1}, v6')
    a(f's_cmp_ge_u32 s{sR}, 16\ns_cbranch_scc1 L_TQ_job')
    a('v_lshl_add_u32 v2, v18, 11, v2\nv_lshl_add_u32 v2, v10, 13, v2')
    a(f's_lshr_b32 s{sT1}, s{sMG}, 1\ns_cmp_lt_u32 s{sMR}, 8\ns_cselect_b32 s{sT1}, s{sMG}, s{sT1}')
    sadd(sB1, (sFB, 14), (sT1, 8), (sW, 12), WS_MOD)
    a(f's_add_u32 s{sB2}, s{sB1}, 4096\ns_mov_b32 s{sT0}, {f32(L2E)}')
    a('s_waitcnt vmcnt(16)')
    a('v_lshlrev_b32 v16, 16, v4\nv_and_b32 v17, 0xffff0000, v4\nv_lshlrev_b32 v18, 16, v5\nv_and_b32 v19, 0xffff0000, v5')
    for r in range(4): a(f'v_mul_f32 v{20+r}, s{sT0}, v{16+r}')
    for r in range(4): a(f'v_exp_f32 v{20+r}, v{20+r}')
    for r in range(4): a(f'v_add_f32 v{20+r}, 1.0, v{20+r}')
    for r in range(4): a(f'v_rcp_f32 v{20+r}, v{20+r}')
    for r in range(4): a(f'v_mul_f32 v{16+r}, v{16+r}, v{20+r}')
    hilo(range(16, 20), range(16, 20), range(20, 24))
    def imgw4():
        a('ds_write2_b32 v11, v16, v17 offset0:0 offset1:2\nds_write2_b32 v11, v18, v19 offset0:8 offset1:10')
        a('ds_write2_b32 v11, v16, v17 offset0:33 offset1:35\nds_write2_b32 v11, v18, v19 offset0:41 offset1:43')
    a(f's_cmp_ge_u32 s{sMR}, 8\ns_cbranch_scc1 L_T_pair')
    imgw4()
    for sg in range(8):
        for p in range(2): a(f'ds_read_b128 {vr(128 + 32*p + 4*sg, 4)}, v12 offset:{p*PASS + sg*SIG}')
    for sg in range(8):
        a(f's_waitcnt vmcnt({14 - 2*sg}) lgkmcnt({14 - 2*sg})')
        for p in range(2): smf(AC + 4*p, 128 + 32*p + 4*sg, W0 + 8*sg, VI)
    tagit(AC); tagit(AC+4)
    a(f'buffer_store_dwordx4 {vr(AC,4)}, v2, {sr(rWS,4)}, s{sB1} offen sc1\nbuffer_store_dwordx4 {vr(AC+4,4)}, v2, {sr(rWS,4)}, s{sB2} offen sc1')
    sig(F_H)
    if gbl: a(f's_cmp_eq_u32 s{sCNT}, 1\ns_cbranch_scc1 L_fin')
    stamp(2)
    a('s_branch L_T_k')
    a.lab('L_T1_red')
    a(f's_and_b32 s{sT2}, s{sS}, 1')
    sadd(sT1, (sT2, 3), (sMG, 0))
    if gbl: a(f's_cmp_ge_u32 s{sT1}, 12\ns_cbranch_scc1 L_T_k')
    sadd(sB1, (sT1, 14), (sB, 11), WS_MOD + 8*16384)
    a(f's_add_u32 s{sB2}, s{sB1}, 8192')
    sadd(sB4, (sB, 13), (sT1, 9), WS_RD)
    vadd(3, (8, 4), (7, 2), L_RED)
    a(f'v_add_u32 v4, {L_RED}, v6')
    spin(16, F_G, 2, sleep=1)
    def lr():
        for sg in range(2): a(f'buffer_load_dwordx4 {vr(W0 + 4*sg, 4)}, v6, {sr(rWS,4)}, s{sB2 if sg else sB1} offen sc1')
    poll(lr, [W0, W0 + 4], 16, cnt=12)
    red4([W0, W0 + 4], [16, 17])
    a('ds_write2_b32 v3, v16, v17 offset0:0 offset1:64\ns_mov_b32 exec_hi, 0\nds_read_b128 v[20:23], v4\ns_waitcnt lgkmcnt(0)')
    tagit(20)
    a(f'buffer_store_dwordx4 v[20:23], v6, {sr(rWS,4)}, s{sB4} offen sc1\ns_mov_b32 exec_hi, -1')
    stamp(2)
    a.lab('L_T_k')
    qk_setup()
    a.lab('L_T_k2')
    f_pre()
    kread()
    a('s_branch L_T_qk')
    a.lab('L_TQ_job')
    a('v_lshl_add_u32 v2, v18, 13, v2\nv_lshl_add_u32 v2, v10, 8, v2')
    qprec(sB1)
    a(f's_lshl_b32 s{sT0}, s{sW}, 14\ns_add_u32 s{sB1}, s{sB1}, s{sT0}')
    a('s_waitcnt vmcnt(0)')
    X = 128
    for i in range(16):
        a(f'v_lshlrev_b32 v{X+2*i}, 16, v{AR+i}\nv_and_b32 v{X+2*i+1}, 0xffff0000, v{AR+i}')
    a(f'v_pk_add_f32 v[16:17], {vr(X,2)}, {vr(X+2,2)}')
    for i in range(2, 16): a(f'v_pk_add_f32 v[16:17], v[16:17], {vr(X+2*i,2)}')
    a('v_add_f32 v16, v16, v17')
    def rowsum(v):
        for k in (1, 2, 4, 8): a(f'v_add_f32_dpp v{v}, v{v}, v{v} row_ror:{k} row_mask:0xf bank_mask:0xf')
    rowsum(16)
    a(f'v_mul_f32 v16, {f32(-1.0/512)}, v16\nv_mov_b32 v17, v16\nv_mov_b32 v18, 0\nv_mov_b32 v19, 0')
    for i in range(16):
        a(f'v_pk_add_f32 {vr(X+2*i,2)}, {vr(X+2*i,2)}, v[16:17]\nv_pk_fma_f32 v[18:19], {vr(X+2*i,2)}, {vr(X+2*i,2)}, v[18:19]')
    a('v_add_f32 v18, v18, v19')
    rowsum(18)
    a(f'v_mov_b32 v19, {f32(1e-5)}\nv_fmac_f32 v19, {f32(1.0/512)}, v18\nv_rsq_f32 v19, v19')
    a('v_lshlrev_b32 v20, 16, v4\nv_and_b32 v21, 0xffff0000, v4\nv_lshlrev_b32 v22, 16, v5\nv_and_b32 v23, 0xffff0000, v5')
    for r in range(4): a(f'v_add_f32 v{20+r}, v{20+r}, v16')
    for r in range(4): a(f'v_mul_f32 v{20+r}, v{20+r}, v19')
    vadd(3, (7, 11), (8, 4))
    sadd(sT1, (sRB, 13), WS_MOD)
    a(f's_add_u32 s{sT2}, s{sT1}, 65536')
    spin(16, F_G, 4)
    stamp(2)
    def l1():
        for sg in range(2):
            for kp in range(8): a(f'buffer_load_dwordx4 {vr(X + 32*sg + 4*kp, 4)}, v3, {sr(rWS,4)}, s{sT2 if sg else sT1} offen offset:{256*kp} sc1')
    def l1f():
        sig(F_GI)
        spin(16, F_E, 8)
    poll(l1, [X + 4*k for k in range(16)], 16, cnt=12, first=(l1f, 0))
    stamp(3)
    if hdel: a(f's_sleep {hdel}')
    tree(X, 8); tree(X + 32, 8)
    add4(X, 20)
    a(f'v_pk_fma_f32 {vr(X,2)}, {vr(X+32,2)}, v[20:21], {vr(X,2)}\nv_pk_fma_f32 {vr(X+2,2)}, {vr(X+34,2)}, v[22:23], {vr(X+2,2)}')
    hilo(range(16, 20), range(X, X+4), range(16, 20))
    a.lab('L_T_pair')
    imgw4()
    a(f's_xor_b32 s{sT0}, s{sW}, 1\ns_mul_i32 s{sT0}, s{sT0}, {PASS}\nv_add_u32 v3, s{sT0}, v12\ns_mul_i32 s{sT0}, s{sW}, {PASS}\nv_add_u32 v4, s{sT0}, v12')
    for p in range(2):
        for sg in range(8): a(f'ds_read_b128 {vr(128 + 32*p + 4*sg, 4)}, v{3+p} offset:{sg*SIG}')
    a('s_waitcnt vmcnt(0)')
    for p in range(2):
        for sg in range(8):
            if p == 0 or sg <= 3: a(f's_waitcnt lgkmcnt({(15 - sg) if p == 0 else (7 - sg if sg < 3 else 0)})')
            smf(AC + 4*p, 128 + 32*p + 4*sg, W0 + 8*sg, VI)
            if p == 1 and sg == 3:
                a(f'ds_write_b128 v57, {vr(AC,4)}')
                sig(F_I)
    spin(16, F_I, 2, extra='ds_read_b128 v[20:23], v56')
    add4(AC + 4, 20)
    a(f's_cmp_lt_u32 s{sR}, 16\ns_cbranch_scc1 L_T_late')
    cold.lab('L_T_late')
    cold(f'v_bfi_b32 v{AC+4}, s{sMASK}, v{VT}, v{AC+4}\nbuffer_store_dwordx4 {vr(AC+4,4)}, v2, {sr(rWS,4)}, s{sB1} offen sc1')
    if ts: cold(f's_memrealtime {sr(TS0 + 4, 2)}')
    cold('s_branch L_T_k')
    tagit(AC+4, VTA)
    a(f'buffer_store_dwordx4 {vr(AC+4,4)}, v2, {sr(rWS,4)}, s{sB1} offen')
    sig(F_P)
    stamp(4)
    qk_setup()
    kread()
    a.lab('L_qs')
    a(f'ds_read_b64 v[16:17], v13 offset:{F_Q}')
    budget()
    a(f's_waitcnt lgkmcnt(0)\nv_or_b32 v18, v16, v17\nv_readfirstlane_b32 s{sSLOW}, v17\nv_cmp_eq_u32 vcc, 0, v18\ns_cbranch_vccnz L_qs')
    a(f's_cmp_eq_u32 s{sSLOW}, 0\ns_cbranch_scc1 L_T_qk2')
    pubdup(AC+4, 4, 2, sB1)
    a('s_branch L_T_qk')
    a.lab('L_T23_job')
    qk_setup()
    a(f's_cmp_eq_u32 s{sW}, 2\ns_cbranch_scc1 L_T2_pre')
    sig(F_E)
    a(f's_cmp_lt_u32 s{sR}, 16\ns_cbranch_scc1 L_T_k2')
    qprec(sB1)
    vadd(2, (17, 7), (7, 13))
    a(f'buffer_load_dword v97, v2, {sr(rWS,4)}, s{sB1} offen')
    yprec(sB1)
    a('v_lshrrev_b32 v3, 5, v0')
    if yl:
        a('v_and_b32 v4, 1, v7')
        vadd(2, (3, 14), (10, 7), (4, 16))
    else: vadd(2, (3, 14), (10, 7))
    a(f'buffer_load_dword v97, v2, {sr(rWS,4)}, s{sB1} offen')
    a('s_branch L_T_k2')
    a.lab('L_T2_pre')
    a('v_min_u32 v2, 8, v0\nv_lshlrev_b32 v2, 7, v2')
    for i in range(8): a(f'v_mov_b32 v{32+i}, 0')
    a(f's_cmp_ge_u32 s{sR}, 16\ns_cbranch_scc1 L_T2_q')
    spin(16, F_E, 7, sleep=1)
    if fpt == 1:
      sadd(sT1, (sGF, 2), (sS, 0))
      sadd(sB1, (sT1, 7), (sB, 16), WS_FP)
      a(f'v_lshrrev_b32 v3, 2, v0\nv_lshlrev_b32 v3, 12, v3\nbuffer_load_dword v97, v3, {sr(rWS,4)}, s{sB1} offen')
    a.lab('L_T2_q')
    a(f'buffer_load_dword v97, v2, {sr(rWS,4)}, s{sB3} offen\nbuffer_store_dwordx4 v[32:35], v6, {sr(rWS,4)}, s{sB3} offen')
    sadd(sB1, (sG, 15), (sB, 13), WS_QP)
    a('v_lshrrev_b32 v3, 5, v0\nv_and_b32 v4, 31, v0')
    vadd(2, (4, 4), (3, 11))
    a('v_add_u32 v59, 4096, v2')
    a(f'v_bfe_u32 v56, v0, 2, 2\nv_lshl_add_u32 v56, v7, 3, v56\nv_mul_u32_u24 v56, {OPS}, v56\nv_lshl_add_u32 v56, v17, 4, v56')
    a(f's_mul_i32 s{sB4}, s{sG}, {32*OPS}\ns_add_u32 s{sB4}, s{sB4}, {WS_OP}')
    a(f'v_and_b32 v4, 1, v7\nv_mul_u32_u24 v11, 320, v3\nv_lshl_add_u32 v11, v4, 7, v11\nv_lshl_add_u32 v11, v9, 4, v11\nv_lshl_add_u32 v11, v10, 3, v11\nv_add_u32 v11, {L_Q}, v11')
    a(f'v_mov_b32 v4, v{VTA}\nv_xor_b32 v5, v{VT}, v{VTA}\nv_mov_b32 v36, v{VTA}\ns_mov_b32 s{sCNT}, 0\ns_waitcnt vmcnt(0)')
    a(f's_mov_b64 exec, 0xf0\nbuffer_store_dwordx4 v[36:39], v6, {sr(rWS,4)}, s{sB3} offen offset:1024')
    sig(F_E)
    f_pre()
    if pre: W0 = 224
    spin(3, F_G2, 2, sleep=1)
    stamp(2)
    def l3(R=W0, M=(223 if pre else 96)):
        a(f'buffer_load_dword v{M}, v56, {sr(rWS,4)}, s{sB4} offen offset:{1024+64} sc1')
        for hp in range(2):
            for e in range(4): a(f'buffer_load_dwordx4 {vr(R + 16*hp + 4*e, 4)}, v{59 if hp else 2}, {sr(rWS,4)}, s{sB1} offen offset:{512*e} sc1')
    def r3():
        a(f's_add_u32 s{sCNT}, s{sCNT}, 1\ns_cmp_lt_u32 s{sCNT}, {fb}\ns_cbranch_scc1 L_r3x\ns_cmp_gt_u32 s{sCNT}, {fb}\ns_cbranch_scc1 L_r3t')
        a(f's_add_u32 s{sOFF}, s{sB3}, {WS_B}\nv_mov_b32 v36, v{VT}\nbuffer_store_dwordx4 v[32:35], v6, {sr(rWS,4)}, s{sOFF} offen sc1\ns_waitcnt vmcnt(0)')
        a(f's_mov_b64 exec, 0xf0\nbuffer_store_dwordx4 v[36:39], v6, {sr(rWS,4)}, s{sOFF} offen offset:1024 sc1')
        sig(F_S)
        a.lab('L_r3t')
        a(f's_xor_b32 s{sB1}, s{sB1}, {WS_B}\ns_xor_b32 s{sB4}, s{sB4}, {WS_B}\nv_xor_b32 v4, v4, v5')
        a.lab('L_r3x')
    if g3m:
        l3(224, 60)
        spin(3, F_G3, 2)
        def f3():
            a('s_waitcnt vmcnt(9)')
            fs = [60] + [224 + 4*k for k in range(8)]
            for f in fs: a(f'v_xor_b32 v{f}, v{f}, v4')
            orall(fs, 3)
            a('s_cbranch_vccz L_q1')
        poll(l3, [96] + [W0 + 4*k for k in range(8)], 3, vt=4, cnt=12, retry=r3, first=(f3, 0))
        for k in range(0, 32, 2): a(f'v_pk_mov_b32 {vr(224+k,2)}, {vr(W0+k,2)}, {vr(W0+k,2)} op_sel:[0,1]')
        a.lab('L_q1')
        W0 = 224
    else:
        poll(l3, [223 if pre else 96] + [W0 + 4*k for k in range(8)], 3, vt=4, cnt=12, retry=r3)
    stamp(3)
    tree(W0, 4); tree(W0 + 16, 4)
    for hp in range(2):
        R = W0 + 16*hp
        a(f'v_cvt_pk_bf16_f32 v{R}, v{R}, v{R+1}\nv_cvt_pk_bf16_f32 v{R+1}, v{R+2}, v{R+3}\nds_write_b64 v11, {vr(R,2)} offset:{640*hp}')
    a(f's_and_b32 s{sT0}, s{sB1}, {WS_B}\nv_mov_b32 v3, s{sT0}\nds_write_b32 v13, v3 offset:{F_S2}')
    sig(F_Q)
    stamp(4)
    kread()
    a.lab('L_T_qk')
    spin(16, F_Q, 1, extra=f'ds_read_b32 v17, v13 offset:{F_S}')
    a.lab('L_T_qk2')
    if pdel: a(f's_sleep {pdel}')
    stamp(5)
    if plate: a(f'ds_read_b32 v19, v13 offset:{F_VI}')
    for j in range(4): a(f'ds_read_b128 {vr(QF + 4*j, 4)}, v52 offset:{64*j}')
    a(f'v_readfirstlane_b32 s{sSLOW}, v17\ns_mov_b32 s{sT2}, {f32(SC)}')
    for j in range(4):
        a(f's_waitcnt lgkmcnt({3-j})')
        for t in (range(4) if j < 3 else (1, 0, 2, 3)):
            c = '0' if j == 0 else vr(DD + 4*t, 4)
            a(f'v_mfma_f32_16x16x32_bf16 {vr(DD + 4*t, 4)}, {vr(KF + 16*t + 4*j, 4)}, {vr(QF + 4*j, 4)}, {c}')
    if plate: a(f'v_readfirstlane_b32 s{sRB}, v19')
    for t in range(1, 4):
        for r in range(4):
            a(f'v_mov_b32_dpp v{DD+r}, v{DD+4*t+r} quad_perm:[0,1,2,3] row_mask:0xf bank_mask:{1<<t:#x}')
    a(f'v_max3_f32 v16, v{DD}, v{DD+1}, v{DD+2}\nv_max_f32 v16, v16, v{DD+3}')
    a('v_max_f32_dpp v16, v16, v16 row_ror:4 row_mask:0xf bank_mask:0xf')
    a('v_max_f32_dpp v16, v16, v16 row_ror:8 row_mask:0xf bank_mask:0xf')
    a('v_mov_b32 v17, v16\nv_permlane16_swap_b32 v16, v17\nv_max_f32 v16, v16, v17\nv_mov_b32 v17, v16\nv_permlane32_swap_b32 v16, v17\nv_max_f32 v16, v16, v17')
    a(f'v_mul_f32 v17, s{sT2}, v16')
    for r in range(4): a(f'v_fma_f32 v{DD+r}, v{DD+r}, s{sT2}, -v17')
    for r in range(4): a(f'v_exp_f32 v{DD+r}, v{DD+r}')
    a(f'v_cvt_pk_bf16_f32 v18, v{DD}, v{DD+1}\nv_cvt_pk_bf16_f32 v19, v{DD+2}, v{DD+3}\nds_write_b64 v54, v[18:19]')
    a(f's_mov_b64 exec, 1\nds_add_u32 v53, v14 offset:{F_PR}\ns_mov_b64 exec, 15\nds_write_b32 v62, v17')
    sig(F_M)
    stamp(6)
    CSA = 192
    f_setup()
    srd(rC, pX, 4096)
    a(f'v_lshl_add_u32 v4, v9, 3, v7\nv_lshl_add_u32 v4, v10, 2, v4\nv_lshlrev_b32 v21, 1, v4')
    sadd(sMK, (sB, 10), (sW, 8))
    imgbase()
    a('v_and_b32 v3, 1, v0')
    vadd(11, (3, 4), (7, 5), (10, 7), f's{sT3}')
    a('v_bfe_u32 v5, v0, 1, 2\nv_mul_u32_u24 v5, 0x5555, v5')
    for i in range(8): a(f'v_mov_b32 v{AC+i}, 0')
    a(f'v_xor_b32 v2, s{sLO}, v9\nv_and_b32 v3, 1, v2\nv_and_b32 v61, 1, v7\nv_lshrrev_b32 v63, 1, v7')
    vadd(60, (3, 6), (10, 5), (61, 4), (63, 3))
    a(f'v_lshrrev_b32 v2, 1, v2\nv_xor_b32 v3, 4, v2\nv_mul_u32_u24 v2, {SIG}, v2\nv_mul_u32_u24 v3, {SIG}, v3\nv_add3_u32 v2, v2, v60, s{sT3}\nv_add3_u32 v3, v3, v60, s{sT3}')
    a(f'v_add_u32 v61, {PASS}, v2\nv_add_u32 v63, {PASS}, v3')
    a(f's_lshl_b32 s{sT2}, s{sW}, 9\ns_add_u32 s{sT3}, s{sT2}, {L_X1}\nv_lshl_add_u32 v4, v4, 2, s{sT3}\ns_add_u32 s{sT3}, s{sT2}, {L_RS}')
    vadd(60, (8, 4), (7, 2), f's{sT3}')
    sadd(sB2, (sB, 14), (sW, 12), WS_YP)
    a(f's_lshl_b32 s{sT0}, s{sW}, 4\ns_add_u32 s{sT3}, s{sT0}, {L_LS}\nv_mov_b32 v62, s{sT3}\nv_lshlrev_b32 v20, 3, v0')
    a(f's_add_u32 s{sB4}, s{sB3}, 1024\ns_lshl_b32 s{sT0}, s{sW}, 8\ns_add_u32 s{sB3}, s{sB3}, s{sT0}')
    spin(16, F_M, 4, extra='ds_read_b128 v[56:59], v62 offset:64')
    a('v_max3_f32 v33, v56, v57, v58\nv_max_f32 v33, v33, v59')
    for k in range(4): a(f'v_sub_f32 v{56+k}, v{56+k}, v33')
    for k in range(4): a(f'v_exp_f32 v{56+k}, v{56+k}')
    a(f'v_mov_b32 v32, v{VTA}\nv_mov_b32 v35, 0')
    spin(16, F_L, 4, extra='ds_read_b128 v[36:39], v62')
    a('v_mul_f32 v34, v36, v56\nv_fmac_f32 v34, v37, v57\nv_fmac_f32 v34, v38, v58\nv_fmac_f32 v34, v39, v59')
    a(f's_lshl_b64 exec, 1, s{sW}\nbuffer_store_dwordx4 v[32:35], v6, {sr(rWS,4)}, s{sB4} offen')
    pubdup(32, 4, 6, sB4)
    GA, GC, XC, XX, EA, Y = 16, 18, 20, 22, 32, 48
    a(f's_mov_b64 exec, -1\ns_cmp_ge_u32 s{sR}, 16\ns_cbranch_scc1 L_T_noe\ns_cmp_eq_u32 s{sGF}, 7\ns_cbranch_scc1 L_T_noe')
    if plate: a(f's_cmp_ge_u32 s{sRB}, {plate}\ns_cbranch_scc1 L_T_noe')
    fld(pre, pre + ne)
    a.lab('L_T_noe')
    a('s_mov_b32 exec_hi, 0')
    a('s_mov_b32 exec_lo, -1\ns_barrier')
    for w in range(4): a(f'ds_read_b128 {vr(36 + 4*w, 4)}, v55 offset:{SR*w}')
    for w in range(4):
        a(f's_waitcnt lgkmcnt({3-w})')
        for hf in (0, 2):
            k = w & 1
            if w == 0: a(f'v_pk_mul_f32 {vr(36+hf,2)}, {vr(36+hf,2)}, v[56:57] op_sel:[0,0] op_sel_hi:[1,0]')
            else: a(f'v_pk_fma_f32 {vr(36+hf,2)}, {vr(36+4*w+hf,2)}, {vr(56+(w&2),2)}, {vr(36+hf,2)} op_sel:[0,{k},0] op_sel_hi:[1,{k},1]')
    a('v_cvt_pk_bf16_f32 v36, v36, v37\nv_cvt_pk_bf16_f32 v37, v38, v39\nv_or_b32 v36, 1, v36')
    a(f'buffer_store_dwordx2 v[36:37], v20, {sr(rWS,4)}, s{sB3} offen')
    if trim & 2: a('s_barrier')
    pubdup(36, 2, 20, sB3, tag=False)
    a('s_mov_b32 exec_hi, -1' + ('' if trim & 2 else '\ns_barrier'))
    stamp(7)
    a(f's_cmp_ge_u32 s{sR}, 16\ns_cbranch_scc1 L_T_O\ns_cmp_eq_u32 s{sGF}, 7\ns_cbranch_scc1 L_fin')
    hot, a = a, cold
    a.lab('L_T_O')
    if gbl:
        a(f's_cmp_eq_u32 s{sW}, 0\ns_cselect_b32 s{sT0}, s{sS}, 0\ns_cmp_eq_u32 s{sT0}, 4\ns_cbranch_scc0 L_T_O2')
        srd(rA, pWM, 512*6144); srd(rB, pC, 4096)
        a(f's_add_u32 s{sFB}, s{sB}, 20\ns_mul_i32 s{sB1}, s{sG}, {64*6144}\ns_lshl_b32 s{sT0}, s{sFB}, 8\ns_add_u32 s{sB1}, s{sB1}, s{sT0}\ns_lshl_b32 s{sB2}, s{sG}, 7')
        a('v_mul_u32_u24 v2, 6144, v7\nv_lshl_add_u32 v2, v8, 4, v2')
        vadd(3, (7, 10), (9, 4), (10, 3))
        a(f's_mov_b32 s{sR}, 0\ns_mov_b32 s{sCNT}, 1')
        imgbase()
        a('s_barrier\ns_barrier')
        a(f'buffer_load_dwordx2 v[4:5], v3, {sr(rB,4)}, s{sB2} offen')
        for i in range(16):
            a(f'buffer_load_dwordx4 {vr(64+4*i,4)}, v2, {sr(rA,4)}, s{sB1} offen {hfl}')
            if i < 15: a(f's_add_u32 s{sB1}, s{sB1}, {4*6144}')
        a('s_branch L_T_job')
        a.lab('L_T_O2')
    a('s_barrier\ns_branch L_fin')
    a = hot
    if plate:
        a(f's_cmp_ge_u32 s{sRB}, {plate}\ns_cbranch_scc1 L_T_ne')
        a.lab('L_T_neb')
        hot, a = a, cold
        a.lab('L_T_ne'); fld(0, ne); a('s_branch L_T_neb')
        a = hot
    if not rde: a(f'buffer_load_ushort v{XX}, v21, {sr(rC,4)}, s{sMK} offen\nbuffer_load_ushort v{XX+1}, v21, {sr(rC,4)}, s{sMK} offen offset:128')
    if fdel: a(f's_sleep {fdel}')
    n0 = min(16, pre + ne + NTT // 2)
    fld(pre + ne, n0)
    if yl:
        a(f'ds_read_b32 v48, v13 offset:{F_S2}\ns_lshr_b32 s{sT0}, s{sG}, 2\ns_lshl_b32 s{sT0}, s{sT0}, 10\ns_add_u32 s{sB1}, s{sB2}, s{sT0}\ns_xor_b32 s{sB2}, s{sB1}, 1024')
        a(f's_and_b32 s{sT0}, s{sG}, 3\nv_add_u32 v8, 0x10000, v6\ns_waitcnt lgkmcnt(0)\nv_or_b32 v48, v48, v7\nv_cmp_eq_u32 {sr(sB4,2)}, s{sT0}, v48')
        a(f'v_cndmask_b32 v8, v6, v8, {sr(sB4,2)}\nv_cndmask_b32 v{VTA}, v{VT}, v{VTA}, {sr(sB4,2)}')
    for i in range(16): a(f'v_mov_b32 v{EA+i}, 0')
    spin(49, F_RS, 4, extra=f'ds_read2st64_b32 {vr(GA,2)}, v60 offset0:0 offset1:1\nds_read2st64_b32 v[52:53], v60 offset0:8 offset1:9\nds_read2st64_b32 v[54:55], v60 offset0:16 offset1:17')
    a(f's_waitcnt vmcnt({2*(n0 - pre) + 2 if rde else 2*(n0 - pre - ne)})')
    a(f'v_add_f32 v54, 1.0, v54\nv_add_f32 v55, 1.0, v55\nv_lshlrev_b32 v{XX}, 16, v{XX}\nv_lshlrev_b32 v{XX+1}, 16, v{XX+1}')
    a(f'v_pk_mul_f32 {vr(GC,2)}, {vr(GA,2)}, v[54:55]\nv_pk_mul_f32 {vr(XC,2)}, {vr(XX,2)}, v[54:55]')
    hilo(range(52, 56), range(52, 56), range(56, 60))
    a('ds_write2_b32 v2, v54, v54 offset0:0 offset1:33\nds_write2_b32 v3, v55, v55 offset0:0 offset1:33')
    a('ds_write2_b32 v61, v52, v52 offset0:0 offset1:33\nds_write2_b32 v63, v53, v53 offset0:0 offset1:33')
    for p in range(2):
        for sg in range(8): a(f'ds_read_b128 {vr(CSA + 32*p + 4*sg, 4)}, v11 offset:{p*PASS + sg*SIG}')
    def cs(sg):
        for p in range(2):
            smf(EA + 8*p, CSA + 32*p + 4*sg, WG_(sg), 5); smf(EA + 8*p + 4, CSA + 32*p + 4*sg, WU_(sg), 5)
    need = lambda sg: max(post.index(i) + 1 for i in (2*sg, 2*sg + 1))
    done = [0]
    so_ = sorted(range(8), key=need)
    a('s_waitcnt lgkmcnt(0)')
    if rde:
        while need(so_[done[0]]) <= pre: cs(so_[done[0]]); done[0] += 1
    def hook(n):
        landed = n - (NTT - 2) // 2
        k = 0
        while k < mcs and done[0] < 8 and need(so_[done[0]]) <= landed: cs(so_[done[0]]); done[0] += 1; k += 1
    fld(n0, 16, hook)
    if wdel: a(f's_sleep {wdel}')
    stamp(15)
    def l5():
        for k in range(4):
            if yl: a(f'buffer_load_dwordx4 {vr(Y + 4*k, 4)}, v{8 if k & 1 else 6}, {sr(rWS,4)}, s{sB1 if k & 1 else sB2} offen offset:{2048*(k >> 1)} sc1')
            else: a(f'buffer_load_dwordx4 {vr(Y + 4*k, 4)}, v6, {sr(rWS,4)}, s{sB2} offen offset:{1024*k} sc1')
    def ychk():
        for k in range(4): a(f'v_xor_b32 v{Y+4*k}, v{Y+4*k}, v{VTA if (yl and k & 1) else VT}')
        orall([Y + 4*k for k in range(4)], 32)
    def rest_cs(k0=4):
        sig(F_YI)
        sadd(sT3, (sW, 10), L_ORED)
        a(f'v_add_u32 v12, s{sT3}, v6')
        for sg in so_[done[0]:]:
            a(f's_waitcnt vmcnt({k0 + 2*(16 - need(sg))})')
            cs(sg)
        for k in range(4): parity(CSA + k, EA + 4*k)
        a(f'ds_write_b128 v12, {vr(CSA,4)}')
        sig(F_CS)
        a(f's_add_u32 s{sT0}, s{sT2}, {L_RED}\nv_lshl_add_u32 v12, v0, 3, s{sT0}\ns_lshl_b32 s{sT0}, s{sW}, 3\ns_add_u32 s{sT0}, s{sT0}, {L_ST}\nv_mov_b32 v40, s{sT0}')
        if opt & 18: a(f's_mov_b32 s{sB4}, 0\ns_mov_b32 s{sB4+1}, 0x80000000')
    def own():
        l = U('L_own')
        a(f'v_or_b32 v32, v{Y}, v{Y+8}\nv_or_b32 v33, v{Y+4}, v{Y+12}\nv_and_b32 v32, s{sMASK}, v32\nv_and_b32 v33, s{sMASK}, v33')
        a(f'v_cmp_ne_u32 vcc, 0, v32\nv_cmp_ne_u32 {sr(sB4,2)}, 0, v33\ns_cmp_lt_u32 s{sG}, 4\ns_cselect_b64 vcc, vcc, {sr(sB4,2)}')
        a(f's_lshl_b32 s{sT0}, s{sG}, 4\ns_lshr_b64 vcc, vcc, s{sT0}\ns_and_b32 s{sT0}, vcc_lo, 0xffff\ns_cbranch_scc1 {l}')
        sig(F_YI)
        a.lab(l)
    if opf: poll(l5, [Y + 4*k for k in range(4)], 32, cnt=14, first=(rest_cs, 0), retry=own)
    elif opt & 1:
        def ychk2():
            a(f's_waitcnt vmcnt(2)\nv_xor_b32 v{Y}, v{Y}, v{VT}\nv_xor_b32 v{Y+4}, v{Y+4}, v{VTA}\nv_or_b32 v41, v{Y}, v{Y+4}')
            add4(Y, Y + 4)
            red4([Y], [32])
            a(f's_waitcnt vmcnt(0)\nv_xor_b32 v{Y+8}, v{Y+8}, v{VT}\nv_xor_b32 v{Y+12}, v{Y+12}, v{VTA}\nv_or3_b32 v41, v41, v{Y+8}, v{Y+12}')
            add4(Y + 8, Y + 12)
            a(f'v_and_b32 v41, s{sMASK}, v41\nv_cmp_ne_u32 vcc, 0, v41')
        assert yl
        poll(l5, None, None, check=ychk2, cnt=14, first=(rest_cs, 0), after_issue=lambda: sig(F_YI), ownwait=True)
    else: poll(l5, None, None, check=ychk, cnt=14, first=(rest_cs, 0), after_issue=lambda: sig(F_YI))
    stamp(8)
    if opt & 1:
        R = Y + 8
        a(f'v_permlane32_swap_b32 v{R}, v{R+2}\nv_permlane32_swap_b32 v{R+1}, v{R+3}\nv_pk_add_f32 {vr(R,2)}, {vr(R,2)}, {vr(R+2,2)}')
        a(f'ds_write_b32 v13, v13 offset:{F_YI}')
        a(f'v_permlane16_swap_b32 v{R}, v{R+1}\nv_add_f32 v33, v{R}, v{R+1}')
    else:
        if not trim & 8: sig(F_YI, 8)
        add4(Y, Y + 4); add4(Y + 8, Y + 12)
        red4([Y, Y + 8], [32, 33])
    a(f'v_pk_fma_f32 v[34:35], v[32:33], {vr(GC,2)}, {vr(XC,2)}')
    hilo((34, 35), (34, 35), (36, 37))
    a('ds_write2_b32 v2, v34, v34 offset0:0 offset1:33\nds_write2_b32 v3, v35, v35 offset0:0 offset1:33')
    for sg in range(8): a(f'ds_read_b128 {vr(CSA + 4*sg, 4)}, v11 offset:{sg*SIG}')
    if trim & 8: sig(F_YI, 8)
    a(f'v_pk_fma_f32 {vr(XX,2)}, v[32:33], {vr(GA,2)}, {vr(XX,2)}')
    a(f'ds_write2_b32 v4, v{XX}, v{XX+1} offset0:0 offset1:64')
    a(f'v_add_f32 v38, v{XX}, v{XX+1}\nv_mul_f32 v39, v{XX}, v{XX}\nv_fmac_f32 v39, v{XX+1}, v{XX+1}')
    dpp = [f'row_ror:{k} row_mask:0xf' for k in (1, 2, 4, 8)] + ['row_bcast:15 row_mask:0xa', 'row_bcast:31 row_mask:0xc']
    if opt & 18:
        D_ = lambda v, k: f'v_add_f32_dpp v{v}, v{v}, v{v} {dpp[k]} bank_mask:0xf'
        for k in range(npd): a(D_(38, k)); a(D_(39, k))
        fill = [D_(v, k) for k in range(npd, 6) for v in (38, 39)]
        ops = [(AC, WG_, sg) for sg in range(8)]
        seqm = []
        for sg in range(6): seqm += [(AC, WG_(sg), sg), (AC + 4, WU_(sg), sg)]
        seqm += [(AC, WG_(6), 6), (AC, WG_(7), 7), (AC + 4, WU_(6), 6), (AC + 4, WU_(7), 7)]
        have = -1; extra = 1; wrote = False
        for (D, B_, sg) in seqm:
            if sg > have:
                have = sg if sg < 2 else min(7, sg + 1)
                a(f's_waitcnt lgkmcnt({7 - have + extra})')
            smf(D, CSA + 4*sg, B_, 5)
            if fill: a(fill.pop(0))
            elif not wrote and opt & 2:
                a(f's_mov_b64 exec, {sr(sB4,2)}\nds_write_b64 v40, v[38:39]\nds_add_u32 v13, v14 offset:{F_ST}\ns_mov_b64 exec, -1')
                wrote = True; extra += 2
        if not wrote: a(f's_mov_b64 exec, {sr(sB4,2)}\nds_write_b64 v40, v[38:39]\ns_mov_b64 exec, -1')
        a(f'v_add_f32_dpp v20, v{AC+1}, v{AC} row_ror:8 row_mask:0xf bank_mask:0x3')
        a(f'v_add_f32_dpp v21, v{AC+5}, v{AC+4} row_ror:8 row_mask:0xf bank_mask:0x3')
        a(f'v_add_f32_dpp v20, v{AC+2}, v{AC+3} row_ror:8 row_mask:0xf bank_mask:0xc')
        a(f'v_add_f32_dpp v21, v{AC+6}, v{AC+7} row_ror:8 row_mask:0xf bank_mask:0xc')
    else:
        for sg in range(8):
            a(f's_waitcnt lgkmcnt({(9 if trim & 8 else 8) - sg})')
            smf(AC, CSA + 4*sg, WG_(sg), 5)
            if sg < 6: a(f'v_add_f32_dpp v38, v38, v38 {dpp[sg]} bank_mask:0xf')
            smf(AC + 4, CSA + 4*sg, WU_(sg), 5)
            if sg < 6: a(f'v_add_f32_dpp v39, v39, v39 {dpp[sg]} bank_mask:0xf')
        a('s_mov_b32 exec_lo, 0\ns_mov_b32 exec_hi, 0x80000000\nds_write_b64 v40, v[38:39]\ns_mov_b64 exec, -1')
        parity(20, AC); parity(21, AC+4)
    a('ds_write_b64 v12, v[20:21]')
    a('s_waitcnt lgkmcnt(0)\ns_barrier')
    stamp(9)
    a(f's_cmp_lt_u32 s{sGF}, 4\ns_cbranch_scc0 L_fin\ns_cmp_eq_u32 s{sW}, 0\ns_cbranch_scc0 L_fin')
    a(f's_lshr_b32 s{sT2}, s{sT1}, 1\ns_and_b32 s{sT3}, s{sT1}, 1')
    if gbl:
        sadd(sB4, (sT2, 13), (sB, 11), (sT3, 7), WS_MOD + 40*8192)
        a('v_lshrrev_b32 v17, 3, v0')
        vadd(18, (17, 8), (9, 4))
    else:
        sadd(sB1, (sT1, 7), L_RS + 6144)
        vadd(18, (9, 4), (7, 2), f's{sB1}')
        a('ds_read_b32 v20, v18')
    sadd(sB1, (sT2, 6), (sT3, 2))
    a(f'v_lshl_add_u32 v21, v9, 3, v7\nv_add_u32 v21, s{sB1}, v21')
    a(f'v_lshlrev_b32 v22, 2, v21\nv_lshlrev_b32 v21, 1, v21\nv_add_u32 v22, {L_X1}, v22\nds_read_b32 v23, v22')
    sadd(sB1, (sB, 16), (sT1, 12), WS_FP)
    srd(rA, pOUT, 4096)
    a(f's_lshl_b32 s{sB2}, s{sB}, 10')
    for i in range(4): a(f'v_mov_b32 v{44+i}, 0')
    if opt & 8: a(f'v_mov_b32 v17, 0\ns_mov_b32 exec_hi, 0\nv_mov_b32 v17, v{VT}\ns_mov_b32 exec_hi, -1\ns_mov_b32 s{sB4}, 0x00ff00ff\ns_mov_b32 s{sB4+1}, 0x00ff00ff\ns_waitcnt lgkmcnt(0)')
    if fack: a('s_barrier')
    if fsleep: a(f's_sleep {fsleep}')
    stamp(10)
    def fl():
        if gbl: a(f'buffer_load_dwordx4 v[48:51], v18, {sr(rWS,4)}, s{sB4} offen sc1')
        for j in range(3): a(f'buffer_load_dwordx4 {vr(32+4*j,4)}, v6, {sr(rWS,4)}, s{sB1} offen offset:{1024*j} sc1')
        a(f's_mov_b32 exec_hi, 0\nbuffer_load_dwordx4 v[44:47], v6, {sr(rWS,4)}, s{sB1} offen offset:3072 sc1')
    def fchk():
        a(f'v_xor_b32 v44, v44, v{VT}\ns_mov_b32 exec_hi, -1')
        for j in range(3): a(f'v_xor_b32 v{32+4*j}, v{32+4*j}, v{VT}')
        if gbl: a(f'v_xor_b32 v48, v48, v{VT}')
        orall([32, 36, 40, 44] + ([48] if gbl else []), 19)
    if opt & 8:
        assert not gbl
        def fchk2():
            a(f's_mov_b32 exec_hi, -1\ns_waitcnt vmcnt(2)\nv_xor_b32 v32, v32, v{VT}\nv_xor_b32 v36, v36, v{VT}\nv_or_b32 v19, v32, v36')
            add4(32, 36)
            a(f's_waitcnt vmcnt(1)\nv_xor_b32 v40, v40, v{VT}')
            add4(32, 40)
            a(f's_waitcnt vmcnt(0)\nv_xor_b32 v44, v44, v17\nv_or3_b32 v19, v19, v40, v44')
            add4(32, 44)
            a(f'v_and_b32 v19, s{sMASK}, v19\nv_cmp_ne_u32 vcc, 0, v19')
        poll(fl, None, None, check=fchk2, cnt=1, ownwait=True)
        stamp(13)
    else:
        poll(fl, None, None, check=fchk, cnt=1)
        stamp(13)
        add4(32, 40); add4(36, 44); add4(32, 36)
    if gbl:
        red4([48, 32], [20, 24])
        a('v_add_f32_dpp v20, v20, v20 row_ror:8 row_mask:0xf bank_mask:0xf')
    else: red4([32], [24])
    a('v_add_f32_dpp v24, v24, v24 row_ror:8 row_mask:0xf bank_mask:0xf')
    if opt & 8: a(f'v_fma_f32 v24, v24, v20, v23\nv_cvt_pk_bf16_f32 v24, v24, v24\ns_mov_b64 exec, {sr(sB4,2)}')
    else:
        a('s_waitcnt lgkmcnt(0)\nv_fma_f32 v24, v24, v20, v23\nv_cvt_pk_bf16_f32 v24, v24, v24')
        a('s_mov_b32 exec_lo, 0x00ff00ff\ns_mov_b32 exec_hi, 0x00ff00ff')
    a(f'buffer_store_short v24, v21, {sr(rA,4)}, s{sB2} offen')
    a(f's_cmp_eq_u32 s2, 0\ns_cbranch_scc0 L_fin')
    a(f's_mov_b64 exec, 1\nv_mov_b32 v24, s{sE}\nbuffer_store_dword v24, v6, {sr(rWS,4)}, 0 offen')
    a('s_branch L_fin')

    VR, PV_, WO, ACL, ONE = 32, 160, 192, 20, 16
    PX = (96, 32)
    U0 = 128
    AC2, PA, vOW, vLS, vFW = 140, 148, 152, 153, 154
    a.lab('L_A')
    a('v_and_b32 v0, 63, v0')
    a(f's_and_b32 s{sT1}, s{sR}, 15\ns_lshl_b32 s{sT2}, s{sG}, 1\ns_xor_b32 s{sT1}, s{sT1}, s{sT2}')
    sadd(sB1, (sB, 24), (sG, 21), (sS, 16), (sW, 14), (sT1, 10), 0x180000)
    a(f's_lshl_b32 m0, s{sW}, 14')
    a(f's_mov_b32 s{sLO}, 0x05040100\ns_waitcnt lgkmcnt(0)')
    stamp(1)
    common()
    a('v_lshlrev_b32 v2, 6, v7\nv_xor_b32 v2, v6, v2\nv_xor_b32 v3, 16, v2\nv_xor_b32 v4, 32, v2\nv_xor_b32 v5, 48, v2')
    srd(rA, pK, 0x4000000); srd(rB, pV, 0x4000000); srd(rC, pWO, 4096*1024)
    def setup_A():
        zero_ts()
        mktag()
        sig(F_E)
        imgbase()
        for i in range(8): a(f'v_mov_b32 v{AC2+i}, 0')
        sadd(sT1, (sW, 9), L_P)
        a('v_and_b32 v21, 3, v0\nv_lshrrev_b32 v22, 2, v0')
        vadd(23, (21, 4), (7, 6), f's{sT1}')
        for u in range(4): a(f'v_mov_b32 v{PA+u}, {L_Z}')
        for u in range(4): a(f'v_mov_b32_dpp v{PA+u}, v23 quad_perm:[0,1,2,3] row_mask:0xf bank_mask:{1<<u:#x}')
        for i in range(4): a(f'v_mov_b32 v{ONE+i}, 0x3f803f80')
        a(f's_mul_i32 s{sT1}, s{sW}, {SR}\ns_add_u32 s{sT1}, s{sT1}, {L_ORED}\nv_mul_u32_u24 v{vOW}, {HS}, v21\nv_lshl_add_u32 v{vOW}, v22, 4, v{vOW}\nv_add_u32 v{vOW}, s{sT1}, v{vOW}')
        a(f's_lshl_b32 s{sT1}, s{sW}, 2\nv_add_u32 v{vFW}, s{sT1}, v13\ns_add_u32 s{sT1}, s{sT1}, {L_LS}\nv_add_u32 v{vLS}, s{sT1}, v6')
    def setup_F():
        setup_A()
        sadd(sT1, (sGF, 2), (sS, 0))
        sadd(sB3, (sT1, 16), (sW, 8))
        vadd(U0, (7, 10), (8, 4))
        a(f's_min_u32 s{sT2}, s{sW}, {2 if gbl else 3}')
        sadd(sB4, (sB, 13), (sT2, 11), WS_RD)
        sadd(sT2, (sW, 11), L_RS)
        a(f'v_add_u32 v{U0+1}, s{sT2}, v6\nv_add_u32 v{U0+2}, {L_ORED}, v6\nv_mov_b32 v{U0+3}, {L_ST}')
        vadd(U0+4, (0, 3), L_RED)
        a(f's_lshl_b32 s{sT0}, s{sB}, 1\nv_xor_b32 v23, s{sT0}, v9\nv_mul_u32_u24 v{U0+5}, {SIG}, v23\nv_lshl_add_u32 v{U0+5}, v7, 5, v{U0+5}\nv_lshl_add_u32 v{U0+5}, v10, 3, v{U0+5}\nv_add_u32 v{U0+5}, s{sT3}, v{U0+5}')
        a('v_and_b32 v23, 1, v22')
        vadd(U0+6, (23, 7), (7, 5), f's{sT3}')
        a(f'v_mul_u32_u24 v{U0+7}, 0x5555, v21')
        vadd(U0+8, (10, 13), (7, 12), (9, 4))
        sadd(sMK, (sB, 16), (sW, 14), (sT1, 7), WS_FP)
        a(f'v_mov_b32 v{U0+11}, 0')
    def setup_O():
        setup_A()
        for i in range(4): a(f'v_mov_b32 v{156+i}, 0')
        a(f'v_mul_u32_u24 v{U0}, {OPS}, v7\nv_lshl_add_u32 v{U0}, v8, 4, v{U0}\ns_lshl_b32 s{sT0}, s{sW}, 8\nv_add_u32 v{U0}, s{sT0}, v{U0}')
        a(f'v_mul_u32_u24 v{U0+1}, {OPS}, v8\ns_lshl_b32 s{sT0}, s{sW}, 4\nv_add_u32 v{U0+1}, s{sT0}, v{U0+1}')
        a(f's_and_b32 s{sT1}, s{sR}, 1\ns_lshl1_add_u32 s{sT1}, s{sG}, s{sT1}\ns_mul_i32 s{sB4}, s{sT1}, {16*OPS}\ns_add_u32 s{sB4}, s{sB4}, {WS_OP}')
        a('v_and_b32 v24, 1, v0\nv_bfe_u32 v25, v0, 1, 2\nv_and_b32 v26, 1, v22\nv_and_b32 v27, 1, v7\nv_lshrrev_b32 v28, 1, v7\nv_bfe_u32 v29, v0, 1, 1')
        vadd(U0+2, (25, 5), (10, 4), (24, 3), f's{sT3}')
        vadd(23, (26, 7), (7, 5), (10, 4), f's{sT3}')
        a(f'v_mov_b32 v{U0+3}, {L_Z}\nv_mov_b32 v{U0+4}, {L_Z}\nv_mov_b32 v{U0+7}, {L_Z}\nv_mov_b32 v{U0+8}, {L_Z}')
        a(f'v_mov_b32_dpp v{U0+3}, v23 quad_perm:[0,1,2,3] row_mask:0xf bank_mask:0x3\nv_mov_b32_dpp v{U0+4}, v23 quad_perm:[0,1,2,3] row_mask:0xf bank_mask:0xc')
        a(f'v_mul_u32_u24 v{U0+5}, 0x5555, v21')
        sadd(sT1, (sW, 9), L_DI)
        vadd(U0+6, (26, 8), (24, 7), (28, 6), (10, 4), (27, 3), (29, 2), f's{sT1}')
        vadd(23, (7, 7), (10, 6), (21, 4), f's{sT1}')
        a(f'v_mov_b32_dpp v{U0+7}, v23 quad_perm:[0,1,2,3] row_mask:0xf bank_mask:0x5\nv_mov_b32_dpp v{U0+8}, v23 quad_perm:[0,1,2,3] row_mask:0xf bank_mask:0xa')
        a(f'v_mul_u32_u24 v{U0+9}, 0xaaaa, v29\nv_add_u32 v{U0+9}, 0x4444, v{U0+9}')
        sadd(sT1, (sW, 9), L_RED)
        vadd(U0+10, (28, 8), (9, 4), (10, 3), (27, 2), f's{sT1}')
        yprec(sMK)
        vadd(U0+11, (7, 14), (8, 4))
        a(f'v_add_u32 v155, {L_RED}, v6')
    def perm_pair(k):
        blk, p = k >> 2, k & 3
        r0 = VR + 32*blk + 8*p
        for c in range(4):
            a(f'v_perm_b32 v{PX[blk] + 8*c + p}, v{r0+4+c}, v{r0+c}, s{sLO}')
            a(f'v_perm_b32 v{PX[blk] + 8*c + 4 + p}, v{r0+4+c}, v{r0+c}, s{sHI}')
    def perm_wo(p):
        r0 = VR + 8*p
        for c in range(4):
            a(f'v_perm_b32 v{WO + 16*c + p}, v{r0+4+c}, v{r0+c}, s{sLO}')
            a(f'v_perm_b32 v{WO + 16*c + 8 + p}, v{r0+4+c}, v{r0+c}, s{sHI}')
    PIL = 4
    def stream(seq, win, sigs, pauses):
        kl = max(n for n, x in enumerate(seq) if x[0] == 'K')
        dv = do = 0; ksig = False
        no = sum(1 for x in seq if x[0] == 'O') // 2
        for n, (t, i) in enumerate(seq):
            w = win(n)
            if n in pauses: pauses[n]()
            if n >= w: a(f's_waitcnt vmcnt({w-1})')
            for (gn, fo) in sigs:
                if n == gn: sig(fo)
            landed = n - w + 1
            if not ksig and landed > kl: sig(F_K, va=vFW); ksig = True
            if t == 'W':
                a(f'buffer_load_dwordx4 v[192:195], v6, {sr(rC,4)}, s{sB2} offen {wpf}\ns_add_u32 s{sB2}, s{sB2}, 1024')
            elif t == 'D':
                if i == 0:
                    srd(rC, pWD, 1792*1024)
                    a(f's_lshl_b32 s{sB2}, s{sB}, 14\ns_add_u32 s{sB2}, s{sB2}, s{sB3}')
                a(f'buffer_load_dwordx4 {vr(192 + 4*i, 4)}, v{U0}, {sr(rC,4)}, s{sB2} offen\ns_add_u32 s{sB2}, s{sB2}, 4096')
            elif t == 'O':
                a(f'buffer_load_dwordx4 {vr(VR + 4*i, 4)}, v11, {sr(rC,4)}, s{sB2} offen\ns_add_u32 s{sB2}, s{sB2}, 8192')
            else:
                if i: a(f's_xor_b32 s{sOFF}, s{sB1}, {i << 10}')
                so = sOFF if i else sB1
                if t == 'K':
                    a(f'buffer_load_dwordx4 v{2 + (i & 3)}, {sr(rA,4)}, s{so} offen {kvfl} lds')
                    if i < 15: a('s_add_u32 m0, m0, 0x400')
                else:
                    assert do == no or do > i // 2
                    a(f'buffer_load_dwordx4 {vr(VR + 4*i, 4)}, v6, {sr(rB,4)}, s{so} offen ' + ('' if (no and i >= vl) else kvfl))
            cntl = lambda ch: sum(1 for x in seq[:max(landed, 0)] if x[0] == ch)
            while do < no and cntl('O') >= 2*do + 2: perm_wo(do); do += 1
            while dv < PIL and cntl('V') >= 2*dv + 2: perm_pair(dv); dv += 1
        assert ksig and dv == PIL and do == no
    KV = [('K', i) for i in range(16)] + [('V', i) for i in range(16)]
    a(f's_cmp_ge_u32 s{sR}, 16\ns_cbranch_scc1 L_A_O')
    if wsh:
        a(f's_lshl2_add_u32 s{sT1}, s{sR}, s{sW}\ns_mul_i32 s{sT2}, s{sT1}, 15\ns_sub_u32 s{sT2}, s{sT2}, {56*15 - 392}\ns_mul_i32 s{sT1}, s{sT1}, 7\ns_cmp_ge_u32 s{sR}, 14\ns_cselect_b32 s{sT1}, s{sT2}, s{sT1}')
        sadd(sB2, (sG, 19), (sT1, 10))
        a(f's_barrier\ns_cmp_ge_u32 s{sR}, 14\ns_cbranch_scc1 L_A_go\ns_cmp_lt_u32 s{sMR}, 8\ns_cbranch_scc0 L_A_go2')
        spin(20, F_H, 1)
        a('s_branch L_A_go2')
        a.lab('L_A_go')
        d_ = 7
        stream([('W', i) for i in range(15)] + KV, lambda n: NM2 if n >= nswm + d_ else NM, [(gr + d_, F_G), (g2m + d_, F_G2), (gp + d_, F_G3)], {8: lambda: a.lab('L_A_go2'), 8 + NM: setup_F})
    else:
        sadd(sB2, (sG, 19), (sR, 15), (sW, 13))
        a('s_barrier')
        a(f's_cmp_lt_u32 s{sMR}, 8\ns_cbranch_scc0 L_A_go')
        spin(20, F_H, 1)
        a.lab('L_A_go')
        seq = [('W', i) for i in range(npw)] + KV
        if ndp: seq = seq[:dpos] + [('D', i) for i in range(4)] + seq[dpos:]
        stream(seq, lambda n: NM2 if n >= nswm else NM, [(gr, F_G), (g2m, F_G2), (gp if (pre or rde) else g3m, F_G3)], {NM: setup_F})
    if plate: sig(F_VI)
    if rde:
        for j in range(2): a(f'buffer_load_dwordx4 {vr(240+4*j,4)}, v6, {sr(rWS,4)}, s{sB4} offen offset:{1024*j} sc1')
    srd(rC, pWD, 1792*1024)
    a('s_branch L_A_pv')
    a.lab('L_A_O')
    vadd(11, (7, 10), (10, 12), (9, 4))
    a(f's_bfe_u32 s{sT1}, s{sR}, 0x30001')
    sadd(sB2, (sG, 19), (sW, 17), (sT1, 7))
    a('s_barrier')
    def p1():
        setup_O()
        a(f's_waitcnt vmcnt({n1w})'); sig(F_G); spin(20, F_GI, 2)
    pz = {n1: p1}
    if p2at is not None: pz[n1 + n2 + 16 + p2at] = lambda: spin(20, F_P, 2)
    stream(KV[:n1+n2] + [('O', i) for i in range(16)] + KV[n1+n2:], lambda n: NQ1 if (NQ1 and n1 + n2 + 16 <= n < nswq) else NQ, [(g2q, F_G2), (g3q, F_G3)], pz)
    if hlp:
        spec = {1: ((1, 12, 12), (1, 8, 12)), 2: ((1, 12, 12), (2, 12, 12)), 3: ((1, 8, 13), (2, 8, 13)), 4: ((1, 8, 13), (1, 4, 12)), 5: ((1, 14, 11), (1, 12, 11))}[hlp]
        a(f's_mov_b32 m0, {L_SCR}\nv_lshlrev_b32 v11, 7, v0')
        for (x, i0, lg) in spec:
            a(f's_xor_b32 s{sOFF}, s{sB1}, {(x << 24) | ((x ^ i0) << 10):#x}\ns_and_b32 s{sOFF}, s{sOFF}, {(-1 << lg) & 0xffffffff:#x}')
            a({13: 's_mov_b64 exec, -1', 12: 's_mov_b32 exec_hi, 0', 11: 's_mov_b64 exec, 0xffff'}[lg])
            a(f'buffer_load_dword v11, {sr(rB,4)}, s{sOFF} offen {hfl2} lds')
        a('s_mov_b64 exec, -1')
    a.lab('L_A_pv')
    RDR = 240 if rde else 64
    def l6():
        for j in range(2): a(f'buffer_load_dwordx4 {vr(RDR+4*j,4)}, v6, {sr(rWS,4)}, s{sB4} offen offset:{1024*j} sc1')
    if prioA: a(f's_setprio {prioA}')
    stamp(2)
    spin(20, F_PR, 1, extra=f'ds_read_b32 v21, v13 offset:{F_S2}', va=vFW)
    stamp(3)
    order = [(0, 0), (1, 0), (0, 1), (0, 2), (0, 3), (1, 1), (1, 2), (1, 3)]
    for blk, u in order: a(f'ds_read_b128 {vr(PV_ + 16*blk + 4*u, 4)}, v{PA+u} offset:{256*blk}')
    a(f'v_readfirstlane_b32 s{sSLOW}, v21')
    def pv(blk, j):
        x, u = j >> 2, j & 3
        c = '0' if (blk == 0 and u == 0) else vr(AC + 4*x, 4)
        a(f'v_mfma_f32_16x16x32_bf16 {vr(AC + 4*x, 4)}, {vr(PX[blk] + 4*j, 4)}, {vr(PV_ + 16*blk + 4*u, 4)}, {c}')
    a('s_waitcnt lgkmcnt(6)')
    a(f'v_mfma_f32_16x16x32_bf16 {vr(ACL,4)}, {vr(ONE,4)}, {vr(PV_,4)}, 0')
    a(f'v_mfma_f32_16x16x32_bf16 {vr(ACL,4)}, {vr(ONE,4)}, {vr(PV_+16,4)}, {vr(ACL,4)}')
    for u in range(4):
        if u: a(f's_waitcnt lgkmcnt({6-u})')
        pv(0, u); pv(0, 4 + u)
    a(f's_mov_b64 exec, 15\nds_write_b32 v{vLS}, v{ACL}')
    sig(F_L)
    stamp(4)
    WDN = 192
    def dn(grp):
        a(f's_xor_b32 s{sT0}, s{sB}, {grp}\ns_lshl_b32 s{sT0}, s{sT0}, 14\ns_add_u32 s{sOFF}, s{sB3}, s{sT0}')
        for k in range(4):
            if k: a(f's_add_u32 s{sOFF}, s{sOFF}, 4096')
            a(f'buffer_load_dwordx4 {vr(WDN + 16*grp + 4*k, 4)}, v{U0}, {sr(rC,4)}, s{sOFF} offen ' + (dnf if grp == 0 else ''))
    if rde and not hlp: a(f's_cmp_ge_u32 s{sR}, 16\ns_cselect_b64 vcc, -1, 0')
    for k in range(PIL, 8):
        if hlp:
            assert rde
            a(f's_waitcnt vmcnt({16 - 2*k})' + (' lgkmcnt(0)' if k == 6 else ''))
            if k == 7: stamp(5)
            if k < 7: perm_pair(k)
            continue
        if rde:
            l, b_ = U('L_w'), U('L_wb')
            if inl: a(f's_waitcnt vmcnt({16 - 2*k})' + (' lgkmcnt(0)' if k == 6 else '') + f'\ns_cbranch_vccz {b_}')
            else:
                a(f's_cbranch_vccz {l}')
                cold.lab(l); cold(f's_waitcnt vmcnt({16 - 2*k}) lgkmcnt(0)\ns_branch {b_}')
        a(f's_waitcnt vmcnt({14 - 2*k})' + (' lgkmcnt(0)' if k == 6 else ''))
        if rde: a.lab(b_)
        if k == 7: stamp(5)
        if k < 7: perm_pair(k)
    r0 = VR + 32 + 24
    def lp(c):
        a(f'v_perm_b32 v{PX[1] + 8*c + 3}, v{r0+4+c}, v{r0+c}, s{sLO}\nv_perm_b32 v{PX[1] + 8*c + 7}, v{r0+4+c}, v{r0+c}, s{sHI}')
    lp(0); lp(1); pv(1, 0); lp(2); pv(1, 1); lp(3)
    for j in range(2, 8): pv(1, j)
    a(f'ds_write_b128 v{vOW}, {vr(AC,4)}\nds_write_b128 v{vOW}, {vr(AC+4,4)} offset:256')
    a('s_waitcnt lgkmcnt(0)\ns_barrier')
    stamp(6)
    a(f's_cmp_lt_u32 s{sR}, 16\ns_cbranch_scc1 L_A_notO')
    G, ST, WA = 64, 32, 36
    for i in range(8): a(f'v_mov_b32 v{AC+i}, 0')
    a(f'v_readlane_b32 s{sT1}, v{VTA}, s{sW}\nv_readlane_b32 s{sT2}, v{VT}, s{sW}\ns_add_u32 s{sB4}, s{sB4}, s{sSLOW}\ns_cmp_eq_u32 s{sSLOW}, 0\ns_cselect_b32 s{sT1}, s{sT1}, s{sT2}')
    a(f's_add_u32 s{sB1}, s{sB4}, {4*OPS}\ns_add_u32 s{sB2}, s{sB4}, {8*OPS}\ns_add_u32 s{sB3}, s{sB4}, {12*OPS}')
    def ls(): a(f's_mov_b64 exec, 0xffff\nbuffer_load_dwordx4 {vr(ST,4)}, v{U0+1}, {sr(rWS,4)}, s{sB4} offen offset:1024 sc1')
    def ld():
        a('s_mov_b64 exec, -1')
        for k, so in enumerate((sB4, sB1, sB2, sB3)): a(f'buffer_load_dwordx4 {vr(G + 4*k, 4)}, v{U0}, {sr(rWS,4)}, s{so} offen sc1')
    a('s_barrier')
    stamp(7)
    if ts: a(f's_mov_b32 s{TS0+26}, 1')
    ls(); ld()
    a(f's_mov_b64 exec, 0xffff\ns_waitcnt vmcnt(4)\nv_cmp_ne_u32 vcc, s{sT1}, v{ST}\ns_cbranch_vcc' + ('z L_O_w' if inl else 'nz L_O_s'))
    hot, a = a, (a if inl else cold)
    a.lab('L_O_s')
    ls()
    if ts: a(f's_add_u32 s{TS0+26}, s{TS0+26}, 1')
    budget()
    a(f's_waitcnt vmcnt(0)\nv_cmp_ne_u32 vcc, s{sT1}, v{ST}\ns_cbranch_vccnz L_O_s')
    ld()
    a('s_mov_b64 exec, 0xffff' + ('' if inl else '\ns_branch L_O_w'))
    a = hot
    a.lab('L_O_w')
    stamp(12)
    def weights():
        xs = ['quad_perm:[1,0,3,2]', 'quad_perm:[2,3,0,1]', 'row_half_mirror']
        a(f'v_max_f32_dpp v17, v{ST+1}, v{ST+1} {xs[0]} row_mask:0xf bank_mask:0xf')
        for x in xs[1:]: a(f'v_max_f32_dpp v17, v17, v17 {x} row_mask:0xf bank_mask:0xf')
        a(f'v_sub_f32 v17, v{ST+1}, v17\nv_exp_f32 v17, v17\nv_mul_f32 v18, v17, v{ST+2}')
        for x in xs: a(f'v_add_f32_dpp v18, v18, v18 {x} row_mask:0xf bank_mask:0xf')
        a('v_rcp_f32 v18, v18\nv_mul_f32 v17, v17, v18')
        hilo([17], [17], [18])
        a(f'ds_write2_b32 v{U0+2}, v17, v17 offset0:0 offset1:33\ns_mov_b64 exec, -1')
        a(f'ds_read_b128 {vr(WA,4)}, v{U0+3}\nds_read_b128 {vr(WA+4,4)}, v{U0+4}')
    def dchk():
        if trim & 4:
            a('s_waitcnt lgkmcnt(0)')
            smf(156, WA, G, U0+5); smf(156, WA + 4, G + 8, U0+5)
        a(f'v_min3_u32 v17, v{G}, v{G+2}, v{G+4}\nv_min3_u32 v18, v{G+6}, v{G+8}, v{G+10}\nv_min3_u32 v17, v17, v{G+12}, v{G+14}\nv_min_u32 v17, v17, v18\nv_cmp_eq_u32 vcc, 0, v17')
    def rz():
        for i in range(4): a(f'v_mov_b32 v{156+i}, 0')
    poll(ld, None, None, cnt=14, check=dchk, first=(weights, 0), noload=True, after_issue=(rz if trim & 4 else None))
    stamp(8)
    if not trim & 4:
        a('s_waitcnt lgkmcnt(0)')
        smf(156, WA, G, U0+5); smf(156, WA + 4, G + 8, U0+5)
    a(f'v_cvt_pk_bf16_f32 v16, v156, v157\nv_cvt_pk_bf16_f32 v17, v158, v159\nds_write2_b32 v{U0+6}, v16, v17 offset0:0 offset1:8')
    a(f'ds_read_b128 {vr(WA,4)}, v{U0+7}\nds_read_b128 {vr(WA+4,4)}, v{U0+8}')
    YA = [AC, AC + 4, AC2, AC2 + 4]
    for jp in range(2):
        a(f's_waitcnt lgkmcnt({1-jp})')
        for x in range(4): smf(YA[x], WA + 4*jp, WO + 8*(2*x + jp), U0+9)
    for x in range(4): a(f'v_pk_add_f32 {vr(YA[x],2)}, {vr(YA[x],2)}, {vr(YA[x]+2,2)}')
    for k in range(2):
        a(f'v_add_f32_dpp v{16+k}, v{YA[2*k]+1}, v{YA[2*k]} row_ror:8 row_mask:0xf bank_mask:0x3')
    for k in range(2):
        a(f'v_add_f32_dpp v{16+k}, v{YA[2*k+1]}, v{YA[2*k+1]+1} row_ror:8 row_mask:0xf bank_mask:0xc')
    a(f'ds_write2_b32 v{U0+10}, v16, v17 offset0:0 offset1:32')
    if trim & 1:
        a(f's_mov_b32 exec_hi, 0\ns_cmp_eq_u32 s{sW}, 0\ns_cbranch_scc1 L_O_y\ns_waitcnt lgkmcnt(0)\ns_barrier\ns_branch L_fin')
        a.lab('L_O_y')
        a('s_waitcnt lgkmcnt(0)\ns_barrier')
        stamp(9)
    else:
        a(f's_mov_b32 exec_hi, 0\ns_cmp_eq_u32 s{sW}, 0\ns_waitcnt lgkmcnt(0)\ns_barrier')
        stamp(9)
        a(f's_cbranch_scc0 L_fin')
    if odel: a(f's_sleep {odel}')
    sum4(64, 155, 512)
    tagit(64)
    a(f'buffer_store_dwordx4 v[64:67], v{U0+11}, {sr(rWS,4)}, s{sMK} offen sc1')
    if yl:
        a(f's_add_u32 s{sMK}, s{sMK}, 0x10000')
        tagit(64, VTA)
        a(f'buffer_store_dwordx4 v[64:67], v{U0+11}, {sr(rWS,4)}, s{sMK} offen')
    stamp(10)
    if gbl: a('s_barrier')
    if fpt == 2:
        sadd(sT1, (sGF, 2), (sS, 0))
        sadd(sB1, (sT1, 7), (sB, 16), WS_FP - 4*128)
        a(f'v_lshlrev_b32 v3, 12, v8\nbuffer_load_dword v97, v3, {sr(rWS,4)}, s{sB1} offen')
    if cln:
        a(f's_mov_b64 exec, -1\ns_bfe_u32 s{sT2}, s{sR}, 0x30001\ns_and_b32 s{sT1}, s{sR}, 1')
        sadd(sB1, (sG, 15), (sT1, 14), (sT2, 11), WS_QP)
        for i in range(4): a(f'v_mov_b32 v{68+i}, 0')
        if cln & 2: a('s_waitcnt vmcnt(0)')
        a(f'buffer_store_dwordx4 v[68:71], v6, {sr(rWS,4)}, s{sB1} offen sc1\nbuffer_store_dwordx4 v[68:71], v6, {sr(rWS,4)}, s{sB1} offen offset:1024 sc1')
    if opf:
        srd(rC, pWD, 1792*1024)
        sadd(sB1, (sGF, 18), (sR, 14), (-16 << 14) & 0xffffffff)
        a(f's_mov_b64 exec, -1\nv_lshlrev_b32 v2, 7, v0\ns_add_u32 s{sB2}, s{sB1}, 8192')
        a(f'buffer_load_dword v3, v2, {sr(rC,4)}, s{sB1} offen\nbuffer_load_dword v4, v2, {sr(rC,4)}, s{sB2} offen')
    a('s_branch L_fin')
    a.lab('L_A_notO')
    dn0 = not (ndp or any(0 in g_ for _, g_ in dns))
    def rsw():
        a(f'ds_write_b128 v{U0+1}, {vr(RDR,4)}\nds_write_b128 v{U0+1}, {vr(RDR+4,4)} offset:1024')
        sig(F_RS)
    if rde:
        a(f's_waitcnt vmcnt(0)\nv_xor_b32 v{RDR}, v{RDR}, v{VT}\nv_xor_b32 v{RDR+4}, v{RDR+4}, v{VT}')
        orall([RDR, RDR+4], 19)
        a('s_cbranch_vccnz L_A_rd')
        rsw()
        a(f's_barrier\ns_cmp_eq_u32 s{sGF}, 7\ns_cbranch_scc1 L_fin')
        if fdel: a(f's_sleep {fdel}')
        if dn0: dn(0)
        a.lab('L_A_rdb')
        hot, a = a, Asm()
        a.lab('L_A_rd')
    a(f's_barrier\ns_cmp_eq_u32 s{sGF}, 7\ns_cbranch_scc1 L_fin')
    if fdel: a(f's_sleep {fdel}')
    poll(l6, [RDR, RDR+4], 19, cnt=13, first=((lambda: dn(0), 4) if dn0 else None))
    rsw()
    if rde:
        a('s_branch L_A_rdb')
        cold.L += a.L; a = hot
    csdone = False
    for th, grps in dns:
        if th > 4 and not csdone:
            spin(16, F_CS, 4); sum4(64, U0+2, 1024); csdone = True
        if th: spin(16, F_YI, th, sleep=(1 if th == 4 else 0))
        for g_ in grps: dn(g_)
    if not csdone:
        spin(16, F_CS, 4); sum4(64, U0+2, 1024)
    a(f'v_mul_f32 v64, {f32(L2E)}, v64\nv_mul_f32 v66, {f32(L2E)}, v66\nv_mov_b32 v78, {f32(1.0/512)}')
    if opt & 32:
        a(f'v_mov_b32 v88, 0\nv_mov_b32 v89, {f32(1e-5)}\nv_mov_b32 v90, {f32(L2E)}\nv_mov_b32 v91, 1.0')
        a('s_barrier')
        stamp(9)
        a(f'ds_read_b128 v[68:71], v{U0+3}\nds_read_b128 v[72:75], v{U0+3} offset:16')
        for w in range(4): a(f'ds_read_b64 {vr(80 + 2*w, 2)}, v{U0+4} offset:{512*w}')
        a('s_waitcnt lgkmcnt(4)\nv_pk_add_f32 v[68:69], v[68:69], v[70:71]\nv_pk_add_f32 v[72:73], v[72:73], v[74:75]\nv_pk_add_f32 v[68:69], v[68:69], v[72:73]')
        a('v_pk_fma_f32 v[76:77], v[68:69], v[78:79], v[88:89] op_sel_hi:[1,0,1]')
        a('v_fma_f32 v70, -v76, v76, v77\nv_max_f32 v70, v70, v89\nv_rsq_f32 v70, v70')
        a('s_waitcnt lgkmcnt(0)\nv_pk_add_f32 v[80:81], v[80:81], v[82:83]\nv_pk_add_f32 v[84:85], v[84:85], v[86:87]')
        a('v_pk_mul_f32 v[64:65], v[64:65], v[76:77] op_sel_hi:[1,0]\nv_pk_add_f32 v[80:81], v[80:81], v[84:85]')
        a('v_pk_fma_f32 v[80:81], v[80:81], v[90:91], v[64:65] neg_lo:[0,0,1] neg_hi:[0,0,1]')
        a('v_pk_fma_f32 v[72:73], v[80:81], v[70:71], v[66:67] op_sel_hi:[1,0,1]')
    else:
        if opt & 2:
            spin(16, F_ST, 4, extra=f'ds_read_b128 v[68:71], v{U0+3}\nds_read_b128 v[72:75], v{U0+3} offset:16')
            a('s_barrier')
            stamp(9)
            for w in range(4): a(f'ds_read_b64 {vr(80 + 2*w, 2)}, v{U0+4} offset:{512*w}')
            a('v_pk_add_f32 v[68:69], v[68:69], v[70:71]\nv_pk_add_f32 v[72:73], v[72:73], v[74:75]\nv_pk_add_f32 v[68:69], v[68:69], v[72:73]')
            a('v_pk_mul_f32 v[76:77], v[68:69], v[78:79] op_sel_hi:[1,0]')
            a(f'v_fma_f32 v71, -v76, v76, v77\nv_max_f32 v71, 0, v71\nv_add_f32 v71, {f32(1e-5)}, v71\nv_rsq_f32 v71, v71')
            a('v_pk_mul_f32 v[64:65], v[64:65], v[76:77] op_sel_hi:[1,0]')
            a(f'v_mul_f32 v70, {f32(L2E)}, v71\nv_fma_f32 v66, -v71, v64, v66\nv_fma_f32 v67, -v71, v65, v67')
        else:
            a('s_barrier')
            stamp(9)
            a(f'ds_read_b128 v[68:71], v{U0+3}\nds_read_b128 v[72:75], v{U0+3} offset:16')
            for w in range(4): a(f'ds_read_b64 {vr(80 + 2*w, 2)}, v{U0+4} offset:{512*w}')
            a('s_waitcnt lgkmcnt(5)\nv_pk_add_f32 v[68:69], v[68:69], v[70:71]\ns_waitcnt lgkmcnt(4)\nv_pk_add_f32 v[72:73], v[72:73], v[74:75]\nv_pk_add_f32 v[68:69], v[68:69], v[72:73]')
            a('v_pk_mul_f32 v[76:77], v[68:69], v[78:79] op_sel_hi:[1,0]')
            a(f'v_fma_f32 v71, -v76, v76, v77\nv_max_f32 v71, 0, v71\nv_add_f32 v71, {f32(1e-5)}, v71\nv_rsq_f32 v71, v71')
            a('v_pk_mul_f32 v[64:65], v[64:65], v[76:77] op_sel_hi:[1,0]')
            a(f'v_mul_f32 v70, {f32(L2E)}, v71\nv_fma_f32 v66, -v71, v64, v66\nv_fma_f32 v67, -v71, v65, v67')
        a('s_waitcnt lgkmcnt(2)\nv_pk_add_f32 v[80:81], v[80:81], v[82:83]\ns_waitcnt lgkmcnt(1)\nv_pk_add_f32 v[80:81], v[80:81], v[84:85]\ns_waitcnt lgkmcnt(0)\nv_pk_add_f32 v[80:81], v[80:81], v[86:87]')
        a('v_pk_fma_f32 v[72:73], v[80:81], v[70:71], v[66:67]')
    a('v_exp_f32 v72, v72\nv_add_f32 v72, 1.0, v72\nv_rcp_f32 v72, v72\nv_mul_f32 v72, v72, v73\nv_cvt_pk_bf16_f32 v72, v72, 0')
    a(f'ds_write2_b32 v{U0+5}, v72, v72 offset0:0 offset1:33')
    for sg in range(8): a(f'ds_read_b128 {vr(96 + 4*sg, 4)}, v{U0+6} offset:{sg*SIG}')
    a('s_waitcnt vmcnt(0)')
    for sg in range(8):
        a(f's_waitcnt lgkmcnt({7-sg})')
        smf(AC2, 96 + 4*sg, WDN + 8*sg, U0+7)
    a('s_mov_b32 exec_hi, 0')
    if fl_: a(f's_or_b32 s{sT0}, s{sGF}, s{sSLOW}\ns_cmp_eq_u32 s{sT0}, s{sW}')
    if fl_ and opt & 4: a('s_cbranch_scc1 L_A_loc')
    tagit(AC2)
    if fl_ and not opt & 4: a('s_cbranch_scc1 L_A_loc')
    a(f'buffer_store_dwordx4 {vr(AC2,4)}, v{U0+8}, {sr(rWS,4)}, s{sMK} offen sc1')
    if fl_:
        a('s_branch L_A_locb')
        a.lab('L_A_loc')
        if opt & 4:
            a('s_nop 3'); tagit(AC2)
        a(f'buffer_store_dwordx4 {vr(AC2,4)}, v{U0+8}, {sr(rWS,4)}, s{sMK} offen')
        a.lab('L_A_locb')
    stamp(10)
    if fack == 1: a('s_waitcnt vmcnt(0)')
    if fack >= 3:
        if fack == 5: a(f's_xor_b32 s{sGF}, s{sGF}, 1')
        a(f's_cmp_eq_u32 s{sW}, ' + ('0' if fack == 3 else f's{sGF}') + '\ns_cbranch_scc0 L_A_nw\ns_waitcnt vmcnt(0)')
        a.lab('L_A_nw')
    if fack: a('s_barrier')
    a.lab('L_fin')
    stamp(11)
    if leak:
        W, w, ka, kb = leak
        a(f's_cmp_eq_u32 s2, {W}\ns_cbranch_scc0 L_end\ns_cmp_eq_u32 s3, {w}\ns_cbranch_scc0 L_end')
        a(f's_waitcnt lgkmcnt(0)\ns_sub_u32 s{sT0}, s{TS0+2*ka}, s{TS0+2*kb}\ns_min_u32 s{sT0}, s{sT0}, 5000\ns_mul_i32 s{sT0}, s{sT0}, 40')
        if ka == kb: a(f's_getreg_b32 s{sT0}, hwreg(HW_REG_XCC_ID, 0, 3)\ns_mul_i32 s{sT0}, s{sT0}, 1000')
        a.lab('L_leak')
        a(f's_memrealtime s[96:97]\ns_waitcnt lgkmcnt(0)\ns_sub_u32 s{sT1}, s96, s{TS0+22}\ns_cmp_lt_u32 s{sT1}, s{sT0}\ns_cbranch_scc1 L_leak')
    elif ts:
        a('s_sleep 60\ns_waitcnt lgkmcnt(0)')
        a(f's_xor_b32 s{sT1}, s3, 4\ns_lshl3_add_u32 s{sOFF}, s2, s{sT1}\ns_lshl_b32 s{sOFF}, s{sOFF}, 6\ns_add_u32 s{sOFF}, s{sOFF}, {WS_TS}')
        a('s_mov_b64 exec, 1\nv_mov_b32 v2, 0')
        for k in range(16):
            a(f'v_mov_b32 v3, s{TS0+2*k}\nbuffer_store_dword v3, v2, {sr(rWS,4)}, s{sOFF} offen offset:{4*k}')
    a.lab('L_end')
    a('s_endpgm')
    a.L += cold.L
    a.lab('L_codeend')

    body, added = hazard_pass(a.L)
    out = [HEADER + f'; @launch grid=(256,1,1) block=(512,1,1) lds={L_END}',
           '.amdgcn_target "amdgcn-amd-amdhsa--gfx950"', '.text', f'.globl {NAME}_kernel', '.p2align 8', f'.type {NAME}_kernel,@function']
    out += [l if l.endswith(':') else '    ' + l for l in body]
    out += ['.section .rodata,"a"', '.p2align 6', f'.amdhsa_kernel {NAME}_kernel',
            '  .amdhsa_next_free_vgpr 256', '  .amdhsa_next_free_sgpr 102', '  .amdhsa_accum_offset 256',
            '  .amdhsa_group_segment_fixed_size 0', '  .amdhsa_kernarg_size 112', '  .amdhsa_user_sgpr_count 2',
            '  .amdhsa_user_sgpr_kernarg_segment_ptr 1', '  .amdhsa_system_sgpr_workgroup_id_x 1',
            '  .amdhsa_float_denorm_mode_32 3', '.end_amdhsa_kernel']
    return '\n'.join(out) + '\n'

if __name__ == '__main__':
    kw = {}
    for arg in sys.argv[2:]:
        k, v = arg.split('=')
        try: v = eval(v)
        except Exception: pass
        kw[k] = v
    open(sys.argv[1], 'w').write(gen(**kw))
```
